```python
import torch

def _softmax(x, axis=-1):
    return torch.softmax(x, dim=axis)
def _gelu(x):
    return torch.nn.functional.gelu(x, approximate="tanh")
def _silu(x):
    return torch.nn.functional.silu(x)
def _sigmoid(x):
    return torch.sigmoid(x)
def _layernorm(x, axis=-1, eps=1e-5):
    m = x.mean(dim=axis, keepdim=True)
    v = x.var(dim=axis, keepdim=True, unbiased=False)
    return (x - m) / torch.sqrt(v + eps)
def _scatter_add(tgt, idx, src, axis=0):
    return tgt.clone().index_add_(axis, idx, src)
def _segment_sum(src, seg, n):
    out = torch.zeros((n,) + src.shape[1:], dtype=src.dtype)
    return out.index_add_(0, seg, src)
def _pad(x, pw):
    flat = tuple(v for pair in reversed(pw) for v in pair)
    return torch.nn.functional.pad(x, flat)

kernel_name = 'gated_mix__sliding_local_dilated__glu_gated_glu__prompt'

def setup_inputs():

    _w = (lambda a: (lambda t: t.to(torch.bfloat16) if t.is_floating_point() else t)(torch.as_tensor(a)))
    def _A_setup():
        B, S, D = 1, 2048, 448
        return {
            "x": _w((lambda *s: torch.randn(*s, dtype=torch.bfloat16) * 0.05)(B, S, D)),
            "wqkv": _w((lambda *s: torch.randn(*s, dtype=torch.bfloat16) * 0.8)(D, 3 * D)),
            "wo": _w((lambda *s: torch.randn(*s, dtype=torch.bfloat16) * 0.05)(D, D)),
        }
    _A_in = _A_setup()

    def _B_setup():
        B, S, D, F = 1, 2048, 448, 1792
        return {
            "x": _w((lambda *s: torch.randn(*s, dtype=torch.bfloat16) * 0.05)(B, S, D)),
            "w_gate": _w((lambda *s: torch.randn(*s, dtype=torch.bfloat16) * 1.6)(D, F)),
            "w_up": _w((lambda *s: torch.randn(*s, dtype=torch.bfloat16) * 0.1)(D, F)),
            "w_down": _w((lambda *s: torch.randn(*s, dtype=torch.bfloat16) * 0.1)(F, D)),
        }
    _B_in = _B_setup()

    return {
        "A_x": _A_in["x"],
        "A_wqkv": _A_in["wqkv"],
        "A_wo": _A_in["wo"],
        "B_x": _B_in["x"],
        "B_w_gate": _B_in["w_gate"],
        "B_w_up": _B_in["w_up"],
        "B_w_down": _B_in["w_down"],
        "gate_w": _w((lambda *s: torch.randn(*s, dtype=torch.bfloat16) * 0.05)(448) * 16.0),
    }

def reference(A_x, A_wqkv, A_wo, B_x, B_w_gate, B_w_up, B_w_down, gate_w):
    def _A_ref(x, wqkv, wo):
        B, S, D = x.shape
        H = 16; Dh = D // H
        W, dil = 8, 2
        qkv = (lambda x, *d: x.permute(*d))((x @ wqkv).reshape(B, S, 3, H, Dh), 2, 0, 3, 1, 4)
        q, k, v = qkv[0], qkv[1], qkv[2]
        scale = Dh ** -0.5
        pos = torch.arange(S)
        off = torch.arange(W) * dil
        idx = pos[:, None] - off[None, :]
        mask = idx >= 0
        idx_c = torch.where(mask, idx, 0).reshape(-1)
        kg = k[:, :, idx_c, :].reshape(B, H, S, W, Dh)
        vg = v[:, :, idx_c, :].reshape(B, H, S, W, Dh)
        logits = torch.einsum("bhsd,bhswd->bhsw", q, kg) * scale
        logits = torch.where(mask[None, None, :, :], logits, -1e9)
        attn = _softmax(logits, axis=-1)
        o = torch.einsum("bhsw,bhswd->bhsd", attn, vg)
        return (lambda x, *d: x.permute(*d))(o, 0, 2, 1, 3).reshape(B, S, D) @ wo

    def _B_ref(x, w_gate, w_up, w_down):
        g = torch.einsum("bsd,df->bsf", x, w_gate)
        u = torch.einsum("bsd,df->bsf", x, w_up)
        h = _sigmoid(g) * u
        return torch.einsum("bsf,fd->bsd", h, w_down)

    x = A_x
    g = _sigmoid((x * gate_w).sum(-1, keepdims=True))
    a = _A_ref(x, A_wqkv, A_wo)
    b = _B_ref(x, B_w_gate, B_w_up, B_w_down)
    return g * a + (1 - g) * b
```

```python
import re


def V(i, n=1):
    return ("v", i, n)


def A(i, n=1):
    return ("a", i, n)


def S(i, n=1):
    return ("s", i, n)


def rs(r):
    if isinstance(r, str):
        return r
    if isinstance(r, (int, float)):
        return lit(r)
    f, i, n = r
    if n == 1:
        return f"{f}{i}"
    return f"{f}[{i}:{i + n - 1}]"


def lit(x):
    if isinstance(x, float):
        import struct
        inl = {0.5: "0.5", 1.0: "1.0", 2.0: "2.0", 4.0: "4.0", -0.5: "-0.5", -1.0: "-1.0", -2.0: "-2.0", -4.0: "-4.0", 0.0: "0"}
        if x in inl:
            return inl[x]
        return "0x%08x" % struct.unpack("<I", struct.pack("<f", x))[0]
    if -16 <= x <= 64:
        return str(x)
    return "0x%x" % (x & 0xFFFFFFFF)


def regset(*ops):
    out = set()
    for r in ops:
        if r is None or isinstance(r, (str, int, float)):
            if r == "vcc":
                out.add(("vcc", 0))
            elif r == "m0":
                out.add(("m0", 0))
            elif r == "exec":
                out.add(("exec", 0))
            continue
        f, i, n = r
        for k in range(n):
            out.add((f, i + k))
    return out


TRANS = ("v_exp_f32", "v_rcp_f32", "v_log_f32", "v_rsq_f32", "v_sqrt_f32")


class I:
    __slots__ = ("text", "rd", "wr", "kind", "tag", "need", "srcc", "ab", "cost", "data")

    def __init__(self, text, rd=(), wr=(), kind="valu", tag=None, need=(), srcc=(), ab=(), cost=1, data=()):
        self.text = text
        self.rd = set(rd)
        self.wr = set(wr)
        self.kind = kind
        self.tag = tag
        self.need = tuple(need)
        self.srcc = set(srcc)
        self.ab = set(ab)
        self.cost = cost
        self.data = set(data)


class Emitter:
    def __init__(self):
        self.out = []
        self.hist = []
        self.vm = []
        self.lg = []
        self.nops = 0

    def raw(self, text):
        self.out.append(text)

    def comment(self, t):
        self.out.append("    ; " + t)

    def label(self, name, reset=True):
        self.out.append(name + ":")

    def _push(self, ins):
        self.out.append("    " + ins.text)
        self.hist.append(ins)
        if len(self.hist) > 40:
            self.hist.pop(0)

    def nop(self, n):
        while n > 0:
            k = min(n, 16)
            ins = I(f"s_nop {k - 1}", kind="nop", cost=k)
            self._push(ins)
            self.nops += k
            n -= k

    def _wait(self, vm=None, lg=None):
        parts = []
        if vm is not None:
            vm = min(vm, 63)
            parts.append(f"vmcnt({vm})")
            self.vm = self.vm[len(self.vm) - vm:] if vm < len(self.vm) else self.vm
            if vm == 0:
                self.vm = []
        if lg is not None:
            lg = min(lg, 15)
            parts.append(f"lgkmcnt({lg})")
            self.lg = self.lg[len(self.lg) - lg:] if lg < len(self.lg) else self.lg
            if lg == 0:
                self.lg = []
        if parts:
            self._push(I("s_waitcnt " + " ".join(parts), kind="wait"))

    def wait_all(self, vm=True, lg=True):
        self._wait(0 if vm else None, 0 if lg else None)

    def _needed(self, lst, regs, tags):
        idx = -1
        for k, op in enumerate(lst):
            if (op.wr & regs) or (op.tag is not None and op.tag in tags):
                idx = k
        if idx < 0:
            return None
        return len(lst) - 1 - idx

    def wait_tags(self, *tags):
        v = self._needed(self.vm, set(), set(tags))
        l = self._needed(self.lg, set(), set(tags))
        self._wait(v, l)

    def _hazard(self, ins):
        need = 0
        dist = 0
        for p in reversed(self.hist):
            req = 0
            k = ins.kind
            pk = p.kind
            touched = ins.rd | ins.wr
            if pk in ("valu", "trans", "perm", "rdlane"):
                vw = {r for r in p.wr if r[0] in "va"}
                sw = {r for r in p.wr if r[0] in ("s", "vcc")}
                if k == "mfma" and vw & ins.rd:
                    req = max(req, 2)
                if k == "perm" and vw & ins.rd:
                    req = max(req, 2)
                if k == "rdlane" and vw & ins.rd:
                    req = max(req, 1)
                if pk == "trans" and k in ("valu", "perm", "rdlane", "ds_wr", "vm_st", "vm_ld", "ds_rd", "dma") and vw & ins.rd:
                    req = max(req, 1)
                if sw & ins.rd:
                    if k in ("valu", "trans", "perm"):
                        req = max(req, 2)
                    if k in ("vm_ld", "vm_st", "dma"):
                        req = max(req, 5)
                    if k == "rdlane":
                        req = max(req, 4)
                    if k in ("salu", "branch"):
                        req = max(req, 1)
            if pk == "mfma":
                d = p.wr
                if k == "mfma":
                    if d & ins.ab:
                        req = max(req, 12)
                    if d & ins.srcc and not (d == ins.srcc):
                        req = max(req, 10)
                    if d & ins.wr and not (d == ins.srcc and d == ins.wr):
                        req = max(req, 12)
                elif k not in ("salu", "wait", "nop", "barrier", "branch", "smem"):
                    if d & touched:
                        req = max(req, 12)
                    if p.srcc & ins.wr and k in ("valu", "trans", "perm"):
                        req = max(req, 7)
            if pk == "salu" and ("m0", 0) in p.wr and k == "dma":
                req = max(req, 1)
            if pk == "vm_st" and len(p.data) >= 3 and (p.data & ins.wr):
                req = max(req, 2)
            if req > dist:
                need = max(need, req - dist)
            dist += p.cost if p.kind == "nop" else 1
            if dist > 20:
                break
        if need:
            self.nop(need)

    def emit(self, ins):
        if isinstance(ins, (list, tuple)):
            for x in ins:
                self.emit(x)
            return
        regs = ins.rd | ins.wr
        tags = set(ins.need)
        v = self._needed(self.vm, regs, tags)
        l = self._needed(self.lg, ins.rd if ins.kind == "ds_rd" else regs, tags)
        if v is not None or l is not None:
            self._wait(v, l)
        self._hazard(ins)
        self._push(ins)
        if ins.kind in ("vm_ld", "vm_st", "dma"):
            self.vm.append(ins)
            assert len(self.vm) <= 200
        elif ins.kind in ("ds_rd", "ds_wr"):
            self.lg.append(ins)

    def text(self):
        return "\n".join(self.out) + "\n"


def valu(op, dst, *src, extra_rd=(), extra_wr=(), mods=""):
    kind = "trans" if op in TRANS else "valu"
    txt = f"{op} {rs(dst)}, " + ", ".join(rs(x) for x in src) + mods
    rd = regset(*src) | regset(*extra_rd)
    if op.startswith("v_fmac") or op.startswith("v_pk_fmac"):
        rd |= regset(dst)
    return I(txt, rd, regset(dst) | regset(*extra_wr), kind, cost=2 if kind == "trans" else 1)


def neg(r):
    return "-" + rs(r)


def salu(op, dst, *src):
    txt = f"{op} {rs(dst)}" + ("".join(", " + rs(x) for x in src))
    return I(txt, regset(*src), regset(dst), "salu")


def scmp(op, a, b):
    return I(f"{op} {rs(a)}, {rs(b)}", regset(a, b), (), "salu")


def branch(op, label):
    return I(f"{op} {label}", (), (), "branch")


def mfma(d, a, b, c, tag=None):
    ctext = rs(c)
    srcc = regset(c)
    return I(f"v_mfma_f32_32x32x16_bf16 {rs(d)}, {rs(a)}, {rs(b)}, {ctext}", regset(a, b, c), regset(d), "mfma",
             srcc=srcc, ab=regset(a, b))


def ds_read(width, dst, addr, off=0, tr=False, need=()):
    op = "ds_read_b64_tr_b16" if tr else f"ds_read_b{width}"
    assert 0 <= off < 65536, off
    return I(f"{op} {rs(dst)}, {rs(addr)} offset:{off}", regset(addr), regset(dst), "ds_rd", need=need)


def ds_write(width, addr, src, off=0, tag=None):
    assert 0 <= off < 65536, off
    return I(f"ds_write_b{width} {rs(addr)}, {rs(src)} offset:{off}", regset(addr, src), (), "ds_wr", tag=tag)


def _w(n):
    return {1: "dword", 2: "dwordx2", 3: "dwordx3", 4: "dwordx4"}[n]


def buf_load(dst, voff, srd, soff=0, off=0, flags="", tag=None, need=()):
    assert 0 <= off < 4096
    n = dst[2]
    return I(f"buffer_load_{_w(n)} {rs(dst)}, {rs(voff)}, {rs(srd)}, {rs(soff)} offen offset:{off}{flags}",
             regset(voff, srd, soff), regset(dst), "vm_ld", tag=tag, need=need)


def buf_store(src, voff, srd, soff=0, off=0, flags="", tag=None, op=None, need=()):
    assert 0 <= off < 4096
    n = src[2]
    o = op or f"buffer_store_{_w(n)}"
    return I(f"{o} {rs(src)}, {rs(voff)}, {rs(srd)}, {rs(soff)} offen offset:{off}{flags}",
             regset(src, voff, srd, soff), (), "vm_st", tag=tag, data=regset(src), need=need)


def dma(voff, srd, soff, tag, flags=""):
    return I(f"buffer_load_dwordx4 {rs(voff)}, {rs(srd)}, {rs(soff)} offen{flags} lds",
             regset(voff, srd, soff, "m0"), (), "dma", tag=tag)


def barrier(need=()):
    return I("s_barrier", (), (), "barrier", need=need)


def permswap(a, b):
    return I(f"v_permlane32_swap_b32 {rs(a)}, {rs(b)}", regset(a, b), regset(a, b), "perm")


def readfirstlane(sd, vs):
    return I(f"v_readfirstlane_b32 {rs(sd)}, {rs(vs)}", regset(vs), regset(sd), "rdlane")
```

```python
import sys, math, argparse
from collections import deque
from emit import *

NAME = "gated_mix__sliding_local_dilated__glu_gated_glu__prompt"

A2_OFF = 0x0
B2_OFF = 0xA00000
G_OFF = 0xC00000
FLAG_OFF = 0xD00000
DIAG_OFF = 0xE00000
WS_BYTES = 0x1000000

XW = 24576
WR_BASE = 98304
WR_SLOT = 12544
HX_BASE = WR_BASE + 3 * WR_SLOT
GW_BASE = HX_BASE + 3 * 4096
PK_BASE = GW_BASE + 1024
LDS_P1_END = PK_BASE + 8192
HP_BASE = WR_BASE
HS_BASE = WR_BASE + 4 * 6144
assert HS_BASE + 5 * 3072 <= GW_BASE
LDS_BYTES = 163840

LOG2E = 1.4426950408889634
CSC = (28 ** -0.5) * LOG2E
NEGBIG = -1.0e30

sKA = S(0, 2)
sWG = S(2)
P_X, P_WQKV, P_WO, P_BX, P_WG, P_WU, P_WD, P_GW, P_OUT, P_DBG, P_WS = [4 + 2 * i for i in range(11)]
SRD_X, SRD_QKV, SRD_GU, SRD_W2, SRD_GW, SRD_OUT, SRD_WS, SRD_DBG = [S(28 + 4 * i, 4) for i in range(8)]
sW, sRB, sCQ, sJ = S(60), S(61), S(62), S(63)
sT0, sT1, sT2, sT3, sT4, sT5 = [S(64 + i) for i in range(6)]
sXB = S(70)
sWD = S(71)
sW2D = S(72)
sHXD = S(73)
sPKD = S(74)
sSO = S(75)
sSO2 = S(76)
sC = S(77)
sGMASK = S(78, 2)
sLOMASK = S(80, 2)
sFIRST = S(82, 2)
sPC = S(84, 2)
sDIAG = 86

vL16 = V(224)
vXe, vXo = V(225), V(226)
vW = [V(227), V(228), V(229)]
vW2 = V(230)
vHX = V(231)
vXR = [V(232 + i) for i in range(4)]
vWR = V(236)
vWH = V(237)
vHXR = V(238)
vW2R = [[V(239), V(240)], [V(241), V(242)]]
vGW = V(243)
vPKD, vPKR = V(244), V(245)
vST = V(246)
vLANE = V(247)
vZERO = V(248)
vHP, vHPK, vHPV, vHSK, vHSV, vHSO, vHSI = [V(249 + i) for i in range(7)]
TMP = 200


def pieces(kb2):
    if kb2 < 4:
        return kb2 * XW + 8192
    return (kb2 - 4) * XW + 16384


class Opt:
    diag = False
    fused = False
    budget = 5


def stamp(E, idx):
    if Opt.diag:
        E.emit(I(f"s_memtime s[{sDIAG + 2 * idx}:{sDIAG + 2 * idx + 1}]", (), (), "smem"))


def item_cost(it):
    if isinstance(it, I):
        return it.cost
    return sum(x.cost for x in it)


def weave(E, mfmas, must, fill, budget=None, hold=0, pre=None):
    budget = budget or Opt.budget
    must = deque(must)
    n = len(mfmas)
    for g, m in enumerate(mfmas):
        E.emit(m)
        if g + 1 == hold and pre is not None:
            for it in pre:
                if callable(it):
                    it()
                else:
                    E.emit(it)
        b = budget
        if g + 1 >= hold:
            gaps_left = n - g
            tot = sum(item_cost(x) for x in must)
            quota = max(budget, math.ceil(tot / gaps_left))
            while must and (quota > 0):
                it = must.popleft()
                E.emit(it)
                quota -= item_cost(it)
                b -= item_cost(it)
        while fill and b >= item_cost(fill[0]) - 0 and b > 0:
            it = fill.popleft()
            if callable(it):
                it()
            else:
                E.emit(it)
                b -= item_cost(it)
    while must:
        E.emit(must.popleft())


def cost_of(it):
    return 0 if callable(it) else item_cost(it)


_ic = item_cost


def item_cost(it):
    if callable(it):
        return 0
    return _ic(it)


def make_srd(E, srd, ptr, nbytes):
    b = srd[1]
    E.emit(salu("s_mov_b32", S(b), S(ptr)))
    E.emit(salu("s_mov_b32", S(b + 1), S(ptr + 1)))
    E.emit(salu("s_mov_b32", S(b + 2), nbytes))
    E.emit(salu("s_mov_b32", S(b + 3), 0x20000))


def common_prologue(E, exit_label, code_label, code_kb):
    E.emit(scmp("s_cmp_ge_u32", sWG, 256))
    E.emit(branch("s_cbranch_scc1", exit_label))
    stamp(E, 0)
    E.emit(I("s_load_dwordx16 s[4:19], s[0:1], 0x0", kind="smem"))
    E.emit(I("s_load_dwordx4 s[20:23], s[0:1], 0x40", kind="smem"))
    E.emit(I("s_load_dwordx2 s[24:25], s[0:1], 0x50", kind="smem"))
    E.emit(I("s_getpc_b64 s[84:85]", (), regset(sPC), "salu"))
    E.label(f"L_{code_label}_pc")
    E.emit(valu("v_and_b32", vLANE, 63, V(0)))
    E.emit(valu("v_lshrrev_b32", V(1), 6, V(0)))
    E.emit(salu("s_lshr_b32", sT0, sWG, 3))
    E.emit(readfirstlane(sW, V(1)))
    E.emit(salu("s_and_b32", sT1, sT0, 3))
    E.emit(valu("v_lshlrev_b32", V(2), 2, V(0)))
    E.emit(valu("v_add_u32", V(2), sT1, V(2)))
    E.emit(valu("v_lshlrev_b32", V(2), 7, V(2)))
    E.emit(valu("v_cmp_gt_u32", "vcc", f"L_{code_label}_codeend-L_{code_label}_pc", V(2)))
    E.emit(I("s_and_saveexec_b64 s[64:65], vcc", regset("vcc"), regset(S(64, 2), "exec"), "salu"))
    E.emit(branch("s_cbranch_execz", f"L_{code_label}_nopf"))
    E.emit(I("global_load_dword v3, v2, s[84:85]", regset(V(2), sPC), regset(V(3)), "vm_ld"))
    E.label(f"L_{code_label}_nopf")
    E.emit(I("s_mov_b64 exec, -1", (), regset("exec"), "salu"))
    E.vm = []
    E.emit(salu("s_lshr_b32", sT0, sWG, 3))
    E.emit(valu("v_lshlrev_b32", vL16, 4, vLANE))
    E.emit(salu("s_and_b32", sT1, sWG, 1))
    E.emit(salu("s_lshl_b32", sT1, sT1, 2))
    E.emit(salu("s_lshr_b32", sT2, sT0, 3))
    E.emit(salu("s_add_u32", sRB, sT1, sT2))
    E.emit(salu("s_and_b32", sT1, sWG, 7))
    E.emit(salu("s_lshr_b32", sCQ, sT1, 1))
    E.emit(salu("s_and_b32", sJ, sT0, 7))
    E.emit(I("s_waitcnt lgkmcnt(0)", kind="wait"))


def setup_p1_common(E):
    t = [V(TMP + i) for i in range(12)]
    make_srd(E, SRD_X, P_X, 2048 * 896)
    make_srd(E, SRD_WS, P_WS, WS_BYTES)
    r8, c8, ch = t[0], t[1], t[2]
    E.emit(valu("v_lshrrev_b32", r8, 3, vLANE))
    E.emit(valu("v_and_b32", c8, 7, vLANE))
    E.emit(valu("v_lshrrev_b32", ch, 1, r8))
    E.emit(valu("v_xor_b32", ch, ch, c8))
    E.emit(salu("s_lshl_b32", sT0, sRB, 8))
    E.emit(salu("s_lshl_b32", sT1, sW, 6))
    E.emit(salu("s_add_u32", sT0, sT0, sT1))
    E.emit(valu("v_add_u32", t[3], sT0, r8))
    E.emit(salu("s_movk_i32", sT2, 896))
    E.emit(valu("v_mul_lo_u32", t[3], t[3], sT2))
    E.emit(valu("v_lshl_add_u32", vXe, ch, 4, t[3]))
    E.emit(valu("v_xor_b32", t[4], 4, ch))
    E.emit(valu("v_lshl_add_u32", vXo, t[4], 4, t[3]))
    E.emit(valu("v_add_u32", vXo, 8 * 896, vXo))
    E.emit(salu("s_mul_i32", sXB, sW, XW))


def setup_p1_rest(E, typ):
    t = [V(TMP + i) for i in range(12)]
    r8, c8, ch = t[0], t[1], t[2]
    head = typ == "head"
    if head:
        make_srd(E, SRD_QKV, P_WQKV, 448 * 2688)
        E.emit(salu("s_mul_i32", sT0, sW, 192))
        E.emit(salu("s_lshl_b32", sT1, sCQ, 2))
        E.emit(salu("s_add_u32", sT1, sT1, sJ))
        E.emit(salu("s_sub_u32", sT1, sT1, 4))
        E.emit(salu("s_mul_i32", sT1, sT1, 56))
        E.emit(salu("s_movk_i32", sT2, 2688))
        E.emit(salu("s_movk_i32", sT3, 896))
        for q in range(3):
            p, row, cχ = t[5], t[6], t[7]
            E.emit(valu("v_add_u32", p, sT0, vLANE))
            if q:
                E.emit(valu("v_add_u32", p, 64 * q, p))
            E.emit(valu("v_mul_u32_u24", row, 43691, p))
            E.emit(valu("v_lshrrev_b32", row, 19, row))
            E.emit(valu("v_mul_u32_u24", cχ, 12, row))
            E.emit(valu("v_sub_u32", cχ, p, cχ))
            E.emit(valu("v_mul_lo_u32", row, row, sT2))
            E.emit(valu("v_lshrrev_b32", p, 2, cχ))
            E.emit(valu("v_mul_lo_u32", p, p, sT3))
            E.emit(valu("v_add_u32", row, row, p))
            E.emit(valu("v_and_b32", cχ, 3, cχ))
            E.emit(valu("v_lshl_add_u32", row, cχ, 4, row))
            E.emit(valu("v_add_u32", vW[q], sT1, row))
        E.emit(salu("s_mul_i32", sWD, sW, 3072))
        E.emit(salu("s_add_u32", sWD, sWD, WR_BASE))
    E.emit(scmp("s_cmp_lt_u32", sW, 2))
    b = SRD_GU[1]
    E.emit(salu("s_cselect_b32", S(b), S(P_WG), S(P_WU)))
    E.emit(salu("s_cselect_b32", S(b + 1), S(P_WG + 1), S(P_WU + 1)))
    E.emit(salu("s_mov_b32", S(b + 2), 448 * 3584))
    E.emit(salu("s_mov_b32", S(b + 3), 0x20000))
    E.emit(salu("s_mul_i32", sT4, sCQ, 896))
    E.emit(salu("s_movk_i32", sT2, 3584))
    if not head:
        E.emit(salu("s_mul_i32", sT1, sJ, 160))
        E.emit(salu("s_add_u32", sT4, sT4, sT1))
        E.emit(salu("s_and_b32", sT0, sW, 1))
        E.emit(salu("s_mul_i32", sT0, sT0, 192))
        for q in range(3):
            p, row, cχ = t[5], t[6], t[7]
            E.emit(valu("v_add_u32", p, sT0, vLANE))
            if q:
                E.emit(valu("v_add_u32", p, 64 * q, p))
            E.emit(valu("v_mul_u32_u24", row, 43691, p))
            E.emit(valu("v_lshrrev_b32", row, 18, row))
            E.emit(valu("v_mul_u32_u24", cχ, 6, row))
            E.emit(valu("v_sub_u32", cχ, p, cχ))
            E.emit(valu("v_mul_lo_u32", row, row, sT2))
            E.emit(valu("v_lshl_add_u32", row, cχ, 4, row))
            E.emit(valu("v_add_u32", vW[q], sT4, row))
        E.emit(salu("s_lshr_b32", sT1, sW, 1))
        E.emit(salu("s_mul_i32", sT1, sT1, 6272))
        E.emit(salu("s_and_b32", sT0, sW, 1))
        E.emit(salu("s_mul_i32", sT0, sT0, 3072))
        E.emit(salu("s_add_u32", sWD, sT0, sT1))
        E.emit(salu("s_add_u32", sWD, sWD, WR_BASE))
        E.emit(salu("s_add_u32", sT4, sT4, 96))
    else:
        E.emit(salu("s_lshl_b32", sT1, sJ, 6))
        E.emit(salu("s_add_u32", sT4, sT4, sT1))
        E.emit(salu("s_add_u32", sT4, sT4, 640 - 256))


def setup_p1_late(E, typ):
    head = typ == "head"
    t = [V(TMP + i) for i in range(12)]
    r8, c8, ch = t[0], t[1], t[2]
    items = []
    e = items.append
    e(salu("s_and_b32", sT0, sW, 1))
    e(salu("s_lshl_b32", sT0, sT0, 5))
    e(valu("v_lshrrev_b32", t[5], 2, vLANE))
    e(valu("v_add_u32", t[5], sT0, t[5]))
    e(salu("s_movk_i32", sT2, 3584))
    e(valu("v_mul_lo_u32", t[5], t[5], sT2))
    e(valu("v_and_b32", t[6], 3, vLANE))
    e(salu("s_and_b32", sT1, sW, 2))
    e(valu("v_xor_b32", t[6], sT1, t[6]))
    e(valu("v_lshl_add_u32", t[5], t[6], 4, t[5]))
    e(valu("v_add_u32", vW2, sT4, t[5]))
    e(salu("s_lshl_b32", sW2D, sW, 11))
    m, hf, sw, base = t[5], t[6], t[7], t[8]
    e(valu("v_and_b32", m, 31, vLANE))
    e(valu("v_lshrrev_b32", hf, 5, vLANE))
    e(valu("v_bfe_u32", sw, m, 1, 3))
    e(valu("v_lshlrev_b32", base, 7, m))
    e(valu("v_xor_b32", sw, sw, hf))
    for ee in range(4):
        e(valu("v_xor_b32", t[9], 2 * ee, sw))
        e(valu("v_lshl_add_u32", t[9], t[9], 4, base))
        e(valu("v_add_u32", vXR[ee], sXB, t[9]))
    if head:
        e(salu("s_lshl_b32", sT0, sW, 1))
        e(valu("v_xor_b32", t[9], sT0, sw))
        e(valu("v_lshl_add_u32", t[9], t[9], 4, base))
        e(valu("v_add_u32", vHXR, HX_BASE, t[9]))
    grp, r4, c4, krow = t[5], t[7], t[8], t[9]
    e(valu("v_bfe_u32", grp, vLANE, 4, 1))
    e(valu("v_bfe_u32", r4, vLANE, 2, 2))
    e(valu("v_and_b32", c4, 3, vLANE))
    e(valu("v_lshl_add_u32", krow, hf, 3, r4))
    if head:
        e(valu("v_mul_u32_u24", t[10], 192, krow))
        e(valu("v_lshl_add_u32", t[10], grp, 5, t[10]))
        e(valu("v_lshl_add_u32", t[10], c4, 3, t[10]))
        e(valu("v_add_u32", vWR, WR_BASE, t[10]))
        e(salu("s_mul_i32", sT0, sW, 3072))
        e(valu("v_add_u32", vWH, sT0, vWR))
        e(valu("v_lshlrev_b32", t[10], 4, hf))
        e(valu("v_add_u32", vGW, GW_BASE, t[10]))
    else:
        e(valu("v_mul_u32_u24", t[10], 96, krow))
        e(valu("v_mul_u32_u24", t[11], 6272, grp))
        e(valu("v_add_u32", t[10], t[10], t[11]))
        e(valu("v_lshl_add_u32", t[10], c4, 3, t[10]))
        e(valu("v_add_u32", vWR, WR_BASE, t[10]))
    e(valu("v_lshlrev_b32", t[10], 6, krow))
    e(valu("v_lshl_add_u32", t[10], c4, 3, t[10]))
    e(valu("v_lshl_add_u32", t[10], grp, 12, t[10]))
    e(valu("v_lshl_add_u32", vW2R[0][0], grp, 5, t[10]))
    e(valu("v_xor_b32", t[11], 1, grp))
    e(valu("v_lshl_add_u32", vW2R[1][0], t[11], 5, t[10]))
    e(valu("v_add_u32", vW2R[0][1], 2 * XW, vW2R[0][0]))
    e(valu("v_add_u32", vW2R[1][1], 2 * XW, vW2R[1][0]))
    e(valu("v_lshl_add_u32", t[10], hf, 2, r4))
    e(valu("v_lshlrev_b32", t[10], 7, t[10]))
    e(valu("v_lshl_add_u32", t[11], grp, 2, c4))
    e(valu("v_and_b32", t[5], 1, t[11]))
    e(valu("v_lshrrev_b32", t[11], 1, t[11]))
    e(valu("v_lshl_add_u32", t[11], t[5], 2, t[11]))
    e(valu("v_lshl_add_u32", t[10], t[11], 3, t[10]))
    e(valu("v_add_u32", vPKR, sPKD, t[10]))
    e(salu("s_lshl_b32", sT0, sRB, 2))
    e(salu("s_add_u32", sT0, sT0, sW))
    e(salu("s_mul_i32", sT0, sT0, 144))
    e(salu("s_mul_i32", sT1, sCQ, 36))
    e(salu("s_add_u32", sT0, sT0, sT1))
    if head:
        e(salu("s_lshl_b32", sT1, sJ, 1))
        e(salu("s_add_u32", sT0, sT0, sT1))
        e(salu("s_sub_u32", sT0, sT0, 8))
    else:
        e(salu("s_mul_i32", sT1, sJ, 5))
        e(salu("s_add_u32", sT0, sT0, sT1))
        e(salu("s_add_u32", sT0, sT0, 8))
    e(salu("s_lshl_b32", sT0, sT0, 11))
    e(valu("v_add_u32", vST, sT0, vL16))
    if head:
        e(valu("v_mov_b32", vZERO, NEGBIG))
        e(salu("s_mov_b32", sC, CSC))
        e(salu("s_mov_b32", S(sGMASK[1]), 1 << 28))
        e(salu("s_mov_b32", S(sGMASK[1] + 1), 1 << 28))
        e(salu("s_mov_b32", S(sLOMASK[1]), -1))
        e(salu("s_mov_b32", S(sLOMASK[1] + 1), 0))
        e(salu("s_or_b32", sT0, sRB, sW))
        e(scmp("s_cmp_eq_u32", sT0, 0))
        e(salu("s_cselect_b32", S(sFIRST[1]), 0, -1))
        e(salu("s_cselect_b32", S(sFIRST[1] + 1), 0, -1))
        e(salu("s_mul_i32", sT0, sW, 6144))
        e(salu("s_add_u32", sT0, sT0, HP_BASE))
        e(valu("v_add_u32", vHP, sT0, vL16))
        e(salu("s_lshl_b32", sT0, sW, 10))
        e(salu("s_add_u32", sT0, sT0, HP_BASE))
        e(valu("v_add_u32", vHPK, sT0, vL16))
        e(salu("s_lshr_b32", sT0, sW, 1))
        e(salu("s_lshl_b32", sT0, sT0, 10))
        e(salu("s_and_b32", sT1, sW, 1))
        e(salu("s_lshl_b32", sT1, sT1, 3))
        e(salu("s_add_u32", sT0, sT0, sT1))
        e(salu("s_add_u32", sT1, sT0, HP_BASE + 4096))
        e(valu("v_add_u32", vHPV, sT1, vL16))
        e(salu("s_add_u32", sT1, sT0, HS_BASE))
        e(valu("v_add_u32", vHSK, sT1, vL16))
        e(salu("s_lshl_b32", sT1, sW, 2))
        e(salu("s_add_u32", sT1, sT1, HS_BASE + 2048))
        e(valu("v_add_u32", vHSV, sT1, vL16))
        e(salu("s_mul_i32", sT1, sW, 3072))
        e(salu("s_add_u32", sT1, sT1, HS_BASE))
        e(valu("v_add_u32", vHSI, sT1, vL16))
    return items


def setup_pack(E):
    t = [V(TMP + 12 + i) for i in range(4)]
    r8, c8 = V(TMP + 0), V(TMP + 1)
    E.emit(salu("s_lshl_b32", sT0, sWG, 2))
    E.emit(salu("s_add_u32", sT0, sT0, sW))
    E.emit(salu("s_min_u32", sT0, sT0, 1007))
    E.emit(salu("s_lshl_b32", sT5, sT0, 11))
    E.emit(salu("s_add_u32", sT5, sT5, B2_OFF))
    E.emit(salu("s_mul_i32", sT1, sT0, 1821))
    E.emit(salu("s_lshr_b32", sT1, sT1, 16))
    E.emit(salu("s_mul_i32", sT2, sT1, 36))
    E.emit(salu("s_sub_u32", sT0, sT0, sT2))
    E.emit(salu("s_mul_i32", sT2, sT1, 9363))
    E.emit(salu("s_lshr_b32", sT2, sT2, 16))
    E.emit(salu("s_mul_i32", sT3, sT2, 7))
    E.emit(salu("s_sub_u32", sT1, sT1, sT3))
    E.emit(salu("s_mul_i32", sT3, sT2, 112))
    E.emit(salu("s_lshr_b32", sSO, sT0, 1))
    E.emit(salu("s_mul_i32", sSO, sSO, 28))
    E.emit(salu("s_add_u32", sT3, sT3, sSO))
    E.emit(salu("s_and_b32", sSO, sT0, 1))
    E.emit(salu("s_lshl_b32", sSO, sSO, 4))
    E.emit(salu("s_add_u32", sT3, sT3, sSO))
    E.emit(salu("s_mul_i32", sT2, sT2, 448))
    E.emit(salu("s_lshl_b32", sSO, sT0, 4))
    E.emit(salu("s_add_u32", sT2, sT2, sSO))
    E.emit(salu("s_sub_u32", sT2, sT2, 128))
    E.emit(scmp("s_cmp_lt_u32", sT0, 8))
    b = SRD_W2[1]
    E.emit(salu("s_cselect_b32", S(b), S(P_WO), S(P_WD)))
    E.emit(salu("s_cselect_b32", S(b + 1), S(P_WO + 1), S(P_WD + 1)))
    E.emit(salu("s_mov_b32", S(b + 2), 1792 * 896))
    E.emit(salu("s_cselect_b32", S(b + 2), 448 * 896, S(b + 2)))
    E.emit(salu("s_mov_b32", S(b + 3), 0x20000))
    E.emit(salu("s_cselect_b32", sT2, sT3, sT2))
    E.emit(salu("s_mul_i32", sT2, sT2, 896))
    E.emit(salu("s_lshl_b32", sT1, sT1, 7))
    E.emit(salu("s_add_u32", sT2, sT2, sT1))
    E.emit(valu("v_mul_u32_u24", t[0], 896, r8))
    E.emit(valu("v_lshl_add_u32", t[0], c8, 4, t[0]))
    E.emit(valu("v_add_u32", vPKD, sT2, t[0]))
    E.emit(salu("s_lshl_b32", sPKD, sW, 11))
    E.emit(salu("s_add_u32", sPKD, sPKD, PK_BASE))


def dma_item(m0_base, m0_off, voff, srd, soff, tag):
    it = [salu("s_add_u32", "m0", m0_base, m0_off) if m0_base is not None else salu("s_mov_b32", "m0", m0_off)]
    if soff:
        it.append(salu("s_mov_b32", sSO, soff))
        it.append(dma(voff, srd, sSO, tag))
    else:
        it.append(dma(voff, srd, 0, tag))
    return it


def load_group(kb, typ):
    head = typ == "head"
    slot = kb % 3
    tag = f"L{kb}"
    its = []
    wsrd = SRD_QKV if head else SRD_GU
    wpitch = 2688 if head else 3584
    xs = [dma_item(sXB, slot * 8192 + i * 1024, vXo if i & 1 else vXe, SRD_X, (i >> 1) * 14336 + kb * 128, tag) for i in range(8)]
    ws = [dma_item(sWD, slot * WR_SLOT + q * 1024, vW[q], wsrd, kb * 64 * wpitch, tag) for q in range(3)]
    its = xs[:2] + ws[:1] + xs[2:4] + ws[1:2] + xs[4:6] + ws[2:] + xs[6:]
    if head:
        its.append(dma_item(sHXD, slot * 4096, vHX, SRD_X, kb * 128, tag))
    return its


def load_group2(kbs, tag):
    its = []
    for kb2 in kbs:
        for q in range(2):
            its.append(dma_item(sW2D, pieces(kb2) + q * 1024, vW2, SRD_GU, (kb2 * 64 + 16 * q) * 3584, tag))
    return its


def xfrag(s, t):
    return A((s * 2 + t) * 4, 4)


def wf1(buf, n):
    return A(224 + buf * 12 + n * 4, 4)


def wf2(buf, n):
    return A(224 + buf * 8 + n * 4, 4)


def acc1(n, t):
    return V((n * 2 + t) * 16, 16)


def acc2(n, t):
    return V(128 + (n * 2 + t) * 16, 16)


def reads1(s, typ):
    head = typ == "head"
    kb, e = divmod(s, 4)
    slot = kb % 3
    buf = s & 1
    its = []
    pitch = 192 if head else 96
    tw = 64 if head else 32

    def wr(n):
        f = wf1(buf, n)
        o = slot * WR_SLOT + e * 16 * pitch + n * tw
        r = [ds_read(64, A(f[1], 2), vWR, o, tr=True), ds_read(64, A(f[1] + 2, 2), vWR, o + 4 * pitch, tr=True)]
        if head and n == 0:
            r.append([I("s_mov_b64 exec, s[78:79]", regset(sGMASK), regset("exec"), "salu"),
                      ds_read(128, f, vGW, s * 32),
                      I("s_mov_b64 exec, -1", (), regset("exec"), "salu")])
        return r
    its.append(ds_read(128, xfrag(s, 0), vXR[e], slot * 8192))
    its += wr(0)
    its.append(ds_read(128, xfrag(s, 1), vXR[e], slot * 8192 + 4096))
    its += wr(1)
    its += wr(2)
    return its


def reads2(s):
    kb2, e = divmod(s, 4)
    buf = s & 1
    base = pieces(kb2)
    hi = base >= 2 * XW
    if hi:
        base -= 2 * XW
    its = []
    for n in range(2):
        f = wf2(buf, n)
        o = base + e * 1024
        its.append(ds_read(64, A(f[1], 2), vW2R[n][hi], o, tr=True))
        its.append(ds_read(64, A(f[1] + 2, 2), vW2R[n][hi], o + 256, tr=True))
    return its


def glu_epi(acc, koff, tag):
    b = acc[1]
    its = []
    for e in range(8):
        its.append(valu("v_mul_f32", V(b + e), -LOG2E, V(b + e)))
    for e in range(8):
        its.append(valu("v_exp_f32", V(b + e), V(b + e)))
    for e in range(8):
        its.append(valu("v_add_f32", V(b + e), 1.0, V(b + e)))
    for e in range(8):
        its.append(valu("v_rcp_f32", V(b + e), V(b + e)))
    for e in range(8):
        its.append(valu("v_mul_f32", V(b + e), V(b + e), V(b + 8 + e)))
    for e in range(4):
        its.append(valu("v_cvt_pk_bf16_f32", V(b + 8 + e), V(b + 2 * e), V(b + 2 * e + 1)))
    its.append(store_frag(V(b + 8, 4), koff, tag))
    return its


def store_frag(src, koff, tag):
    fl = " sc1" if Opt.fused else ""
    if koff < 4096:
        return buf_store(src, vST, SRD_WS, 0, koff, fl, tag)
    return [salu("s_mov_b32", sSO2, koff & ~4095), buf_store(src, vST, SRD_WS, sSO2, koff & 4095, fl, tag)]


def lane_mask(fn):
    m = 0
    for l in range(64):
        if fn(l):
            m |= 1 << l
    return m


def pack_inplace(dst, src, n):
    return [valu("v_cvt_pk_bf16_f32", V(dst + i), V(src + 2 * i), V(src + 2 * i + 1)) for i in range(n)]


def head_epi(E):
    its = []
    a = its.append
    Q0, Q1, K0, K1, V0, V1 = 0, 16, 32, 48, 64, 80
    HK, HV = 96, 112
    M = 96
    tg = [V(192), V(193)]
    mx, mx2, sm, sm2, nb, rinv, rz = [V(120 + i) for i in range(7)]
    a(valu("v_mov_b32", tg[0], V(Q0 + 12)))
    a(valu("v_mov_b32", tg[1], V(Q1 + 12)))
    for q in range(4):
        a(ds_write(128, vHP, V(HK + 4 * q, 4), q * 1024, tag="hp"))
    for q in range(2):
        a(ds_write(128, vHP, V(HV + 8 + 4 * q, 4), (4 + q) * 1024, tag="hp"))
    its += pack_inplace(K0, K0, 8) + pack_inplace(K0 + 8, K1, 8)
    its += pack_inplace(V0, V0, 8) + pack_inplace(V0 + 8, V1, 8)
    a(ds_write(128, vHSI, V(K0 + 8, 4), 3072, tag="hp"))
    a(ds_write(128, vHSI, V(K0 + 12, 4), 3072 + 1024, tag="hp"))
    a(ds_write(128, vHSI, V(V0 + 12, 4), 3072 + 2048, tag="hp"))
    its += pack_inplace(Q0, Q0, 8) + pack_inplace(Q0 + 8, Q1, 8)
    for t in range(2):
        for r in (6, 7):
            a(valu("v_cndmask_b32", V(Q0 + 8 * t + r), 0, V(Q0 + 8 * t + r), sLOMASK))
    a(barrier(need=("hp",)))
    T = TMP
    for p in range(4):
        a(ds_read(128, V(T + 4 * p, 4), vHPK, p * 6144))
        a(ds_read(64, V(T + 16 + 2 * p, 2), vHPV, p * 6144))
    for r in range(24):
        if r < 16:
            fn = lambda l, r=r: ((l & 31) - ((r & 3) + 8 * (r >> 2) + 4 * (l >> 5))) in (0, 2, 4, 6, 8, 10, 12, 14)
        else:
            rr = r - 8
            fn = lambda l, r=rr: ((l & 31) - ((r & 3) + 8 * (r >> 2) + 4 * (l >> 5)) + 32) in (0, 2, 4, 6, 8, 10, 12, 14)
        m = lane_mask(fn) ^ ((1 << 64) - 1)
        a([I(f"s_mov_b32 vcc_lo, 0x{m & 0xffffffff:x}", (), regset("vcc"), "salu"),
           I(f"s_mov_b32 vcc_hi, 0x{m >> 32:x}", (), regset("vcc"), "salu"),
           valu("v_cndmask_b32", V(M + r), 0, vZERO, "vcc")])
    for i in range(4):
        a(valu("v_add_f32", V(T + i), V(T + i), V(T + 4 + i)))
        a(valu("v_add_f32", V(T + 8 + i), V(T + 8 + i), V(T + 12 + i)))
    for i in range(2):
        a(valu("v_add_f32", V(T + 16 + i), V(T + 16 + i), V(T + 18 + i)))
        a(valu("v_add_f32", V(T + 20 + i), V(T + 20 + i), V(T + 22 + i)))
    for i in range(4):
        a(valu("v_add_f32", V(T + i), V(T + i), V(T + 8 + i)))
    for i in range(2):
        a(valu("v_add_f32", V(T + 16 + i), V(T + 16 + i), V(T + 20 + i)))
    a(valu("v_cvt_pk_bf16_f32", V(T + 0), V(T + 0), V(T + 1)))
    a(valu("v_cvt_pk_bf16_f32", V(T + 1), V(T + 2), V(T + 3)))
    a(valu("v_cvt_pk_bf16_f32", V(T + 16), V(T + 16), V(T + 17)))
    a(ds_write(64, vHSK, V(T, 2), 0, tag="hs"))
    a(ds_write(32, vHSV, V(T + 16), 0, tag="hs"))

    Sd, Sp, O = V1, Q1, K1

    def attention(t, kprev, vprev):
        kp = [V(K0 + 8 * t, 4), V(K0 + 8 * t + 4, 4)]
        qp = [V(Q0 + 8 * t, 4), V(Q0 + 8 * t + 4, 4)]
        vt = [V(V0 + 8 * t, 4), V(V0 + 8 * t + 4, 4)]
        a(mfma(V(Sd, 16), kp[0], qp[0], V(M, 16)))
        a(mfma(V(Sp, 16), kprev[0], qp[0], V(M + 8, 16)))
        a(mfma(V(Sd, 16), kp[1], qp[1], V(Sd, 16)))
        a(mfma(V(Sp, 16), kprev[1], qp[1], V(Sp, 16)))
        vals = [V(Sd + r) for r in range(16)] + [V(Sp + r) for r in range(8, 16)]
        a(valu("v_max3_f32", mx, vals[0], vals[1], vals[2]))
        a(valu("v_max3_f32", mx2, vals[3], vals[4], vals[5]))
        rest = vals[6:]
        k = 0
        while rest:
            tgt = mx if k % 2 == 0 else mx2
            a(valu("v_max3_f32", tgt, tgt, rest[0], rest[1]))
            rest = rest[2:]
            k += 1
        a(valu("v_max_f32", mx, mx, mx2))
        a(valu("v_mov_b32", mx2, mx))
        a(permswap(mx, mx2))
        a(valu("v_max_f32", mx, mx, mx2))
        a(valu("v_mul_f32", nb, -CSC, mx))
        for v_ in vals:
            a(valu("v_fma_f32", v_, v_, sC, nb))
        for v_ in vals:
            a(valu("v_exp_f32", v_, v_))
        a(valu("v_add_f32", sm, vals[0], vals[1]))
        a(valu("v_add_f32", sm2, vals[2], vals[3]))
        for k, v_ in enumerate(vals[4:]):
            tgt = sm if k % 2 == 0 else sm2
            a(valu("v_add_f32", tgt, tgt, v_))
        its.extend(pack_inplace(Sd, Sd, 8))
        its.extend(pack_inplace(Sp + 8, Sp + 8, 4))
        a(mfma(V(O, 16), vt[0], V(Sd, 4), 0))
        a(mfma(V(O, 16), vt[1], V(Sd + 4, 4), V(O, 16)))
        a(mfma(V(O, 16), vprev, V(Sp + 8, 4), V(O, 16)))
        a(valu("v_add_f32", sm, sm, sm2))
        a(valu("v_mov_b32", sm2, sm))
        a(permswap(sm, sm2))
        a(valu("v_add_f32", sm, sm, sm2))
        a(valu("v_rcp_f32", rinv, sm))
        a(valu("v_cndmask_b32", rz, 0, rinv, sLOMASK))
        g = tg[t]
        a(valu("v_mul_f32", g, -LOG2E, g))
        a(valu("v_exp_f32", g, g))
        a(valu("v_add_f32", g, 1.0, g))
        a(valu("v_rcp_f32", g, g))
        for r in range(16):
            a(valu("v_mul_f32", V(O + r), V(O + r), rz if r >= 12 else rinv))
        its.extend(pack_inplace(O, O, 8))
        a(store_frag(V(O, 4), t * 1024, "e1"))
        a(store_frag(V(O + 4, 4), 2048 + t * 1024, "e1"))
        a(buf_store(g, vHP, SRD_WS, 0, t * 256, " sc1" if Opt.fused else "", "e1"))

    a([salu("s_lshl_b32", sT0, sRB, 2), salu("s_add_u32", sT0, sT0, sW), salu("s_lshl_b32", sT0, sT0, 2),
       salu("s_add_u32", sT0, sT0, sCQ)])
    a([salu("s_lshl_b32", sT0, sT0, 2), salu("s_add_u32", sT0, sT0, sJ), salu("s_lshl_b32", sT0, sT0, 9),
       salu("s_add_u32", sT0, sT0, G_OFF - 4 * 512)])
    a(valu("v_lshlrev_b32", vHP, 2, vLANE))
    a(valu("v_add_u32", vHP, sT0, vHP))
    attention(1, [V(K0, 4), V(K0 + 4, 4)], V(V0 + 4, 4))
    a(barrier(need=("hs",)))
    a(ds_read(128, A(240, 4), vHSI, 0))
    a(ds_read(128, A(244, 4), vHSI, 1024))
    a(ds_read(128, A(248, 4), vHSI, 2048))
    a(I("s_mov_b64 vcc, s[82:83]", regset(sFIRST), regset("vcc"), "salu"))
    for r in range(16, 24):
        a(valu("v_cndmask_b32", V(M + r), vZERO, V(M + r), "vcc"))
    attention(0, [A(240, 4), A(244, 4)], A(248, 4))
    return its


def gen_p1(E, typ):
    head = typ == "head"
    setup_p1_rest(E, typ)
    if head:
        r8, ch = V(TMP + 0), V(TMP + 2)
        E.emit(salu("s_lshl_b32", sT0, sRB, 8))
        E.emit(salu("s_lshl_b32", sT1, sW, 3))
        E.emit(salu("s_add_u32", sT0, sT0, sT1))
        E.emit(salu("s_sub_u32", sT0, sT0, 32))
        E.emit(valu("v_add_u32", V(TMP + 5), sT0, r8))
        E.emit(salu("s_movk_i32", sT2, 896))
        E.emit(valu("v_mul_lo_u32", V(TMP + 5), V(TMP + 5), sT2))
        E.emit(salu("s_and_b32", sT1, sW, 1))
        E.emit(salu("s_lshl_b32", sT1, sT1, 2))
        E.emit(valu("v_xor_b32", V(TMP + 6), sT1, ch))
        E.emit(valu("v_lshl_add_u32", vHX, V(TMP + 6), 4, V(TMP + 5)))
        E.emit(salu("s_lshl_b32", sHXD, sW, 10))
        E.emit(salu("s_add_u32", sHXD, sHXD, HX_BASE))
    for it in load_group(0, typ):
        E.emit(it)
    if head:
        make_srd(E, SRD_GW, P_GW, 896)
        E.emit(dma_item(None, GW_BASE, vL16, SRD_GW, 0, "L0"))
    for it in load_group(1, typ):
        E.emit(it)
    setup_pack(E)
    E.emit(dma_item(sPKD, 0, vPKD, SRD_W2, 0, "pk"))
    E.emit(dma_item(sPKD, 1024, vPKD, SRD_W2, 8 * 896, "pk"))
    for it in load_group(2, typ):
        E.emit(it)
    for it in setup_p1_late(E, typ):
        E.emit(it)
    stamp(E, 1)
    E.wait_tags("L0")
    E.emit(barrier())
    stamp(E, 2)
    for it in reads1(0, typ):
        E.emit(it)

    fill = deque()
    pend = deque()
    HWK, HWV, HXF = V(192, 4), V(196, 4), A(248, 4)
    for s in range(28):
        kb, e = divmod(s, 4)
        slot = kb % 3
        buf = s & 1
        ms = []
        for n in range(3):
            for t in range(2):
                c = 0 if s == 0 else acc1(n, t)
                if head and n == 2:
                    ms.append(mfma(acc1(n, t), xfrag(s, t), wf1(buf, n), c))
                else:
                    ms.append(mfma(acc1(n, t), wf1(buf, n), xfrag(s, t), c))
        must = []
        pre = None
        hold = 0
        if head and e == 2:
            ms.append(mfma(V(96, 16), HWK, HXF, 0 if kb == 0 else V(96, 16)))
            ms.append(mfma(V(112, 16), HXF, HWV, 0 if kb == 0 else V(112, 16)))
        nxt = reads1(s + 1, typ) if s < 27 else reads2(0)
        if e == 3:
            tagn = f"L{kb + 1}" if kb < 6 else "W2a"
            hold = 2

            def pre_fn(tagn=tagn):
                E._wait(None, 0)
                E.wait_tags(tagn)
                E.emit(barrier())
            pre = [pre_fn]
            if kb + 3 <= 6:
                pend.extend(load_group(kb + 3, typ))
            elif kb == 4:
                pend.extend(load_group2([0, 1, 2, 3], "W2a"))
            elif kb == 5:
                pend.extend(load_group2([4, 5, 6], "W2b"))
        must += nxt
        if head and e == 0:
            must.append(ds_read(128, HXF, vHXR, slot * 4096))
            for n, f in ((1, HWK), (2, HWV)):
                o = slot * WR_SLOT + n * 64
                must.append(ds_read(64, V(f[1], 2), vWH, o, tr=True))
                must.append(ds_read(64, V(f[1] + 2, 2), vWH, o + 768, tr=True))
        if s == 5:
            T = TMP + 8
            for c in range(2):
                for a_ in range(2):
                    must.append(ds_read(64, V(T + 4 * c + 2 * a_, 2), vPKR, c * 64 + a_ * 1024, tr=True, need=("pk",)))
        if s == 6:
            T = TMP + 8
            fl = " sc1" if Opt.fused else ""
            must.append(buf_store(V(T, 4), vL16, SRD_WS, sT5, 0, fl, "pks"))
            must.append(buf_store(V(T + 4, 4), vL16, SRD_WS, sT5, 1024, fl, "pks"))
        ndma = 4 if e == 3 else 4
        k = 0
        while pend and k < ndma:
            must.append(pend.popleft())
            k += 1
        weave(E, ms, must, fill, hold=hold, pre=pre)
    assert not pend
    stamp(E, 3)
    if head:
        fill.extend(head_epi(E))
    else:
        for n in range(3):
            for t in range(2):
                fill.extend(glu_epi(acc1(n, t), (n * 2 + t) * 1024, "e1"))
    for s in range(28):
        buf = s & 1
        ms = []
        for n in range(2):
            for t in range(2):
                c = 0 if s == 0 else acc2(n, t)
                ms.append(mfma(acc2(n, t), wf2(buf, n), xfrag(s, t), c))
        must = reads2(s + 1) if s < 27 else []
        hold, pre = 0, None
        if s == 15:
            hold = 1

            def pre_fn():
                E.wait_tags("W2b")
                E.emit(barrier())
            pre = [pre_fn]
        weave(E, ms, must, fill, hold=hold, pre=pre)
    stamp(E, 4)
    nleft = len(fill)
    while fill:
        it = fill.popleft()
        it() if callable(it) else E.emit(it)
    base = 28 * 2048 if head else 6 * 1024
    epi = []
    for n in range(2):
        for t in range(2):
            epi.append(glu_epi(acc2(n, t), base + (n * 2 + t) * 1024, "e2"))
    for k in range(len(epi[0])):
        for ep in epi:
            E.emit(ep[k])
    stamp(E, 5)


def diag_store(E, nst):
    if not Opt.diag:
        return
    E.emit(I("s_waitcnt lgkmcnt(0)", kind="wait"))
    E.lg = []
    E.emit(salu("s_lshl_b32", sT0, sWG, 2))
    E.emit(salu("s_add_u32", sT0, sT0, sW))
    E.emit(salu("s_lshl_b32", sT0, sT0, 6))
    E.emit(salu("s_add_u32", sT0, sT0, DIAG_OFF + Opt.diag_base))
    E.emit(valu("v_mov_b32", V(1), sT0))
    for i in range(nst):
        E.emit(valu("v_mov_b32", V(2), S(sDIAG + 2 * i)))
        E.emit(buf_store(V(2), V(1), SRD_WS, 0, 4 * i))
        E.nop(2)


def gen_p2(E, standalone):
    E.comment("================ P2")
    ACCH, ACCO = 0, 64
    vA, vB, vG0, vG1, vRW, vRR, vO = V(130), V(131), V(132), V(133), V(134), V(135), V(136)
    t = [V(140 + i) for i in range(8)]
    fl = " sc1" if Opt.fused else ""
    E.emit(salu("s_lshl_b32", sT0, sRB, 2))
    E.emit(salu("s_add_u32", sT0, sT0, sCQ))
    E.emit(salu("s_mul_i32", sT1, sT0, 144))
    E.emit(salu("s_mul_i32", sT2, sW, 36))
    E.emit(salu("s_add_u32", sT1, sT1, sT2))
    E.emit(salu("s_lshl_b32", sT1, sT1, 11))
    E.emit(valu("v_add_u32", vA, sT1, vL16))
    E.emit(salu("s_mul_i32", sT1, sW, 7))
    E.emit(salu("s_add_u32", sT1, sT1, sJ))
    E.emit(salu("s_mul_i32", sT1, sT1, 36 * 2048))
    E.emit(salu("s_add_u32", sT1, sT1, B2_OFF))
    E.emit(valu("v_add_u32", vB, sT1, vL16))
    order = list(range(36))
    R = 15

    def loads(i):
        ks = order[i]
        r = (i % R) * 16
        so = (ks * 2048) & ~4095
        io = (ks * 2048) & 4095
        its = []
        if so:
            its.append(salu("s_mov_b32", sSO, so))
        sof = sSO if so else 0
        its.append(buf_load(A(r, 4), vA, SRD_WS, sof, io, fl))
        its.append(buf_load(A(r + 8, 4), vB, SRD_WS, sof, io, fl))
        its.append(buf_load(A(r + 4, 4), vA, SRD_WS, sof, io + 1024, fl))
        its.append(buf_load(A(r + 12, 4), vB, SRD_WS, sof, io + 1024, fl))
        return its
    for i in range(R):
        E.emit(loads(i))
    E.emit(salu("s_lshl_b32", sT1, sT0, 2))
    E.emit(salu("s_add_u32", sT1, sT1, sW))
    E.emit(salu("s_lshl_b32", sT1, sT1, 11))
    E.emit(salu("s_add_u32", sT1, sT1, G_OFF + 128))
    E.emit(valu("v_and_b32", t[0], 31, vLANE))
    E.emit(valu("v_lshlrev_b32", t[1], 2, t[0]))
    E.emit(valu("v_add_u32", t[1], sT1, t[1]))
    E.emit(buf_load(vG0, t[1], SRD_WS, 0, 0, fl))
    E.emit(buf_load(vG1, t[1], SRD_WS, 0, 256, fl))
    make_srd(E, SRD_OUT, P_OUT, 2048 * 896)
    E.emit(salu("s_lshl_b32", sT1, sW, 12))
    E.emit(valu("v_add_u32", vRW, sT1, vL16))
    E.emit(salu("s_lshl_b32", sT1, sW, 14))
    E.emit(valu("v_add_u32", vRR, sT1, vL16))
    E.emit(salu("s_lshl_b32", sT1, sT0, 6))
    E.emit(salu("s_lshr_b32", sT2, sW, 1))
    E.emit(salu("s_lshl_b32", sT2, sT2, 5))
    E.emit(salu("s_add_u32", sT1, sT1, sT2))
    E.emit(valu("v_add_u32", t[0], sT1, t[0]))
    E.emit(valu("v_mul_u32_u24", t[0], 896, t[0]))
    E.emit(valu("v_lshrrev_b32", t[2], 5, vLANE))
    E.emit(valu("v_lshl_add_u32", t[0], t[2], 5, t[0]))
    E.emit(salu("s_lshl_b32", sT1, sJ, 7))
    E.emit(salu("s_and_b32", sT2, sW, 1))
    E.emit(salu("s_lshl_b32", sT2, sT2, 6))
    E.emit(salu("s_add_u32", sT1, sT1, sT2))
    E.emit(valu("v_add_u32", vO, sT1, t[0]))
    stamp(E, 1 if standalone else 6)
    seen = set()
    for i in range(36):
        ks = order[i]
        r = (i % R) * 16
        base = ACCO if ks < 8 else ACCH
        for tt in range(2):
            for c in range(2):
                d = V(base + (tt * 2 + c) * 16, 16)
                first = (base, tt, c) not in seen
                seen.add((base, tt, c))
                E.emit(mfma(d, A(r + 8 + 4 * c, 4), A(r + 4 * tt, 4), 0 if first else d))
        if i + R < 36:
            E.emit(loads(i + R))
    stamp(E, 2 if standalone else 7)
    E.emit(valu("v_sub_f32", t[0], 1.0, vG0))
    E.emit(valu("v_sub_f32", t[1], 1.0, vG1))
    for tt in range(2):
        for r in range(32):
            E.emit(valu("v_mul_f32", V(ACCH + tt * 32 + r), V(ACCH + tt * 32 + r), t[tt]))
    for tt in range(2):
        for r in range(32):
            E.emit(valu("v_fmac_f32", V(ACCH + tt * 32 + r), V(ACCO + tt * 32 + r), vG0 if tt == 0 else vG1))
    if not standalone:
        E.emit(barrier())
    for q in range(4):
        for k in range(4):
            E.emit(ds_write(128, vRW, V(ACCH + q * 16 + 4 * k, 4), q * 16384 + k * 1024, tag="red"))
    E.emit(barrier(need=("red",)))
    for src in range(4):
        for k in range(4):
            E.emit(ds_read(128, V(ACCO + src * 16 + 4 * k, 4), vRR, src * 4096 + k * 1024))
    for r in range(16):
        E.emit(valu("v_add_f32", V(ACCO + r), V(ACCO + r), V(ACCO + 16 + r)))
    for r in range(16):
        E.emit(valu("v_add_f32", V(ACCO + 32 + r), V(ACCO + 32 + r), V(ACCO + 48 + r)))
    for r in range(16):
        E.emit(valu("v_add_f32", V(ACCO + r), V(ACCO + r), V(ACCO + 32 + r)))
    for it in pack_inplace(ACCO, ACCO, 8):
        E.emit(it)
    E.emit(buf_store(V(ACCO, 4), vO, SRD_OUT, 0, 0))
    E.emit(buf_store(V(ACCO + 4, 4), vO, SRD_OUT, 0, 16))
    stamp(E, 3 if standalone else 7)


KD = """.section .rodata,"a"
.p2align 6
.amdhsa_kernel {name}
  .amdhsa_next_free_vgpr 512
  .amdhsa_next_free_sgpr 102
  .amdhsa_accum_offset 256
  .amdhsa_group_segment_fixed_size 0
  .amdhsa_kernarg_size 88
  .amdhsa_user_sgpr_count 2
  .amdhsa_user_sgpr_kernarg_segment_ptr 1
  .amdhsa_system_sgpr_workgroup_id_x 1
.end_amdhsa_kernel
"""


def header(launches):
    h = open(f"cdna_kernels/{NAME}.s.ref").read().split("\n")
    out = []
    for l in h:
        if l.startswith("; @launch") or l.startswith("; Override") or l.startswith("; grid=ceil"):
            continue
        if not l.startswith(";"):
            break
        out.append(l)
    out += launches
    out.append('.amdgcn_target "amdgcn-amd-amdhsa--gfx950"')
    out.append(".text")
    return "\n".join(out) + "\n"


def kernel_open(name):
    return f".globl {name}\n.p2align 8\n.type {name},@function\n{name}:\n"


def gen_two():
    txt = header([f"; @launch kernel=p1_kernel grid=(256,1,1) block=(256,1,1) lds={LDS_BYTES}",
                  "; @launch kernel=p2_kernel grid=(256,1,1) block=(256,1,1) lds=65536"])
    E = Emitter()
    common_prologue(E, "L_p1_end", "p1", Opt.code_kb1)
    setup_p1_common(E)
    E.emit(scmp("s_cmp_ge_u32", sJ, 4))
    E.emit(branch("s_cbranch_scc1", "L_p1_head"))
    st = (list(E.vm), list(E.lg), list(E.hist))
    gen_p1(E, "glu")
    Opt.diag_base = 0
    diag_store(E, 6)
    E.emit(I("s_endpgm", kind="branch"))
    E.label("L_p1_head")
    E.vm, E.lg, E.hist = list(st[0]), list(st[1]), list(st[2])
    gen_p1(E, "head")
    diag_store(E, 6)
    E.label("L_p1_end")
    E.emit(I("s_endpgm", kind="branch"))
    E.label("L_p1_codeend")
    txt += kernel_open("p1_kernel") + E.text()
    n1 = E.nops
    E = Emitter()
    common_prologue(E, "L_p2_end", "p2", 6)
    E.emit(scmp("s_cmp_eq_u32", sJ, 7))
    E.emit(branch("s_cbranch_scc1", "L_p2_end"))
    make_srd(E, SRD_WS, P_WS, WS_BYTES)
    gen_p2(E, True)
    Opt.diag_base = 0x10000
    diag_store(E, 4)
    E.label("L_p2_end")
    E.emit(I("s_endpgm", kind="branch"))
    E.label("L_p2_codeend")
    txt += kernel_open("p2_kernel") + E.text()
    txt += ".fill 64, 4, 0xBF800000\n"
    txt += KD.format(name="p1_kernel") + KD.format(name="p2_kernel").replace('.section .rodata,"a"\n', "")
    sys.stderr.write(f"nops: p1 {n1} p2 {E.nops}\n")
    return txt


if __name__ == "__main__":
    ap = argparse.ArgumentParser()
    ap.add_argument("--diag", action="store_true")
    ap.add_argument("--budget", type=int, default=5)
    ap.add_argument("-o", default=f"cdna_kernels/{NAME}.s")
    args = ap.parse_args()
    Opt.diag = args.diag
    Opt.budget = args.budget
    Opt.code_kb1 = 44
    for u in range(1008):
        assert (u * 1821) >> 16 == u // 36
    for b in range(28):
        assert (b * 9363) >> 16 == b // 7
    for p in range(768):
        assert (p * 43691) >> 19 == p // 12
    for p in range(384):
        assert (p * 43691) >> 18 == p // 6
    open(args.o, "w").write(gen_two())
```

```python
import sys, math, argparse
from collections import deque
from emit import *

NAME = "gated_mix__sliding_local_dilated__glu_gated_glu__prompt"

A2_OFF = 0x0
G_OFF = 0xC00000
FLAG_OFF = 0xD00000
GEN_OFF = FLAG_OFF + 0x4000
DIAG_OFF = 0xE00000
WS_BYTES = 0x1000000

XW = 24576
WR_BASE = 98304
WR_SLOT_H = 12544
WR_SLOT_G = 16384
HX_BASE = WR_BASE + 3 * WR_SLOT_H
GW_BASE = HX_BASE + 3 * 4096
TOP_BASE = 149504
HP_BASE = WR_BASE
HS_BASE = WR_BASE + 4 * 6144
assert HS_BASE + 5 * 3072 <= GW_BASE
LDS_BYTES = 163840

LOG2E = 1.4426950408889634
CSC = (28 ** -0.5) * LOG2E
NEGBIG = -1.0e30

sWG = S(2)
P_X, P_WQKV, P_WO, P_BX, P_WG, P_WU, P_WD, P_GW, P_OUT, P_DBG, P_WS = [4 + 2 * i for i in range(11)]
SRD_X, SRD_QKV, SRD_GU, SRD_WO, SRD_GW, SRD_OUT, SRD_WS, SRD_DBG = [S(28 + 4 * i, 4) for i in range(8)]
SRD_WD = SRD_DBG
sW, sRB, sCQ, sJ = S(60), S(61), S(62), S(63)
sT0, sT1, sT2, sT3, sT4, sT5 = [S(64 + i) for i in range(6)]
sXB = S(70)
sWD = S(71)
sW2D = S(72)
sHXD = S(73)
sHS = S(74)
sSO = S(75)
sSO2 = S(76)
sC = S(77)
sGMASK = S(78, 2)
sLOMASK = S(80, 2)
sFIRST = S(82, 2)
sPC = S(84, 2)
sP2O = S(27)
sTOPB = S(26)
sWRB = S(3)
sSPIN = S(84)
sJC = S(85)
sDIAG = 86
sKX = [S(4 + i) for i in range(7)]

vL16 = V(224)
vXe, vXo = V(225), V(226)
vW = [V(227), V(228), V(229)]
vW2 = V(230)
vHX = V(231)
vXR = [V(232 + i) for i in range(4)]
vWR = V(236)
vWH = V(237)
vHXR = V(238)
vW2R = [[V(239), V(240)], [V(241), V(242)]]
vGW = V(243)
vWR4 = [V(236), V(237), V(238), V(243)]
vFL = V(244)
vBo, vBd = V(245), V(223)
vST = V(246)
vLANE = V(247)
vNEG = V(248)
vHP, vHPK, vHPV, vHSK, vHSV, vHSI = [V(249 + i) for i in range(6)]
vGWs = V(255)
vGA = V(222)
vTAG = V(220, 2)
TMP = 200


def pieces(i):
    if i < 4:
        return i * XW + 8192
    return (i - 4) * XW + 16384


class Opt:
    pass


def stamp(E, idx, sset=0):
    if Opt.diag and (sset == Opt.sset or sset < 0):
        E.emit(I(f"s_memtime s[{sDIAG + 2 * idx}:{sDIAG + 2 * idx + 1}]", (), (), "smem"))


def item_cost(it):
    if callable(it):
        return 0
    if isinstance(it, I):
        return it.cost
    return sum(x.cost for x in it)


def put(E, it):
    if callable(it):
        it()
    else:
        E.emit(it)


def weave(E, mfmas, must, fill, budget=None, hold=0, pre=None, dmas=(), must_per_gap=None):
    budget = budget or Opt.budget
    must = deque(must)
    dmas = list(dmas)
    n = len(mfmas)
    first = max(hold - 1, 0)
    slots = {}
    if dmas:
        ng = n - first
        for k, d in enumerate(dmas):
            g = first + min(ng - 1, int((k + 0.5) * ng / len(dmas)))
            slots.setdefault(g, []).append(d)
    for g, m in enumerate(mfmas):
        E.emit(m)
        if g + 1 == hold and pre is not None:
            for it in pre:
                put(E, it)
        b = budget
        if g + 1 >= hold:
            gaps_left = n - g
            tot = sum(item_cost(x) for x in must)
            quota = max(must_per_gap or budget, math.ceil(tot / gaps_left))
            while must and quota > 0:
                it = must.popleft()
                put(E, it)
                quota -= item_cost(it)
                b -= item_cost(it)
            for it in slots.get(g, ()):
                put(E, it)
                b -= item_cost(it)
        while fill and b >= item_cost(fill[0]) and b > 0:
            it = fill.popleft()
            put(E, it)
            b -= item_cost(it)
    while must:
        put(E, must.popleft())


def srd_items(srd, ptr, nbytes):
    b = srd[1]
    return [salu("s_mov_b32", S(b), S(ptr)), salu("s_mov_b32", S(b + 1), S(ptr + 1)),
            salu("s_mov_b32", S(b + 2), nbytes), salu("s_mov_b32", S(b + 3), 0x20000)]


def set_exec(val):
    if isinstance(val, int):
        return I(f"s_mov_b64 exec, {val}", (), regset("exec"), "salu")
    return I(f"s_mov_b64 exec, {rs(val)}", regset(val), regset("exec"), "salu")


def common_prologue(E):
    E.emit(scmp("s_cmp_ge_u32", sWG, 256))
    E.emit(branch("s_cbranch_scc1", "L_end"))
    stamp(E, 0, -1)
    E.emit(I("s_load_dwordx16 s[4:19], s[0:1], 0x0", kind="smem"))
    E.emit(I("s_load_dwordx4 s[20:23], s[0:1], 0x40", kind="smem"))
    E.emit(I("s_load_dwordx2 s[24:25], s[0:1], 0x50", kind="smem"))
    E.emit(I("s_getpc_b64 s[84:85]", (), regset(sPC), "salu"))
    E.label("L_pc")
    E.emit(valu("v_and_b32", vLANE, 63, V(0)))
    E.emit(valu("v_lshrrev_b32", V(1), 6, V(0)))
    E.emit(salu("s_lshr_b32", sT0, sWG, 3))
    E.emit(readfirstlane(sW, V(1)))
    E.emit(salu("s_and_b32", sT1, sT0, 3))
    E.emit(valu("v_lshlrev_b32", V(2), 2, V(0)))
    E.emit(valu("v_add_u32", V(2), sT1, V(2)))
    E.emit(valu("v_lshlrev_b32", V(2), 7, V(2)))
    E.emit(valu("v_cmp_gt_u32", "vcc", "L_codeend-L_pc", V(2)))
    E.emit(I("s_and_saveexec_b64 s[66:67], vcc", regset("vcc"), regset(S(66, 2), "exec"), "salu"))
    E.emit(branch("s_cbranch_execz", "L_nopf"))
    E.emit(I("global_load_dword v3, v2, s[84:85]", regset(V(2), sPC), regset(V(3)), "vm_ld"))
    E.label("L_nopf")
    E.emit(set_exec(-1))
    E.vm = []
    E.emit(valu("v_lshlrev_b32", vL16, 4, vLANE))
    E.emit(salu("s_and_b32", sT1, sWG, 1))
    E.emit(salu("s_lshl_b32", sT1, sT1, 2))
    E.emit(salu("s_lshr_b32", sT2, sT0, 3))
    E.emit(salu("s_add_u32", sRB, sT1, sT2))
    E.emit(salu("s_and_b32", sT1, sWG, 7))
    E.emit(salu("s_lshr_b32", sCQ, sT1, 1))
    E.emit(salu("s_and_b32", sJ, sT0, 7))
    t = [V(TMP + i) for i in range(8)]
    r8, c8, ch = t[0], t[1], t[2]
    E.emit(valu("v_lshrrev_b32", r8, 3, vLANE))
    E.emit(valu("v_and_b32", c8, 7, vLANE))
    E.emit(valu("v_lshrrev_b32", ch, 1, r8))
    E.emit(valu("v_xor_b32", ch, ch, c8))
    E.emit(salu("s_lshl_b32", sT0, sRB, 8))
    E.emit(salu("s_lshl_b32", sT1, sW, 6))
    E.emit(salu("s_add_u32", sT0, sT0, sT1))
    E.emit(valu("v_add_u32", t[3], sT0, r8))
    E.emit(valu("v_mul_u32_u24", t[3], 896, t[3]))
    E.emit(valu("v_lshl_add_u32", vXe, ch, 4, t[3]))
    E.emit(valu("v_xor_b32", t[4], 4, ch))
    E.emit(valu("v_lshl_add_u32", vXo, t[4], 4, t[3]))
    E.emit(valu("v_add_u32", vXo, 8 * 896, vXo))
    E.emit(salu("s_mul_i32", sXB, sW, XW))
    if Opt.rot:
        E.emit(salu("s_and_b32", sT5, sRB, 3))
        E.emit(salu("s_lshl_b32", sT5, sT5, 1))
        E.emit(salu("s_add_u32", sT5, sT5, sJ))
        E.emit(scmp("s_cmp_ge_u32", sT5, 7))
        E.emit(salu("s_cselect_b32", sT1, 7, 0))
        E.emit(salu("s_sub_u32", sT5, sT5, sT1))
    else:
        E.emit(salu("s_mov_b32", sT5, 0))
    E.emit(salu("s_lshl_b32", sT0, sRB, 2))
    E.emit(salu("s_add_u32", sT0, sT0, sW))
    E.emit(salu("s_lshl_b32", sT0, sT0, 2))
    E.emit(salu("s_add_u32", sT0, sT0, sCQ))
    E.emit(salu("s_lshl_b32", sT0, sT0, 4))
    E.emit(salu("s_add_u32", sT0, sT0, sJ))
    E.emit(salu("s_lshl_b32", sT0, sT0, 3))
    E.emit(salu("s_add_u32", sT0, sT0, FLAG_OFF))
    E.emit(valu("v_and_b32", t[3], 1, vLANE))
    E.emit(valu("v_lshlrev_b32", t[3], 6, t[3]))
    E.emit(valu("v_add_u32", vFL, sT0, t[3]))
    E.emit(salu("s_lshl_b32", sT0, sRB, 7))
    E.emit(salu("s_add_u32", sT0, sT0, GEN_OFF))
    E.emit(valu("v_mov_b32", vGA, sT0))


def setup_early(E, typ):
    t = [V(TMP + i) for i in range(12)]
    r8, c8, ch = t[0], t[1], t[2]
    head = typ == "head"
    E.emit(salu("s_mul_i32", sT4, sCQ, 896))
    if head:
        E.emit(salu("s_mul_i32", sT0, sW, 192))
        E.emit(salu("s_lshl_b32", sT1, sCQ, 2))
        E.emit(salu("s_add_u32", sT1, sT1, sJ))
        E.emit(salu("s_sub_u32", sT1, sT1, 4))
        E.emit(salu("s_mul_i32", sT1, sT1, 64 if Opt.fakeh else 56))
        for q in range(3):
            p, row, cx = t[5], t[6], t[7]
            E.emit(valu("v_add_u32", p, sT0, vLANE))
            if q:
                E.emit(valu("v_add_u32", p, 64 * q, p))
            E.emit(valu("v_mul_u32_u24", row, 43691, p))
            E.emit(valu("v_lshrrev_b32", row, 19, row))
            E.emit(valu("v_mul_u32_u24", cx, 12, row))
            E.emit(valu("v_sub_u32", cx, p, cx))
            E.emit(valu("v_mul_u32_u24", row, 2688, row))
            E.emit(valu("v_lshrrev_b32", p, 2, cx))
            E.emit(valu("v_mul_u32_u24", p, 896, p))
            E.emit(valu("v_add_u32", row, row, p))
            E.emit(valu("v_and_b32", cx, 3, cx))
            E.emit(valu("v_lshl_add_u32", row, cx, 4, row))
            E.emit(valu("v_add_u32", vW[q], sT1, row))
        E.emit(salu("s_mul_i32", sWD, sW, 3072))
        E.emit(salu("s_add_u32", sWD, sWD, WR_BASE))
        E.emit(salu("s_lshl_b32", sT0, sRB, 8))
        E.emit(salu("s_lshl_b32", sT1, sW, 3))
        E.emit(salu("s_add_u32", sT0, sT0, sT1))
        E.emit(salu("s_sub_u32", sT0, sT0, 32))
        E.emit(valu("v_add_u32", t[5], sT0, r8))
        E.emit(salu("s_movk_i32", sT2, 896))
        E.emit(valu("v_mul_lo_u32", t[5], t[5], sT2))
        E.emit(salu("s_and_b32", sT1, sW, 1))
        E.emit(salu("s_lshl_b32", sT1, sT1, 2))
        E.emit(valu("v_xor_b32", t[6], sT1, ch))
        E.emit(valu("v_lshl_add_u32", vHX, t[6], 4, t[5]))
        E.emit(salu("s_lshl_b32", sHXD, sW, 10))
        E.emit(salu("s_add_u32", sHXD, sHXD, HX_BASE))
        E.emit(salu("s_lshl_b32", sT1, sJ, 5))
        E.emit(salu("s_add_u32", sT4, sT4, sT1))
        E.emit(salu("s_add_u32", sT4, sT4, 768 - 128))
    else:
        E.emit(salu("s_lshl_b32", sT1, sJ, 7))
        E.emit(salu("s_add_u32", sT1, sT4, sT1))
        E.emit(salu("s_and_b32", sT0, sW, 1))
        E.emit(salu("s_lshl_b32", sT0, sT0, 5))
        E.emit(valu("v_add_u32", t[5], sT0, r8))
        E.emit(valu("v_mul_u32_u24", t[5], 3584, t[5]))
        E.emit(valu("v_bfe_u32", t[6], vLANE, 4, 1))
        E.emit(valu("v_lshlrev_b32", t[6], 1, t[6]))
        E.emit(valu("v_xor_b32", t[6], t[6], c8))
        E.emit(salu("s_and_b32", sT0, sW, 2))
        E.emit(salu("s_lshl_b32", sT0, sT0, 1))
        E.emit(valu("v_xor_b32", t[6], sT0, t[6]))
        E.emit(valu("v_lshl_add_u32", t[5], t[6], 4, t[5]))
        E.emit(valu("v_add_u32", vW[0], sT1, t[5]))
        E.emit(salu("s_lshl_b32", sWD, sW, 12))
        E.emit(salu("s_add_u32", sWD, sWD, WR_BASE))
        E.emit(salu("s_lshl_b32", sT1, sJ, 6))
        E.emit(salu("s_add_u32", sT4, sT4, sT1))
        E.emit(salu("s_add_u32", sT4, sT4, 512))


def setup_late(typ):
    head = typ == "head"
    t = [V(TMP + i) for i in range(12)]
    r8, c8 = t[0], t[1]
    items = []
    e = items.append
    m, hf, sw, base = t[5], t[6], t[7], t[8]
    e(valu("v_and_b32", m, 31, vLANE))
    e(valu("v_lshrrev_b32", hf, 5, vLANE))
    e(valu("v_bfe_u32", sw, m, 1, 3))
    e(valu("v_lshlrev_b32", base, 7, m))
    e(valu("v_xor_b32", sw, sw, hf))
    for ee in range(4):
        e(valu("v_xor_b32", t[9], 2 * ee, sw))
        e(valu("v_lshl_add_u32", t[9], t[9], 4, base))
        e(valu("v_add_u32", vXR[ee], sXB, t[9]))
    if head:
        e(salu("s_lshl_b32", sT0, sW, 1))
        e(valu("v_xor_b32", t[9], sT0, sw))
        e(valu("v_lshl_add_u32", t[9], t[9], 4, base))
        e(valu("v_add_u32", vHXR, HX_BASE, t[9]))
    grp, r4, c4, krow = t[5], t[7], t[8], t[9]
    e(valu("v_bfe_u32", grp, vLANE, 4, 1))
    e(valu("v_bfe_u32", r4, vLANE, 2, 2))
    e(valu("v_and_b32", c4, 3, vLANE))
    e(valu("v_lshl_add_u32", krow, hf, 3, r4))
    if head:
        e(valu("v_mul_u32_u24", t[10], 192, krow))
        e(valu("v_lshl_add_u32", t[10], grp, 5, t[10]))
        e(valu("v_lshl_add_u32", t[10], c4, 3, t[10]))
        e(valu("v_add_u32", vWR, WR_BASE, t[10]))
        e(salu("s_mul_i32", sT0, sW, 3072))
        e(valu("v_add_u32", vWH, sT0, vWR))
        e(valu("v_lshlrev_b32", t[10], 4, hf))
        e(valu("v_add_u32", vGW, GW_BASE, t[10]))
        e(salu("s_mov_b32", S(sGMASK[1]), 1 << 28))
        e(salu("s_mov_b32", S(sGMASK[1] + 1), 1 << 28))
        e(valu("v_lshlrev_b32", t[10], 5, krow))
        e(valu("v_lshl_add_u32", t[10], c4, 3, t[10]))
        e(valu("v_lshl_add_u32", t[10], grp, 12, t[10]))
        e(valu("v_lshl_add_u32", vW2R[0][0], grp, 7, t[10]))
        e(valu("v_xor_b32", t[11], 1, grp))
        e(valu("v_lshl_add_u32", vW2R[1][0], t[11], 7, t[10]))
    else:
        e(valu("v_lshlrev_b32", t[10], 7, krow))
        e(valu("v_lshl_add_u32", t[10], grp, 13, t[10]))
        e(valu("v_lshl_add_u32", t[10], c4, 3, t[10]))
        e(valu("v_add_u32", t[10], WR_BASE, t[10]))
        e(valu("v_lshrrev_b32", t[11], 1, r4))
        e(valu("v_lshl_add_u32", t[11], grp, 1, t[11]))
        for n in range(4):
            e(valu("v_xor_b32", t[3], n, t[11]))
            e(valu("v_lshl_add_u32", vWR4[n], t[3], 5, t[10]))
        e(valu("v_lshlrev_b32", t[10], 6, krow))
        e(valu("v_lshl_add_u32", t[10], c4, 3, t[10]))
        e(valu("v_lshl_add_u32", t[10], grp, 12, t[10]))
        e(valu("v_lshl_add_u32", vW2R[0][0], grp, 5, t[10]))
        e(valu("v_xor_b32", t[11], 1, grp))
        e(valu("v_lshl_add_u32", vW2R[1][0], t[11], 5, t[10]))
    e(valu("v_add_u32", vW2R[0][1], 2 * XW, vW2R[0][0]))
    e(valu("v_add_u32", vW2R[1][1], 2 * XW, vW2R[1][0]))
    return items


def setup_fill(typ):
    head = typ == "head"
    t = [V(TMP + i) for i in range(12)]
    r8, c8 = t[0], t[1]
    items = []
    e = items.append
    e(salu("s_and_b32", sT0, sW, 1))
    e(salu("s_lshl_b32", sT0, sT0, 5))
    e(salu("s_and_b32", sT1, sW, 2))
    if not head:
        e(valu("v_lshrrev_b32", t[5], 2, vLANE))
        e(valu("v_add_u32", t[5], sT0, t[5]))
        e(valu("v_mul_u32_u24", t[5], 3584, t[5]))
        e(valu("v_and_b32", t[6], 3, vLANE))
        e(valu("v_xor_b32", t[6], sT1, t[6]))
        e(valu("v_lshl_add_u32", t[5], t[6], 4, t[5]))
        e(valu("v_add_u32", vW2, sT4, t[5]))
        e(salu("s_lshl_b32", sW2D, sW, 11))
        e(salu("s_lshl_b32", sP2O, sJ, 12))
        e(salu("s_sub_u32", sP2O, 24 * 2048, sP2O))
    else:
        e(salu("s_lshl_b32", sT2, sT1, 1))
        e(valu("v_lshrrev_b32", t[5], 1, vLANE))
        e(valu("v_xor_b32", t[5], sT2, t[5]))
        e(valu("v_add_u32", t[5], sT0, t[5]))
        e(valu("v_mul_u32_u24", t[5], 3584, t[5]))
        e(valu("v_and_b32", t[6], 1, vLANE))
        e(valu("v_lshl_add_u32", t[5], t[6], 4, t[5]))
        e(valu("v_add_u32", vW2, sT4, t[5]))
        e(salu("s_lshl_b32", sW2D, sT1, 11))
        e(salu("s_lshl_b32", sT0, sT0, 5))
        e(salu("s_add_u32", sW2D, sW2D, sT0))
        e(salu("s_lshl_b32", sP2O, sJ, 11))
        e(salu("s_sub_u32", sP2O, 20 * 2048, sP2O))
    e(salu("s_lshl_b32", sT0, sRB, 2))
    e(salu("s_add_u32", sT0, sT0, sW))
    e(salu("s_mul_i32", sT0, sT0, 144))
    e(salu("s_mul_i32", sT1, sCQ, 36))
    e(salu("s_add_u32", sT0, sT0, sT1))
    if head:
        e(salu("s_lshl_b32", sT1, sJ, 1))
        e(salu("s_add_u32", sT0, sT0, 8))
    else:
        e(salu("s_lshl_b32", sT1, sJ, 2))
    e(salu("s_add_u32", sT0, sT0, sT1))
    e(salu("s_lshl_b32", sT0, sT0, 11))
    e(valu("v_add_u32", vST, sT0, vL16))
    e([salu("s_mov_b32", sT0, 1664525), valu("v_mul_lo_u32", V(vTAG[1]), V(vTAG[1]), sT0)])
    e(valu("v_add_u32", V(vTAG[1]), 1013904223, V(vTAG[1])))
    e([salu("s_mov_b32", sT0, 22695477), valu("v_mul_lo_u32", V(vTAG[1] + 1), V(vTAG[1] + 1), sT0)])
    e(valu("v_add_u32", V(vTAG[1] + 1), 1, V(vTAG[1] + 1)))
    e([scmp("s_cmp_gt_u32", sJ, 3), salu("s_cselect_b32", sT0, 1, 0), salu("s_sub_u32", sJC, sJ, sT0)])
    e(valu("v_bfe_u32", t[5], vLANE, 4, 1))
    e(valu("v_lshlrev_b32", t[5], 2, t[5]))
    e(valu("v_xor_b32", t[5], t[5], c8))
    e(valu("v_mul_u32_u24", t[6], 896, r8))
    e(valu("v_lshl_add_u32", t[6], t[5], 4, t[6]))
    e(salu("s_lshl_b32", sT0, sJC, 7))
    e(salu("s_mul_i32", sT1, sW, 112 * 896))
    e(salu("s_add_u32", sT1, sT1, sT0))
    e(valu("v_add_u32", vBo, sT1, t[6]))
    e(salu("s_mul_i32", sT1, sW, 448 * 896))
    e(salu("s_add_u32", sT1, sT1, sT0))
    e(valu("v_add_u32", vBd, sT1, t[6]))
    e(salu("s_lshl_b32", sT0, sRB, 2))
    e(salu("s_add_u32", sT0, sT0, sCQ))
    e(salu("s_lshl_b32", sT0, sT0, 2))
    e(salu("s_add_u32", sT0, sT0, sW))
    e(salu("s_lshl_b32", sT0, sT0, 7))
    e(salu("s_add_u32", sT0, sT0, FLAG_OFF))
    e(valu("v_and_b32", t[5], 15, vLANE))
    e(valu("v_lshlrev_b32", t[5], 3, t[5]))
    e(valu("v_add_u32", vFP, sT0, t[5]))
    e(salu("s_lshl_b32", sT0, sRB, 2))
    e(salu("s_add_u32", sT0, sT0, sCQ))
    e(salu("s_mul_i32", sT0, sT0, 144))
    e(salu("s_mul_i32", sT1, sW, 36))
    e(salu("s_add_u32", sT0, sT0, sT1))
    e(salu("s_lshl_b32", sT0, sT0, 11))
    e(salu("s_mul_i32", sT1, sJC, 37))
    e(valu("v_min_u32", t[5], 36, vLANE))
    e(valu("v_add_u32", t[5], sT1, t[5]))
    e(valu("v_min_u32", t[5], 255, t[5]))
    e(valu("v_lshlrev_b32", t[5], 7, t[5]))
    e(valu("v_add_u32", vPAe, sT0, t[5]))
    e(salu("s_mul_i32", sTOPB, sW, 3584))
    e(salu("s_add_u32", sTOPB, sTOPB, TOP_BASE))
    e(salu("s_mul_i32", sWRB, sW, 12288))
    e(salu("s_add_u32", sWRB, sWRB, WR_BASE))
    items += srd_items(SRD_OUT, P_OUT, 2048 * 896)
    items += srd_items(SRD_WD, P_WD, 1792 * 896)
    e(salu("s_lshr_b32", sT0, sWG, 3))
    e(salu("s_and_b32", sT1, sWG, 7))
    e(salu("s_lshl_b32", sT1, sT1, 2))
    e(salu("s_add_u32", sT0, sT0, sT1))
    e(salu("s_and_b32", sT0, sT0, 31))
    e(salu("s_lshl_b32", sT0, sT0, 2))
    e(salu("s_add_u32", sT0, sT0, sW))
    e(valu("v_min_u32", t[6], 24, vLANE))
    e(valu("v_lshlrev_b32", t[6], 7, t[6]))
    e(salu("s_mul_i32", sT1, sT0, 98 * 128))
    e(valu("v_add_u32", vPW[0], sT1, t[6]))
    e(salu("s_mul_i32", sT1, sT0, 25 * 128))
    e(valu("v_add_u32", vPW[1], sT1, t[6]))
    if head:
        e(valu("v_mov_b32", vNEG, NEGBIG))
        e(salu("s_mov_b32", sC, CSC))
        e(salu("s_mov_b32", S(sLOMASK[1]), -1))
        e(salu("s_mov_b32", S(sLOMASK[1] + 1), 0))
        e(salu("s_or_b32", sT0, sRB, sW))
        e([scmp("s_cmp_eq_u32", sT0, 0), salu("s_cselect_b32", S(sFIRST[1]), 0, -1),
           salu("s_cselect_b32", S(sFIRST[1] + 1), 0, -1)])
        e(salu("s_mul_i32", sT0, sW, 6144))
        e(salu("s_add_u32", sT0, sT0, HP_BASE))
        e(valu("v_add_u32", vHP, sT0, vL16))
        e(salu("s_lshl_b32", sT0, sW, 10))
        e(salu("s_add_u32", sT0, sT0, HP_BASE))
        e(valu("v_add_u32", vHPK, sT0, vL16))
        e(salu("s_lshr_b32", sT0, sW, 1))
        e(salu("s_lshl_b32", sT0, sT0, 10))
        e(salu("s_and_b32", sT1, sW, 1))
        e(salu("s_lshl_b32", sT1, sT1, 3))
        e(salu("s_add_u32", sT0, sT0, sT1))
        e(salu("s_add_u32", sT1, sT0, HP_BASE + 4096))
        e(valu("v_add_u32", vHPV, sT1, vL16))
        e(salu("s_add_u32", sT1, sT0, HS_BASE))
        e(valu("v_add_u32", vHSK, sT1, vL16))
        e(salu("s_lshl_b32", sT1, sW, 2))
        e(salu("s_add_u32", sT1, sT1, HS_BASE + 2048))
        e(valu("v_add_u32", vHSV, sT1, vL16))
        e(salu("s_mul_i32", sT1, sW, 3072))
        e(salu("s_add_u32", sT1, sT1, HS_BASE))
        e(valu("v_add_u32", vHSI, sT1, vL16))
        for r in range(24):
            if r < 16:
                fn = lambda l, r=r: ((l & 31) - ((r & 3) + 8 * (r >> 2) + 4 * (l >> 5))) in range(0, 16, 2)
            else:
                fn = lambda l, r=r - 8: ((l & 31) - ((r & 3) + 8 * (r >> 2) + 4 * (l >> 5)) + 32) in range(0, 16, 2)
            mk = lane_mask(fn) ^ ((1 << 64) - 1)
            e([I(f"s_mov_b32 vcc_lo, 0x{mk & 0xffffffff:x}", (), regset("vcc"), "salu"),
               I(f"s_mov_b32 vcc_hi, 0x{mk >> 32:x}", (), regset("vcc"), "salu"),
               valu("v_cndmask_b32", V(MASKR + r), 0, vNEG, "vcc")])
    return items


MASKR = 160


def dma_item(m0_base, m0_off, voff, srd, soff, tag, fl=None):
    fl = Opt.ld1 if fl is None else fl
    it = [salu("s_add_u32", "m0", m0_base, m0_off) if m0_base is not None else salu("s_mov_b32", "m0", m0_off)]
    if isinstance(soff, tuple):
        sreg, mul, add = soff
        if mul != 1:
            it.append(salu("s_mul_i32", sSO, sreg, mul))
            if add:
                it.append(salu("s_add_u32", sSO, sSO, add))
            it.append(dma(voff, srd, sSO, tag, fl))
        elif add:
            it.append(salu("s_add_u32", sSO, sreg, add))
            it.append(dma(voff, srd, sSO, tag, fl))
        else:
            it.append(dma(voff, srd, sreg, tag, fl))
    elif soff:
        it.append(salu("s_mov_b32", sSO, soff))
        it.append(dma(voff, srd, sSO, tag, fl))
    else:
        it.append(dma(voff, srd, 0, tag, fl))
    return it


def load_group(kb, typ):
    head = typ == "head"
    slot = kb % 3
    tag = f"L{kb}"
    xs = [dma_item(sXB, slot * 8192 + i * 1024, vXo if i & 1 else vXe, SRD_X, (sKX[kb], 1, (i >> 1) * 14336), tag) for i in range(8)]
    if head:
        ws = [dma_item(sWD, slot * WR_SLOT_H + q * 1024, vW[q], SRD_QKV, (sKX[kb], 1344, 0), tag) for q in range(3)]
        ws.append(dma_item(sHXD, slot * 4096, vHX, SRD_X, (sKX[kb], 1, 0), tag))
    else:
        ws = [dma_item(sWD, slot * WR_SLOT_G + q * 1024, vW[0], SRD_GU, (sKX[kb], 1792, q * 8 * 3584), tag) for q in range(4)]
    its = []
    for q in range(4):
        its += [ws[q]] + xs[2 * q:2 * q + 2]
    return its


def load_group2(kbs, tag, typ):
    its = []
    for kb2 in kbs:
        if typ != "head":
            for q in range(2):
                its.append(dma_item(sW2D, pieces(kb2) + q * 1024, vW2, SRD_GU, (sKX[kb2], 1792, 16 * q * 3584), tag))
        else:
            its.append(dma_item(sW2D, pieces(kb2 >> 1) + (kb2 & 1) * 2048, vW2, SRD_GU, (sKX[kb2], 1792, 0), tag))
    return its


def xfrag(s, t):
    return A((s * 2 + t) * 4, 4)


def wf1(buf, n):
    return A(224 + buf * (12 if Opt.n1 == 3 else 16) + n * 4, 4)


def wf2(buf, n):
    return A(224 + buf * 8 + n * 4, 4) if Opt.n1 == 4 else A(224 + buf * 4, 4)


def acc1(n, t):
    return V((n * 2 + t) * 16, 16)


def acc2(n, t):
    return V(128 + (n * 2 + t) * 16, 16)


def reads1(s, typ):
    head = typ == "head"
    kb, e = divmod(s, 4)
    slot = kb % 3
    buf = s & 1
    its = []

    def wr(n):
        f = wf1(buf, n)
        if not head:
            o = slot * WR_SLOT_G + e * 2048
            return [ds_read(64, A(f[1], 2), vWR4[n], o, tr=True), ds_read(64, A(f[1] + 2, 2), vWR4[n], o + 512, tr=True)]
        o = slot * WR_SLOT_H + e * 3072 + n * 64
        r = [ds_read(64, A(f[1], 2), vWR, o, tr=True), ds_read(64, A(f[1] + 2, 2), vWR, o + 768, tr=True)]
        if n == 0:
            r.append([set_exec(sGMASK), ds_read(128, f, vGWs, e * 32), set_exec(-1)])
        return r
    if head and e == 0:
        its.append(valu("v_add_u32", vGWs, sKX[kb], vGW))
    its.append(ds_read(128, xfrag(s, 0), vXR[e], slot * 8192))
    its += wr(0)
    its.append(ds_read(128, xfrag(s, 1), vXR[e], slot * 8192 + 4096))
    for n in range(1, Opt.n1):
        its += wr(n)
    return its


def reads2(s, typ):
    kb2, e = divmod(s, 4)
    buf = s & 1
    two = typ != "head"
    base = pieces(kb2) if two else pieces(kb2 >> 1) + (kb2 & 1) * 2048
    hi = base >= 2 * XW
    if hi:
        base -= 2 * XW
    its = []
    if two:
        for n in range(2):
            f = wf2(buf, n)
            o = base + e * 1024
            its.append(ds_read(64, A(f[1], 2), vW2R[n][hi], o, tr=True))
            its.append(ds_read(64, A(f[1] + 2, 2), vW2R[n][hi], o + 256, tr=True))
    else:
        f = wf2(buf, 0)
        o = base + e * 512
        its.append(ds_read(64, A(f[1], 2), vW2R[0][hi], o, tr=True))
        its.append(ds_read(64, A(f[1] + 2, 2), vW2R[1][hi], o, tr=True))
    return its


def glu_epi(acc, koff, tag):
    b = acc[1]
    its = []
    for e in range(8):
        its.append(valu("v_mul_f32", V(b + e), -LOG2E, V(b + e)))
    for e in range(8):
        its.append(valu("v_exp_f32", V(b + e), V(b + e)))
    for e in range(8):
        its.append(valu("v_add_f32", V(b + e), 1.0, V(b + e)))
    for e in range(8):
        its.append(valu("v_rcp_f32", V(b + e), V(b + e)))
    for e in range(8):
        its.append(valu("v_mul_f32", V(b + e), V(b + e), V(b + 8 + e)))
    for e in range(4):
        its.append(valu("v_cvt_pk_bf16_f32", V(b + 8 + e), V(b + 2 * e), V(b + 2 * e + 1)))
    its.append(store_frag(V(b + 8, 4), koff, tag))
    return its


def store_frag(src, koff, tag):
    fl = Opt.st1
    if isinstance(koff, tuple):
        return buf_store(src, vST, SRD_WS, koff[0], koff[1], fl, tag)
    if koff < 4096:
        return buf_store(src, vST, SRD_WS, 0, koff, fl, tag)
    return [salu("s_mov_b32", sSO2, koff & ~4095), buf_store(src, vST, SRD_WS, sSO2, koff & 4095, fl, tag)]


def flag_set(p, need):
    st = buf_store(vTAG, vFL, SRD_WS, 0, 0, " sc1", None, need=need)
    w = I("s_nop 0", kind="nop", need=need)
    return [w, set_exec(1 << p), st, set_exec(-1)]


def lane_mask(fn):
    m = 0
    for l in range(64):
        if fn(l):
            m |= 1 << l
    return m


def pack_inplace(dst, src, n):
    return [valu("v_cvt_pk_bf16_f32", V(dst + i), V(src + 2 * i), V(src + 2 * i + 1)) for i in range(n)]


def dsw(width, addr, src, off, tag):
    i = ds_write(width, addr, src, off, tag=tag)
    i.cost = {128: 3, 64: 2, 32: 1}[width]
    return i


def head_epi():
    its = []
    a = its.append
    Q0, Q1, K0, K1, V0, V1 = 0, 16, 32, 48, 64, 80
    HK, HV = 96, 112
    M = MASKR
    tg = [V(192), V(193)]
    mx, mx2, sm, sm2, nb, rinv, rz = [V(120 + i) for i in range(7)]
    a(valu("v_mov_b32", tg[0], V(Q0 + 12)))
    a(valu("v_mov_b32", tg[1], V(Q1 + 12)))
    pk = pack_inplace(K0, K0, 8) + pack_inplace(K0 + 8, K1, 8) + pack_inplace(V0, V0, 8) + pack_inplace(V0 + 8, V1, 8)
    wr = [dsw(128, vHP, V(HK + 4 * q, 4), q * 1024, "hp") for q in range(4)]
    wr += [dsw(128, vHP, V(HV + 8 + 4 * q, 4), (4 + q) * 1024, "hp") for q in range(2)]
    for k, x in enumerate(pk):
        a(x)
        if k % 5 == 4 and wr:
            a(wr.pop(0))
    its.extend(wr)
    qp_ = pack_inplace(Q0, Q0, 8) + pack_inplace(Q0 + 8, Q1, 8)
    wr = [dsw(128, vHSI, V(K0 + 8, 4), 3072, "hp"), dsw(128, vHSI, V(K0 + 12, 4), 3072 + 1024, "hp"),
          dsw(128, vHSI, V(V0 + 12, 4), 3072 + 2048, "hp")]
    for k, x in enumerate(qp_):
        if k % 5 == 0 and wr:
            a(wr.pop(0))
        a(x)
    for t in range(2):
        for r in (6, 7):
            a(valu("v_cndmask_b32", V(Q0 + 8 * t + r), 0, V(Q0 + 8 * t + r), sLOMASK))
    a(barrier(need=("hp",)))
    T = HK
    for p in range(4):
        a(ds_read(128, V(T + 4 * p, 4), vHPK, p * 6144))
        a(ds_read(64, V(T + 16 + 2 * p, 2), vHPV, p * 6144))
    Sd, Sp, O = V1, Q1, K1

    def qk(t, kprev):
        kp = [V(K0 + 8 * t, 4), V(K0 + 8 * t + 4, 4)]
        qp = [V(Q0 + 8 * t, 4), V(Q0 + 8 * t + 4, 4)]
        a(mfma(V(Sd, 16), kp[0], qp[0], V(M, 16)))
        a(mfma(V(Sp, 16), kprev[0], qp[0], V(M + 8, 16)))
        a(mfma(V(Sd, 16), kp[1], qp[1], V(Sd, 16)))
        a(mfma(V(Sp, 16), kprev[1], qp[1], V(Sp, 16)))

    def softmax_pv(t, vprev):
        vt = [V(V0 + 8 * t, 4), V(V0 + 8 * t + 4, 4)]
        vals = [V(Sd + r) for r in range(16)] + [V(Sp + r) for r in range(8, 16)]
        a(valu("v_max3_f32", mx, vals[0], vals[1], vals[2]))
        a(valu("v_max3_f32", mx2, vals[3], vals[4], vals[5]))
        rest = vals[6:]
        k = 0
        while rest:
            tgt = mx if k % 2 == 0 else mx2
            a(valu("v_max3_f32", tgt, tgt, rest[0], rest[1]))
            rest = rest[2:]
            k += 1
        a(valu("v_max_f32", mx, mx, mx2))
        a(valu("v_mov_b32", mx2, mx))
        g = tg[t]
        a(valu("v_mul_f32", g, -LOG2E, g))
        a(valu("v_exp_f32", g, g))
        a(permswap(mx, mx2))
        a(valu("v_max_f32", mx, mx, mx2))
        a(valu("v_mul_f32", nb, -CSC, mx))
        for v_ in vals:
            a(valu("v_fma_f32", v_, v_, sC, nb))
        for v_ in vals:
            a(valu("v_exp_f32", v_, v_))
        a(valu("v_add_f32", g, 1.0, g))
        a(valu("v_add_f32", sm, vals[0], vals[1]))
        a(valu("v_add_f32", sm2, vals[2], vals[3]))
        for k, v_ in enumerate(vals[4:]):
            tgt = sm if k % 2 == 0 else sm2
            a(valu("v_add_f32", tgt, tgt, v_))
        its.extend(pack_inplace(Sd, Sd, 8))
        its.extend(pack_inplace(Sp + 8, Sp + 8, 4))
        a(valu("v_add_f32", sm, sm, sm2))
        a(valu("v_mov_b32", sm2, sm))
        a(mfma(V(O, 16), vt[0], V(Sd, 4), 0))
        a(mfma(V(O, 16), vt[1], V(Sd + 4, 4), V(O, 16)))
        a(mfma(V(O, 16), vprev, V(Sp + 8, 4), V(O, 16)))
        a(permswap(sm, sm2))
        a(valu("v_add_f32", sm, sm, sm2))
        a(valu("v_rcp_f32", rinv, sm))
        a(valu("v_rcp_f32", g, g))
        a(valu("v_cndmask_b32", rz, 0, rinv, sLOMASK))
        a(buf_store(g, vHP, SRD_WS, 0, t * 256, Opt.st1, "e1"))

    def finish(t):
        for r in range(16):
            a(valu("v_mul_f32", V(O + r), V(O + r), rz if r >= 12 else rinv))
        its.extend(pack_inplace(O, O, 8))
        a(store_frag(V(O, 4), t * 1024, "e1"))
        a(store_frag(V(O + 4, 4), 2048 + t * 1024, "e1"))

    qk(1, [V(K0, 4), V(K0 + 4, 4)])
    for i in range(4):
        a(valu("v_add_f32", V(T + i), V(T + i), V(T + 4 + i)))
        a(valu("v_add_f32", V(T + 8 + i), V(T + 8 + i), V(T + 12 + i)))
    for i in range(2):
        a(valu("v_add_f32", V(T + 16 + i), V(T + 16 + i), V(T + 18 + i)))
        a(valu("v_add_f32", V(T + 20 + i), V(T + 20 + i), V(T + 22 + i)))
    for i in range(4):
        a(valu("v_add_f32", V(T + i), V(T + i), V(T + 8 + i)))
    for i in range(2):
        a(valu("v_add_f32", V(T + 16 + i), V(T + 16 + i), V(T + 20 + i)))
    a(valu("v_cvt_pk_bf16_f32", V(T + 0), V(T + 0), V(T + 1)))
    a(valu("v_cvt_pk_bf16_f32", V(T + 1), V(T + 2), V(T + 3)))
    a(valu("v_cvt_pk_bf16_f32", V(T + 16), V(T + 16), V(T + 17)))
    a(dsw(64, vHSK, V(T, 2), 0, "hs"))
    a(dsw(32, vHSV, V(T + 16), 0, "hs"))
    a([salu("s_lshl_b32", sT0, sRB, 2), salu("s_add_u32", sT0, sT0, sW), salu("s_lshl_b32", sT0, sT0, 2),
       salu("s_add_u32", sT0, sT0, sCQ)])
    a([salu("s_lshl_b32", sT0, sT0, 2), salu("s_add_u32", sT0, sT0, sJ), salu("s_lshl_b32", sT0, sT0, 9),
       salu("s_add_u32", sT0, sT0, G_OFF - 4 * 512)])
    a(valu("v_lshlrev_b32", vHP, 2, vLANE))
    a(valu("v_add_u32", vHP, sT0, vHP))
    softmax_pv(1, V(V0 + 4, 4))
    a(barrier(need=("hs",)))
    a(ds_read(128, A(240, 4), vHSI, 0))
    a(ds_read(128, A(244, 4), vHSI, 1024))
    a(ds_read(128, A(248, 4), vHSI, 2048))
    a(I("s_mov_b64 vcc, s[82:83]", regset(sFIRST), regset("vcc"), "salu"))
    for r in range(16, 24):
        a(valu("v_cndmask_b32", V(M + r), vNEG, V(M + r), "vcc"))
    qk(0, [A(240, 4), A(244, 4)])
    finish(1)
    softmax_pv(0, A(248, 4))
    return its, (lambda: (its.clear(), finish(0), list(its))[2])


def chunk(slot):
    if slot < 16:
        return ("f", slot)
    if slot < 24:
        return ("o", slot - 16)
    return ("f", slot - 8)


PHMASK = [0x000F, 0x00F0, 0xFF00]
PHSTART = [0, 16, 24]
PHEND = [16, 24, 36]


vFP, vFD = V(216), V(218, 2)
vPW = [V(213), V(214)]
vPAe = V(215)
vPFD = V(217)


def poll():
    return buf_load(vFD, vFP, SRD_WS, 0, 0, " sc1")


def blocks(typ):
    x0 = [("x", i * 2048) for i in range(4)]
    x1 = [("x", 8192 + i * 2048) for i in range(4)]
    x2 = [("x", 16384 + i * 2048) for i in range(4)]
    top = [("t", 0)]
    wr = [("w", i * 2048) for i in range(6)]
    if typ == "head":
        return top + x2 + x0 + wr + x1, 9
    return top + x0 + wr + x1 + x2, 15


def b_dma(i, typ):
    kind, ks = chunk(i)
    blk, _ = blocks(typ)
    reg, off = blk[i % len(blk)]
    base = {"x": sXB, "t": sTOPB, "w": sWRB}[reg]
    if kind == "o":
        row, vo, srd = 28 * (ks >> 1) + 16 * (ks & 1), vBo, SRD_WO
    else:
        row, vo, srd = 16 * ks, vBd, SRD_WD
    if Opt.nob:
        return []
    return [dma_item(base, off + h * 1024, vo, srd, (row + 8 * h) * 896, f"B{i}", Opt.ldb) for h in range(2)]


def gen_p1(E, typ):
    head = typ == "head"
    Opt.n1 = 3 if head else 4
    n1, n2 = Opt.n1, (1 if head else 2)
    setup_early(E, typ)
    E.emit(I("s_waitcnt lgkmcnt(0)", kind="wait"))
    stamp(E, 1, 1)
    E.emit(srd_items(SRD_X, P_X, 2048 * 896))
    if head:
        E.emit(srd_items(SRD_QKV, P_WQKV, 448 * 2688))
    b = SRD_GU[1]
    E.emit(scmp("s_cmp_lt_u32", sW, 2))
    E.emit(salu("s_cselect_b32", S(b), S(P_WG), S(P_WU)))
    E.emit(salu("s_cselect_b32", S(b + 1), S(P_WG + 1), S(P_WU + 1)))
    E.emit(salu("s_mov_b32", S(b + 2), 448 * 3584))
    E.emit(salu("s_mov_b32", S(b + 3), 0x20000))
    E.emit(srd_items(SRD_WO, P_WO, 448 * 896))
    E.emit(salu("s_lshl_b32", sKX[0], sT5, 7))
    stamp(E, 2, 1)
    g0 = load_group(0, typ)
    for it in g0[:3]:
        E.emit(it)
    for kb in range(1, 7):
        E.emit(salu("s_add_u32", sKX[kb], sKX[kb - 1], 128))
        E.emit(scmp("s_cmp_eq_u32", sKX[kb], 896))
        E.emit(salu("s_cselect_b32", sKX[kb], 0, sKX[kb]))
    E.emit(srd_items(SRD_WS, P_WS, WS_BYTES))
    E.emit(buf_load(vTAG, vGA, SRD_WS, 0, 0, " sc1", tag="L0"))
    for it in g0[3:]:
        E.emit(it)
    if head:
        E.emit(srd_items(SRD_GW, P_GW, 896))
        E.emit(dma_item(None, GW_BASE, vL16, SRD_GW, 0, "L0"))
    stamp(E, 3, 1)
    for it in load_group(1, typ):
        E.emit(it)
    stamp(E, 4, 1)
    for it in setup_late(typ):
        E.emit(it)
    stamp(E, 1)
    stamp(E, 6, 1)
    E.wait_tags("L0")
    E.emit(barrier())
    stamp(E, 2)
    stamp(E, 7, 1)
    for it in reads1(0, typ):
        E.emit(it)

    fill = deque(setup_fill(typ))
    pend = deque(load_group(2, typ))
    HWK, HWV, HXF = V(192, 4), V(196, 4), A(248, 4)
    blk, npre = blocks(typ)
    npre = min(npre, Opt.npre)
    for s in range(28):
        kb, e = divmod(s, 4)
        slot = kb % 3
        buf = s & 1
        ms = []
        for n in range(n1):
            for t in range(2):
                c = 0 if s == 0 else acc1(n, t)
                if head and n == 2:
                    ms.append(mfma(acc1(n, t), xfrag(s, t), wf1(buf, n), c))
                else:
                    ms.append(mfma(acc1(n, t), wf1(buf, n), xfrag(s, t), c))
        must = []
        pre = None
        hold = 0
        if head and e == 2:
            ms.append(mfma(V(96, 16), HWK, HXF, 0 if kb == 0 else V(96, 16)))
            ms.append(mfma(V(112, 16), HXF, HWV, 0 if kb == 0 else V(112, 16)))
        nxt = reads1(s + 1, typ) if s < 27 else reads2(0, typ)
        if e == 3:
            tagn = f"L{kb + 1}" if kb < 6 else "W2a"
            hold = 2

            def pre_fn(tagn=tagn):
                E._wait(None, 0)
                E.wait_tags(tagn)
                E.emit(barrier())
            pre = [pre_fn]
            if kb + 3 <= 6:
                pend.extend(load_group(kb + 3, typ))
            elif kb == 4:
                pend.extend(load_group2(range(7) if head else [0, 1, 2, 3], "W2a", typ))
            elif kb == 5 and not head:
                pend.extend(load_group2([4, 5, 6], "W2b", typ))
        must += nxt
        if head and e == 0:
            must.append(ds_read(128, HXF, vHXR, slot * 4096))
            for n, f in ((1, HWK), (2, HWV)):
                o = slot * WR_SLOT_H + n * 64
                must.append(ds_read(64, V(f[1], 2), vWH, o, tr=True))
                must.append(ds_read(64, V(f[1] + 2, 2), vWH, o + 768, tr=True))
        if s == 19:
            assert len(fill) <= (24 if head else 0), len(fill)
        if s == Opt.pfw and s:
            assert len(fill) <= (56 if head else 0), len(fill)
        if Opt.pfw > 0 and s >= Opt.pfw and (s - Opt.pfw) % Opt.pfstep == 0 and (s - Opt.pfw) // Opt.pfstep < 5:
            k = (s - Opt.pfw) // Opt.pfstep
            if k < 4:
                must.append(buf_load(vPFD, vPW[0], SRD_WD, 0, 0, Opt.ldpf) if k == 0 else
                            [salu("s_mov_b32", sSO2, k * 3200), buf_load(vPFD, vPW[0], SRD_WD, sSO2, 0, Opt.ldpf)])
            else:
                must.append(buf_load(vPFD, vPW[1], SRD_WO, 0, 0, Opt.ldpf))
        steps_left = 4 if e == 3 else 3 - e
        ndma = math.ceil(len(pend) / steps_left)
        dm = [pend.popleft() for _ in range(ndma)]
        weave(E, ms, must, fill, hold=hold, pre=pre, dmas=dm, must_per_gap=Opt.rpg)
    assert not pend and not fill
    stamp(E, 3)
    if head:
        its, tail = head_epi()
        fill.extend(its)
        fill.extend(tail())
    else:
        for n in range(4):
            for t in range(2):
                fill.extend(glu_epi(acc1(n, t), (n * 2 + t) * 1024, "e1"))
    done_at = None
    flagged = False
    nb_iss = 0
    for s in range(28):
        buf = s & 1
        ms = []
        for n in range(n2):
            for t in range(2):
                c = 0 if s == 0 else acc2(n, t)
                ms.append(mfma(acc2(n, t), wf2(buf, n), xfrag(s, t), c))
        must = reads2(s + 1, typ) if s < 27 else []
        hold, pre = 0, None
        if s == 15 and not head:
            hold = 1

            def pre_fn():
                E._wait(None, 0)
                E.wait_tags("W2b")
                E.emit(barrier())
            pre = [pre_fn]
        dm = []
        if done_at is not None:
            lim = npre if (head or s > 15) else min(npre, 11)
            per = math.ceil((npre - nb_iss) / max(1, 27 - s))
            while nb_iss < lim and per > 0:
                dm.extend(b_dma(nb_iss, typ))
                nb_iss += 1
                per -= 1
            if not flagged and s >= done_at + (Opt.f1d if not head else Opt.f1dh):
                dm.append(flag_set(0, ("e1",)))
                flagged = True
        if s == Opt.epoll and Opt.epoll:
            dm.append(poll())
        bud = Opt.budget2h if head else Opt.budget2
        weave(E, ms, must, fill, hold=hold, pre=pre, budget=bud, dmas=dm)
        if not fill and done_at is None:
            done_at = s
    stamp(E, 4)
    while fill:
        put(E, fill.popleft())
    if Opt.epoll:
        E.emit(valu("v_cmp_eq_u64", "vcc", vTAG, vFD))
        E.emit(I(f"s_and_b32 {rs(sT5)}, vcc_lo, 0x{PHMASK[0]:x}", regset("vcc"), regset(sT5), "salu"))
        E.emit(scmp("s_cmp_eq_u32", sT5, PHMASK[0]))
        E.emit(branch("s_cbranch_scc0", f"L_noepf_{typ}"))
        E.raw(f"    buffer_load_dword {rs(vPFD)}, {rs(vPAe)}, {rs(SRD_WS)}, 0 offen sc1")
        E.label(f"L_noepf_{typ}")
    epi = []
    for n in range(n2):
        for t in range(2):
            epi.append(glu_epi(acc2(n, t), (sP2O, (n * 2 + t) * 1024), "e2"))
    for k in range(max(len(x) for x in epi)):
        if k == Opt.poll0:
            if not flagged:
                E.emit(flag_set(0, ("e1",)))
                flagged = True
            E.emit(poll())
        for ep in epi:
            if k < len(ep):
                E.emit(ep[k])
    stamp(E, 5)
    stamp(E, 1, 2)
    return nb_iss


def diag_store(E, nst):
    if not Opt.diag:
        return
    E.emit(I("s_waitcnt lgkmcnt(0)", kind="wait"))
    E.lg = []
    E.emit(salu("s_lshl_b32", sT0, sWG, 2))
    E.emit(salu("s_add_u32", sT0, sT0, sW))
    E.emit(salu("s_lshl_b32", sT0, sT0, 6))
    E.emit(salu("s_add_u32", sT0, sT0, DIAG_OFF))
    E.emit(valu("v_mov_b32", V(1), sT0))
    for i in range(nst):
        E.emit(valu("v_mov_b32", V(2), S(sDIAG + 2 * i)))
        E.emit(buf_store(V(2), V(1), SRD_WS, 0, 4 * i))
        E.nop(2)


def gen_p2(E, typ, npre):
    head = typ == "head"
    ACCH, ACCO = 0, 64
    vA, vG0, vG1, vRW, vRR, vO = [V(200 + i) for i in range(6)]
    t = [V(208 + i) for i in range(8)]
    vT = {(r, c): V(128 + k) for k, (r, c) in enumerate((r, c) for r in "xtw" for c in range(2))}
    BF = 136
    fl = Opt.ld2
    blk, _ = blocks(typ)
    NB = len(blk)
    D = Opt.D
    RA = 28
    lab = typ

    def publish_last():
        return flag_set(1, ("e2",))

    if not head:
        E.emit(scmp("s_cmp_eq_u32", sJ, 3))
        E.emit(branch("s_cbranch_scc0", "L_p2_go"))
        sv = (list(E.vm), list(E.lg), list(E.hist))
        E.emit(publish_last())
        diag_store(E, 8)
        E.emit(I("s_endpgm", kind="branch"))
        E.label("L_p2_go")
        E.vm, E.lg, E.hist = sv
    E.emit(salu("s_lshl_b32", sT0, sRB, 2))
    E.emit(salu("s_add_u32", sT0, sT0, sCQ))
    E.emit(salu("s_mov_b32", sSPIN, 0))

    def check(ph):
        mask = PHMASK[ph]
        E.emit(valu("v_cmp_eq_u64", "vcc", vTAG, vFD))
        E.emit(I(f"s_and_b32 {rs(sT5)}, vcc_lo, 0x{mask:x}", regset("vcc"), regset(sT5), "salu"))
        E.emit(scmp("s_cmp_eq_u32", sT5, mask))
        E.emit(branch("s_cbranch_scc1", f"L_fl_ok_{lab}_{ph}"))
        E.label(f"L_fl_loop_{lab}_{ph}")
        E.raw("    s_sleep 4")
        E.raw(f"    buffer_load_dwordx2 {rs(vFD)}, {rs(vFP)}, {rs(SRD_WS)}, 0 offen sc1")
        E.raw("    s_waitcnt vmcnt(0)")
        E.raw(f"    v_cmp_eq_u64 vcc, {rs(vTAG)}, {rs(vFD)}")
        E.raw(f"    s_add_u32 {rs(sSPIN)}, {rs(sSPIN)}, 1")
        E.raw(f"    s_cmp_gt_u32 {rs(sSPIN)}, {Opt.spin}")
        E.raw(f"    s_cbranch_scc1 L_fl_ok_{lab}_{ph}")
        E.raw(f"    s_and_b32 {rs(sT5)}, vcc_lo, 0x{mask:x}")
        E.raw(f"    s_cmp_eq_u32 {rs(sT5)}, 0x{mask:x}")
        E.raw(f"    s_cbranch_scc0 L_fl_loop_{lab}_{ph}")
        E.label(f"L_fl_ok_{lab}_{ph}")

    E.emit(barrier(need=()))
    E.emit(salu("s_mul_i32", sT1, sT0, 144))
    E.emit(salu("s_mul_i32", sT2, sW, 36))
    E.emit(salu("s_add_u32", sT1, sT1, sT2))
    E.emit(salu("s_lshl_b32", sT1, sT1, 11))
    E.emit(valu("v_add_u32", vA, sT1, vL16))
    hf, r4, gi, ng = t[0], t[1], t[2], t[3]
    E.emit(valu("v_lshrrev_b32", hf, 5, vLANE))
    E.emit(valu("v_bfe_u32", r4, vLANE, 2, 2))
    E.emit(valu("v_bfe_u32", gi, vLANE, 4, 1))
    E.emit(valu("v_and_b32", t[4], 3, vLANE))
    E.emit(valu("v_lshl_add_u32", gi, gi, 2, t[4]))
    E.emit(valu("v_and_b32", t[4], 1, gi))
    E.emit(valu("v_lshrrev_b32", ng, 1, gi))
    E.emit(valu("v_lshl_add_u32", ng, t[4], 2, ng))
    E.emit(valu("v_lshl_add_u32", t[4], hf, 2, r4))
    E.emit(valu("v_lshlrev_b32", t[4], 7, t[4]))
    E.emit(valu("v_lshl_add_u32", t[4], ng, 3, t[4]))
    E.emit(valu("v_lshrrev_b32", t[5], 1, r4))
    E.emit(valu("v_lshl_add_u32", t[6], t[5], 6, t[4]))
    E.emit(valu("v_xor_b32", t[5], 1, t[5]))
    E.emit(valu("v_lshl_add_u32", t[7], t[5], 6, t[4]))
    for r, sb in (("x", sXB), ("t", sTOPB), ("w", sWRB)):
        E.emit(valu("v_add_u32", vT[(r, 0)], sb, t[6]))
        E.emit(valu("v_add_u32", vT[(r, 1)], sb, t[7]))

    vPA = [V(152), V(153), V(154)]
    for ph in range(3):
        nl = (PHEND[ph] - PHSTART[ph]) * 16
        per = -(-nl // 7)
        E.emit(salu("s_mul_i32", sT2, sJC, per))
        E.emit(valu("v_min_u32", t[4], per - 1, vLANE))
        E.emit(valu("v_add_u32", t[4], sT2, t[4]))
        E.emit(valu("v_min_u32", t[4], nl - 1, t[4]))
        E.emit(valu("v_lshlrev_b32", t[4], 7, t[4]))
        E.emit(salu("s_add_u32", sT2, sT1, PHSTART[ph] * 2048))
        E.emit(valu("v_add_u32", vPA[ph], sT2, t[4]))

    def areg(i):
        return A(i * 8, 8) if i < 32 else V(160 + (i - 32) * 8, 8)

    def a_loads(i):
        f, r, _ = areg(i)
        so = (i * 2048) & ~4095
        io = (i * 2048) & 4095
        its = []
        if so:
            its.append(salu("s_mov_b32", sSO2, so))
        sof = sSO2 if so else 0
        if Opt.noa:
            return its
        its.append(buf_load((f, r, 4), vA, SRD_WS, sof, io, fl))
        its.append(buf_load((f, r + 4, 4), vA, SRD_WS, sof, io + 1024, fl))
        return its

    def b_reads(i):
        reg, off = blk[i % NB]
        o = BF + (i & 1) * 8
        its = []
        for c in range(2):
            its.append(ds_read(64, V(o + 4 * c, 2), vT[(reg, c)], off, tr=True, need=(f"B{i}",)))
            its.append(ds_read(64, V(o + 4 * c + 2, 2), vT[(reg, c)], off + 1024, tr=True, need=(f"B{i}",)))
        return its

    published = [False]

    def phase(ph):
        if ph == 0:
            stamp(E, 2, 2)
        check(ph)
        if ph < 2:
            stamp(E, 3 + ph, 2)
        if Opt.pfa:
            E.emit(buf_load(vPFD, vPA[ph], SRD_WS, 0, 0, " sc1"))
        if ph == 1:
            E.emit(salu("s_lshl_b32", sT1, sT0, 2))
            E.emit(salu("s_add_u32", sT1, sT1, sW))
            E.emit(salu("s_lshl_b32", sT1, sT1, 11))
            E.emit(salu("s_add_u32", sT1, sT1, G_OFF + 128))
            E.emit(valu("v_and_b32", t[0], 31, vLANE))
            E.emit(valu("v_lshlrev_b32", t[1], 2, t[0]))
            E.emit(valu("v_add_u32", t[1], sT1, t[1]))
            E.emit(buf_load(vG0, t[1], SRD_WS, 0, 0, " sc1"))
            E.emit(buf_load(vG1, t[1], SRD_WS, 0, 256, " sc1"))

    def issue(i):
        if i >= 36:
            return
        if i in PHSTART:
            phase(PHSTART.index(i))
        E.emit(a_loads(i))
        if i + Opt.pollahead in PHSTART[1:]:
            E.emit(poll())
        if not published[0] and i >= Opt.pubat:
            E.emit(publish_last())
            published[0] = True

    nb2 = min(NB, npre + Opt.bfirst)
    for i in range(npre, nb2):
        for it in b_dma(i, typ):
            E.emit(it)
    for i in range(D):
        issue(i)
    for i in range(nb2, NB):
        for it in b_dma(i, typ):
            E.emit(it)
    E.emit(salu("s_lshl_b32", sT1, sW, 12))
    E.emit(valu("v_add_u32", vRW, sT1, vL16))
    E.emit(salu("s_lshl_b32", sT1, sW, 14))
    E.emit(valu("v_add_u32", vRR, sT1, vL16))
    E.emit(salu("s_lshl_b32", sT1, sT0, 6))
    E.emit(salu("s_lshr_b32", sT2, sW, 1))
    E.emit(salu("s_lshl_b32", sT2, sT2, 5))
    E.emit(salu("s_add_u32", sT1, sT1, sT2))
    E.emit(valu("v_and_b32", t[4], 31, vLANE))
    E.emit(valu("v_add_u32", t[4], sT1, t[4]))
    E.emit(valu("v_mul_u32_u24", t[4], 896, t[4]))
    E.emit(valu("v_lshrrev_b32", t[5], 5, vLANE))
    E.emit(valu("v_lshl_add_u32", t[4], t[5], 5, t[4]))
    E.emit(salu("s_lshl_b32", sT1, sJC, 7))
    E.emit(salu("s_and_b32", sT2, sW, 1))
    E.emit(salu("s_lshl_b32", sT2, sT2, 6))
    E.emit(salu("s_add_u32", sT1, sT1, sT2))
    E.emit(valu("v_add_u32", vO, sT1, t[4]))
    stamp(E, 6)
    for it in b_reads(0):
        E.emit(it)
    seen = set()
    gsc = deque([valu("v_sub_f32", t[0], 1.0, vG0), valu("v_sub_f32", t[1], 1.0, vG1)])
    for tt in range(2):
        for r in range(32):
            gsc.append(valu("v_mul_f32", V(ACCO + tt * 32 + r), V(ACCO + tt * 32 + r), vG0 if tt == 0 else vG1))
    for i in range(36):
        f, r, _ = areg(i)
        o = BF + (i & 1) * 8
        if i in (8, 20, 30):
            stamp(E, {8: 5, 20: 6, 30: 7}[i], 2)
        base = ACCO if chunk(i)[0] == "o" else ACCH
        k = 0
        for tt in range(2):
            for c in range(2):
                d = V(base + (tt * 2 + c) * 16, 16)
                first = (base, tt, c) not in seen
                seen.add((base, tt, c))
                E.emit(mfma(d, V(o + 4 * c, 4), (f, r + 4 * tt, 4), 0 if first else d))
                if k == 0 and i + 1 < 36:
                    for it in b_reads(i + 1):
                        E.emit(it)
                if k >= 2 and i >= 25:
                    for _ in range(4):
                        if gsc:
                            E.emit(gsc.popleft())
                if k == 1:
                    issue(i + D)
                if k == 1 and i + NB < 36:
                    for it in b_dma(i + NB, typ):
                        E.emit(it)
                k += 1
    assert published[0]
    stamp(E, 7)
    while gsc:
        E.emit(gsc.popleft())
    E.emit(barrier())
    for q in range(4):
        for r in range(16):
            E.emit(valu("v_fmac_f32", V(ACCO + q * 16 + r), V(ACCH + q * 16 + r), t[q >> 1]))
        for k in range(4):
            E.emit(ds_write(128, vRW, V(ACCO + q * 16 + 4 * k, 4), q * 16384 + k * 1024, tag="red"))
    E.emit(barrier(need=("red",)))
    for src in range(4):
        for k in range(4):
            E.emit(ds_read(128, V(ACCH + src * 16 + 4 * k, 4), vRR, src * 4096 + k * 1024))
    for r in range(16):
        E.emit(valu("v_add_f32", V(ACCH + r), V(ACCH + r), V(ACCH + 16 + r)))
    for r in range(16):
        E.emit(valu("v_add_f32", V(ACCH + 32 + r), V(ACCH + 32 + r), V(ACCH + 48 + r)))
    for r in range(16):
        E.emit(valu("v_add_f32", V(ACCH + r), V(ACCH + r), V(ACCH + 32 + r)))
    for it in pack_inplace(ACCH, ACCH, 8):
        E.emit(it)
    E.emit(buf_store(V(ACCH, 4), vO, SRD_OUT, 0, 0))
    E.emit(buf_store(V(ACCH + 4, 4), vO, SRD_OUT, 0, 16))
    if not head:
        E.emit(salu("s_or_b32", sT1, sCQ, sJ))
        E.emit(salu("s_or_b32", sT1, sT1, sW))
        E.emit(scmp("s_cmp_eq_u32", sT1, 0))
        E.emit(branch("s_cbranch_scc0", "L_nogen"))
        E.emit([set_exec(1), buf_store(vTAG, vGA, SRD_WS, 0, 0, " sc1"), set_exec(-1)])
        E.label("L_nogen")
    if Opt.diag and Opt.sset == 0:
        E.emit(I(f"s_memtime s[{sDIAG + 2}:{sDIAG + 3}]", (), (), "smem"))


KD = """.section .rodata,"a"
.p2align 6
.amdhsa_kernel {name}
  .amdhsa_next_free_vgpr 512
  .amdhsa_next_free_sgpr 102
  .amdhsa_accum_offset 256
  .amdhsa_group_segment_fixed_size 0
  .amdhsa_kernarg_size 88
  .amdhsa_user_sgpr_count 2
  .amdhsa_user_sgpr_kernarg_segment_ptr 1
  .amdhsa_system_sgpr_workgroup_id_x 1
.end_amdhsa_kernel
"""


def header(launches):
    h = open(f"cdna_kernels/{NAME}.s.ref").read().split("\n")
    out = []
    for l in h:
        if l.startswith("; @launch") or l.startswith("; Override") or l.startswith("; grid=ceil"):
            continue
        if not l.startswith(";"):
            break
        out.append(l)
    out += launches
    out.append('.amdgcn_target "amdgcn-amd-amdhsa--gfx950"')
    out.append(".text")
    return "\n".join(out) + "\n"


def gen():
    kn = NAME + "_kernel"
    txt = header([f"; @launch grid=(256,1,1) block=(256,1,1) lds={LDS_BYTES}"])
    E = Emitter()
    common_prologue(E)
    E.emit(scmp("s_cmp_ge_u32", sJ, 4))
    E.emit(branch("s_cbranch_scc1", "L_head"))
    st = (list(E.vm), list(E.lg), list(E.hist))
    npre = gen_p1(E, "glu")
    gen_p2(E, "glu", npre)
    diag_store(E, 8)
    E.emit(I("s_endpgm", kind="branch"))
    E.label("L_head")
    E.vm, E.lg, E.hist = list(st[0]), list(st[1]), list(st[2])
    npre = gen_p1(E, "head")
    gen_p2(E, "head", npre)
    diag_store(E, 8)
    E.label("L_end")
    E.emit(I("s_endpgm", kind="branch"))
    E.label("L_codeend")
    txt += f".globl {kn}\n.p2align 8\n.type {kn},@function\n{kn}:\n" + E.text()
    txt += ".fill 64, 4, 0xBF800000\n"
    txt += KD.format(name=kn)
    sys.stderr.write(f"nops: {E.nops}\n")
    return txt


if __name__ == "__main__":
    ap = argparse.ArgumentParser()
    ap.add_argument("--diag", action="store_true")
    ap.add_argument("--sset", type=int, default=0)
    ap.add_argument("--budget", type=int, default=5)
    ap.add_argument("--norot", action="store_true")
    ap.add_argument("--rpg", type=int, default=2)
    ap.add_argument("--ld1", default="")
    ap.add_argument("--st1", default="sc1")
    ap.add_argument("--ld2", default="sc1")
    ap.add_argument("--ldb", default="")
    ap.add_argument("--npre", type=int, default=99)
    ap.add_argument("--D", type=int, default=10)
    ap.add_argument("--epoll", type=int, default=24)
    ap.add_argument("--bfirst", type=int, default=4)
    ap.add_argument("--pollahead", type=int, default=4)
    ap.add_argument("--pubat", type=int, default=8)
    ap.add_argument("--poll0", type=int, default=24)
    ap.add_argument("--pfw", type=int, default=12)
    ap.add_argument("--pfstep", type=int, default=3)
    ap.add_argument("--c1", type=int, default=0)
    ap.add_argument("--c2", type=int, default=14)
    ap.add_argument("--f1d", type=int, default=8)
    ap.add_argument("--f1dh", type=int, default=12)
    ap.add_argument("--budget2h", type=int, default=16)
    ap.add_argument("--noa", action="store_true")
    ap.add_argument("--fakeh", action="store_true")
    ap.add_argument("--nob", action="store_true")
    ap.add_argument("--pfa", type=int, default=1)
    ap.add_argument("--lead", type=int, default=4)
    ap.add_argument("--budget2", type=int, default=12)
    ap.add_argument("--ldpf", default="")
    ap.add_argument("--f1u", type=int, default=7)
    ap.add_argument("--spin", type=int, default=20000)
    ap.add_argument("-o", default=f"cdna_kernels/{NAME}.s")
    args = ap.parse_args()
    for k, v in vars(args).items():
        setattr(Opt, k, v)
    Opt.rot = not args.norot
    fx = lambda x: (" " + x.replace("+", " ")) if x else ""
    Opt.ld1, Opt.st1, Opt.ld2, Opt.ldb = fx(args.ld1), fx(args.st1), fx(args.ld2), fx(args.ldb)
    Opt.ldpf = fx(args.ldpf)
    for p in range(768):
        assert (p * 43691) >> 19 == p // 12
    open(args.o, "w").write(gen())
```

```python
import sys, math, argparse
from collections import deque
from emit import *

NAME = "gated_mix__sliding_local_dilated__glu_gated_glu__prompt"

A2_OFF = 0x0
G_OFF = 0xC00000
FLAG_OFF = 0xD00000
GEN_OFF = FLAG_OFF + 0x4000
DIAG_OFF = 0xE00000
WS_BYTES = 0x1000000

XW = 24576
WR_BASE = 98304
WR_SLOT_H = 12544
WR_SLOT_G = 16384
HX_BASE = WR_BASE + 3 * WR_SLOT_H
GW_BASE = HX_BASE + 3 * 4096
TOP_BASE = 149504
HP_BASE = WR_BASE
HS_BASE = WR_BASE + 4 * 6144
assert HS_BASE + 5 * 3072 <= GW_BASE
LDS_BYTES = 163840

LOG2E = 1.4426950408889634
CSC = (28 ** -0.5) * LOG2E
NEGBIG = -1.0e30

sWG = S(2)
P_X, P_WQKV, P_WO, P_BX, P_WG, P_WU, P_WD, P_GW, P_OUT, P_DBG, P_WS = [4 + 2 * i for i in range(11)]
SRD_X, SRD_QKV, SRD_GU, SRD_WO, SRD_GW, SRD_OUT, SRD_WS, SRD_DBG = [S(28 + 4 * i, 4) for i in range(8)]
SRD_WD = SRD_DBG
sW, sRB, sCQ, sJ = S(60), S(61), S(62), S(63)
sT0, sT1, sT2, sT3, sT4, sT5 = [S(64 + i) for i in range(6)]
sXB = S(70)
sWD = S(71)
sW2D = S(72)
sHXD = S(73)
sHD = S(74)
sU = S(77)
sSO = S(75)
sSO2 = S(76)
sC = S(83)
sGMASK = S(78, 2)
sLOMASK = S(80, 2)
sFIRST = S(0, 2)
sPC = S(84, 2)
sP2O = S(27)
sTOPB = S(26)
sWRB = S(3)
sSPIN = S(84)
sJC = S(85)
sDIAG = 86
sKX = [S(4 + i) for i in range(7)]

vL16 = V(224)
vXe, vXo = V(225), V(226)
vW = [V(227), V(228), V(229)]
vW2 = V(230)
vHX = V(231)
vXR = [V(232 + i) for i in range(4)]
vWR = V(236)
vWH = V(237)
vHXR = V(238)
vW2R = [[V(239), V(240)], [V(241), V(242)]]
vGW = V(243)
vWR4 = [V(236), V(237), V(238), V(243)]
vFL = V(244)
vBo, vBd = V(245), V(223)
vST = V(246)
vLANE = V(247)
vNEG = V(248)
vHP, vHPK, vHPV, vHSK, vHSV, vHSI = [V(249 + i) for i in range(6)]
vGWs = V(255)
vGA = V(222)
vTAG = V(220, 2)
TMP = 200


def pieces(i):
    if i < 4:
        return i * XW + 8192
    return (i - 4) * XW + 16384


class Opt:
    pass


def stamp(E, idx, sset=0):
    if Opt.diag and (sset == Opt.sset or sset < 0):
        E.emit(I(f"s_memtime s[{sDIAG + 2 * idx}:{sDIAG + 2 * idx + 1}]", (), (), "smem"))


def item_cost(it):
    if callable(it):
        return 0
    if isinstance(it, I):
        return it.cost
    return sum(x.cost for x in it)


def put(E, it):
    if callable(it):
        it()
    else:
        E.emit(it)


def weave(E, mfmas, must, fill, budget=None, hold=0, pre=None, dmas=(), must_per_gap=None):
    budget = budget or Opt.budget
    must = deque(must)
    dmas = list(dmas)
    n = len(mfmas)
    first = max(hold - 1, 0)
    slots = {}
    if dmas:
        ng = n - first
        for k, d in enumerate(dmas):
            g = first + min(ng - 1, int((k + 0.5) * ng / len(dmas)))
            slots.setdefault(g, []).append(d)
    for g, m in enumerate(mfmas):
        E.emit(m)
        if g + 1 == hold and pre is not None:
            for it in pre:
                put(E, it)
        b = budget
        if g + 1 >= hold:
            gaps_left = n - g
            tot = sum(item_cost(x) for x in must)
            quota = max(must_per_gap or budget, math.ceil(tot / gaps_left))
            while must and quota > 0:
                it = must.popleft()
                put(E, it)
                quota -= item_cost(it)
                b -= item_cost(it)
            for it in slots.get(g, ()):
                put(E, it)
                b -= item_cost(it)
        while fill and b >= item_cost(fill[0]) and b > 0:
            it = fill.popleft()
            put(E, it)
            b -= item_cost(it)
    while must:
        put(E, must.popleft())


def srd_items(srd, ptr, nbytes):
    b = srd[1]
    return [salu("s_mov_b32", S(b), S(ptr)), salu("s_mov_b32", S(b + 1), S(ptr + 1)),
            salu("s_mov_b32", S(b + 2), nbytes), salu("s_mov_b32", S(b + 3), 0x20000)]


def set_exec(val):
    if isinstance(val, int):
        return I(f"s_mov_b64 exec, {val}", (), regset("exec"), "salu")
    return I(f"s_mov_b64 exec, {rs(val)}", regset(val), regset("exec"), "salu")


def common_prologue(E):
    E.emit(scmp("s_cmp_ge_u32", sWG, 256))
    E.emit(branch("s_cbranch_scc1", "L_end"))
    stamp(E, 0, -1)
    E.emit(I("s_load_dwordx16 s[4:19], s[0:1], 0x0", kind="smem"))
    E.emit(I("s_load_dwordx4 s[20:23], s[0:1], 0x40", kind="smem"))
    E.emit(I("s_load_dwordx2 s[24:25], s[0:1], 0x50", kind="smem"))
    E.emit(I("s_getpc_b64 s[84:85]", (), regset(sPC), "salu"))
    E.label("L_pc")
    E.emit(valu("v_and_b32", vLANE, 63, V(0)))
    E.emit(valu("v_lshrrev_b32", V(1), 6, V(0)))
    E.emit(salu("s_lshr_b32", sT0, sWG, 3))
    E.emit(readfirstlane(sW, V(1)))
    E.emit(salu("s_and_b32", sT1, sT0, 3))
    E.emit(valu("v_lshlrev_b32", V(2), 2, V(0)))
    E.emit(valu("v_add_u32", V(2), sT1, V(2)))
    E.emit(valu("v_lshlrev_b32", V(2), 7, V(2)))
    E.emit(valu("v_cmp_gt_u32", "vcc", "L_codeend-L_pc", V(2)))
    E.emit(I("s_and_saveexec_b64 s[66:67], vcc", regset("vcc"), regset(S(66, 2), "exec"), "salu"))
    E.emit(branch("s_cbranch_execz", "L_nopf"))
    E.emit(I("global_load_dword v3, v2, s[84:85]", regset(V(2), sPC), regset(V(3)), "vm_ld"))
    E.label("L_nopf")
    E.emit(set_exec(-1))
    E.vm = []
    E.emit(valu("v_lshlrev_b32", vL16, 4, vLANE))
    E.emit(salu("s_and_b32", sT1, sWG, 1))
    E.emit(salu("s_lshl_b32", sT1, sT1, 2))
    E.emit(salu("s_lshr_b32", sT2, sT0, 3))
    E.emit(salu("s_add_u32", sRB, sT1, sT2))
    E.emit(salu("s_and_b32", sT1, sWG, 7))
    E.emit(salu("s_lshr_b32", sCQ, sT1, 1))
    E.emit(salu("s_and_b32", sJ, sT0, 7))
    t = [V(TMP + i) for i in range(8)]
    r8, c8, ch = t[0], t[1], t[2]
    E.emit(valu("v_lshrrev_b32", r8, 3, vLANE))
    E.emit(valu("v_and_b32", c8, 7, vLANE))
    E.emit(valu("v_lshrrev_b32", ch, 1, r8))
    E.emit(valu("v_xor_b32", ch, ch, c8))
    E.emit(salu("s_lshl_b32", sT0, sRB, 8))
    E.emit(salu("s_lshl_b32", sT1, sW, 6))
    E.emit(salu("s_add_u32", sT0, sT0, sT1))
    E.emit(valu("v_add_u32", t[3], sT0, r8))
    E.emit(valu("v_mul_u32_u24", t[3], 896, t[3]))
    E.emit(valu("v_lshl_add_u32", vXe, ch, 4, t[3]))
    E.emit(valu("v_xor_b32", t[4], 4, ch))
    E.emit(valu("v_lshl_add_u32", vXo, t[4], 4, t[3]))
    E.emit(valu("v_add_u32", vXo, 8 * 896, vXo))
    E.emit(salu("s_mul_i32", sXB, sW, XW))
    if Opt.rot:
        E.emit(salu("s_and_b32", sT5, sRB, 3))
        E.emit(salu("s_lshl_b32", sT5, sT5, 1))
        E.emit(salu("s_add_u32", sT5, sT5, sJ))
        E.emit(scmp("s_cmp_ge_u32", sT5, 7))
        E.emit(salu("s_cselect_b32", sT1, 7, 0))
        E.emit(salu("s_sub_u32", sT5, sT5, sT1))
    else:
        E.emit(salu("s_mov_b32", sT5, 0))
    E.emit(salu("s_lshl_b32", sT0, sRB, 2))
    E.emit(salu("s_add_u32", sT0, sT0, sW))
    E.emit(salu("s_lshl_b32", sT0, sT0, 2))
    E.emit(salu("s_add_u32", sT0, sT0, sCQ))
    E.emit(salu("s_lshl_b32", sT0, sT0, 4))
    E.emit(salu("s_add_u32", sT0, sT0, sJ))
    E.emit(salu("s_lshl_b32", sT0, sT0, 3))
    E.emit(salu("s_add_u32", sT0, sT0, FLAG_OFF))
    E.emit(valu("v_and_b32", t[3], 1, vLANE))
    E.emit(valu("v_lshlrev_b32", t[3], 6, t[3]))
    E.emit(valu("v_add_u32", vFL, sT0, t[3]))
    E.emit(salu("s_lshl_b32", sT0, sRB, 7))
    E.emit(salu("s_add_u32", sT0, sT0, GEN_OFF))
    E.emit(valu("v_mov_b32", vGA, sT0))


def setup_early(E, typ):
    t = [V(TMP + i) for i in range(12)]
    r8, c8, ch = t[0], t[1], t[2]
    head = typ != "glu"
    E.emit(salu("s_mul_i32", sT4, sCQ, 896))
    if head:
        E.emit(salu("s_mul_i32", sT0, sW, 192))
        E.emit(salu("s_mul_i32", sT1, sHD, 56))
        for q in range(3):
            p, row, cx = t[5], t[6], t[7]
            E.emit(valu("v_add_u32", p, sT0, vLANE))
            if q:
                E.emit(valu("v_add_u32", p, 64 * q, p))
            E.emit(valu("v_mul_u32_u24", row, 43691, p))
            E.emit(valu("v_lshrrev_b32", row, 19, row))
            E.emit(valu("v_mul_u32_u24", cx, 12, row))
            E.emit(valu("v_sub_u32", cx, p, cx))
            E.emit(valu("v_mul_u32_u24", row, 2688, row))
            E.emit(valu("v_lshrrev_b32", p, 2, cx))
            E.emit(valu("v_mul_u32_u24", p, 896, p))
            E.emit(valu("v_add_u32", row, row, p))
            E.emit(valu("v_and_b32", cx, 3, cx))
            E.emit(valu("v_lshl_add_u32", row, cx, 4, row))
            E.emit(valu("v_add_u32", vW[q], sT1, row))
        E.emit(salu("s_mul_i32", sWD, sW, 3072))
        E.emit(salu("s_add_u32", sWD, sWD, WR_BASE))
        E.emit(salu("s_lshl_b32", sT0, sRB, 8))
        E.emit(salu("s_lshl_b32", sT1, sW, 3))
        E.emit(salu("s_add_u32", sT0, sT0, sT1))
        E.emit(salu("s_sub_u32", sT0, sT0, 32))
        E.emit(valu("v_add_u32", t[5], sT0, r8))
        E.emit(salu("s_movk_i32", sT2, 896))
        E.emit(valu("v_mul_lo_u32", t[5], t[5], sT2))
        E.emit(salu("s_and_b32", sT1, sW, 1))
        E.emit(salu("s_lshl_b32", sT1, sT1, 2))
        E.emit(valu("v_xor_b32", t[6], sT1, ch))
        E.emit(valu("v_lshl_add_u32", vHX, t[6], 4, t[5]))
        E.emit(salu("s_lshl_b32", sHXD, sW, 10))
        E.emit(salu("s_add_u32", sHXD, sHXD, HX_BASE))
        E.emit(salu("s_lshr_b32", sT1, 0x4482, sHD))
        E.emit(salu("s_and_b32", sU, sT1, 1))
        E.emit(salu("s_lshl_b32", sT1, sU, 6))
        E.emit(salu("s_add_u32", sT4, sT4, sT1))
        E.emit(salu("s_add_u32", sT4, sT4, 768))
    else:
        E.emit(salu("s_lshl_b32", sT1, sJ, 7))
        E.emit(salu("s_add_u32", sT1, sT4, sT1))
        E.emit(salu("s_and_b32", sT0, sW, 1))
        E.emit(salu("s_lshl_b32", sT0, sT0, 5))
        E.emit(valu("v_add_u32", t[5], sT0, r8))
        E.emit(valu("v_mul_u32_u24", t[5], 3584, t[5]))
        E.emit(valu("v_bfe_u32", t[6], vLANE, 4, 1))
        E.emit(valu("v_lshlrev_b32", t[6], 1, t[6]))
        E.emit(valu("v_xor_b32", t[6], t[6], c8))
        E.emit(salu("s_and_b32", sT0, sW, 2))
        E.emit(salu("s_lshl_b32", sT0, sT0, 1))
        E.emit(valu("v_xor_b32", t[6], sT0, t[6]))
        E.emit(valu("v_lshl_add_u32", t[5], t[6], 4, t[5]))
        E.emit(valu("v_add_u32", vW[0], sT1, t[5]))
        E.emit(salu("s_lshl_b32", sWD, sW, 12))
        E.emit(salu("s_add_u32", sWD, sWD, WR_BASE))
        E.emit(salu("s_lshl_b32", sT1, sJ, 6))
        E.emit(salu("s_add_u32", sT4, sT4, sT1))
        E.emit(salu("s_add_u32", sT4, sT4, 512))


SRD_PF = SRD_GW
vPF = V(212)
sPFS = S(82)


def setup_kpf(E, typ):
    head = typ != "glu"
    t = [V(TMP + 8 + i) for i in range(4)]
    E.emit(salu("s_lshl_b32", sT0, sRB, 8))
    E.emit(salu("s_lshl_b32", sT1, sJ, 5))
    E.emit(salu("s_add_u32", sT0, sT0, sT1))
    E.emit(valu("v_and_b32", t[0], 31, vLANE))
    E.emit(valu("v_add_u32", t[0], sT0, t[0]))
    E.emit(valu("v_mul_u32_u24", t[0], 896, t[0]))
    pitch = 2688 if head else 3584
    E.emit(salu("s_and_b32", sT0, sRB, 3))
    E.emit(salu("s_lshl_b32", sT0, sT0, 4))
    E.emit(valu("v_bfe_u32", t[1], vLANE, 1, 4))
    E.emit(valu("v_add_u32", t[1], sT0, t[1]))
    E.emit(valu("v_mul_u32_u24", t[1], pitch, t[1]))
    E.emit(valu("v_and_b32", t[2], 1, vLANE))
    if head:
        E.emit(valu("v_mul_u32_u24", t[2], 60, t[2]))
        E.emit(salu("s_mul_i32", sT1, sHD, 56))
        E.emit(salu("s_mul_i32", sT0, sW, 896))
        E.emit(salu("s_add_u32", sT1, sT1, sT0))
        E.emit(salu("s_sub_u32", sT1, sT1, 896))
        E.emit(valu("v_add_u32", t[1], t[1], t[2]))
        E.emit(valu("v_add_u32", t[1], sT1, t[1]))
    else:
        E.emit(salu("s_mul_i32", sT1, sCQ, 896))
        E.emit(salu("s_lshl_b32", sT0, sJ, 7))
        E.emit(salu("s_add_u32", sT1, sT1, sT0))
        E.emit(salu("s_sub_u32", sT0, sT4, sT1))
        E.emit(valu("v_mul_lo_u32", t[2], t[2], sT0))
        E.emit(valu("v_add_u32", t[1], t[1], t[2]))
        E.emit(valu("v_add_u32", t[1], sT1, t[1]))
    E.emit(scmp("s_cmp_eq_u32", sW, 0))
    E.emit(I("s_cselect_b64 vcc, -1, 0", (), regset("vcc"), "salu"))
    E.emit(valu("v_cndmask_b32", vPF, t[1], t[0], "vcc"))
    E.emit(salu("s_mov_b32", sPFS, 64 * pitch))
    E.emit(salu("s_cselect_b32", sPFS, 128, sPFS))


def kpf(k):
    if k == 0:
        return [buf_load(vPFD, vPF, SRD_KPF, 0, 0, Opt.ldk)]
    return [salu("s_mul_i32", sSO, sPFS, k), buf_load(vPFD, vPF, SRD_KPF, sSO, 0, Opt.ldk)]


SRD_KPF = SRD_OUT


def setup_late(typ):
    head = typ != "glu"
    t = [V(TMP + i) for i in range(12)]
    r8, c8 = t[0], t[1]
    items = []
    e = items.append
    m, hf, sw, base = t[5], t[6], t[7], t[8]
    e(valu("v_and_b32", m, 31, vLANE))
    e(valu("v_lshrrev_b32", hf, 5, vLANE))
    e(valu("v_bfe_u32", sw, m, 1, 3))
    e(valu("v_lshlrev_b32", base, 7, m))
    e(valu("v_xor_b32", sw, sw, hf))
    for ee in range(4):
        e(valu("v_xor_b32", t[9], 2 * ee, sw))
        e(valu("v_lshl_add_u32", t[9], t[9], 4, base))
        e(valu("v_add_u32", vXR[ee], sXB, t[9]))
    if head:
        e(salu("s_lshl_b32", sT0, sW, 1))
        e(valu("v_xor_b32", t[9], sT0, sw))
        e(valu("v_lshl_add_u32", t[9], t[9], 4, base))
        e(valu("v_add_u32", vHXR, HX_BASE, t[9]))
    grp, r4, c4, krow = t[5], t[7], t[8], t[9]
    e(valu("v_bfe_u32", grp, vLANE, 4, 1))
    e(valu("v_bfe_u32", r4, vLANE, 2, 2))
    e(valu("v_and_b32", c4, 3, vLANE))
    e(valu("v_lshl_add_u32", krow, hf, 3, r4))
    if head:
        e(valu("v_mul_u32_u24", t[10], 192, krow))
        e(valu("v_lshl_add_u32", t[10], grp, 5, t[10]))
        e(valu("v_lshl_add_u32", t[10], c4, 3, t[10]))
        e(valu("v_add_u32", vWR, WR_BASE, t[10]))
        e(salu("s_mul_i32", sT0, sW, 3072))
        e(valu("v_add_u32", vWH, sT0, vWR))
        e(valu("v_lshlrev_b32", t[10], 4, hf))
        e(valu("v_add_u32", vGW, GW_BASE, t[10]))
        e(salu("s_mov_b32", S(sGMASK[1]), 1 << 28))
        e(salu("s_mov_b32", S(sGMASK[1] + 1), 1 << 28))
    else:
        e(valu("v_lshlrev_b32", t[10], 7, krow))
        e(valu("v_lshl_add_u32", t[10], grp, 13, t[10]))
        e(valu("v_lshl_add_u32", t[10], c4, 3, t[10]))
        e(valu("v_add_u32", t[10], WR_BASE, t[10]))
        e(valu("v_lshrrev_b32", t[11], 1, r4))
        e(valu("v_lshl_add_u32", t[11], grp, 1, t[11]))
        for n in range(4):
            e(valu("v_xor_b32", t[3], n, t[11]))
            e(valu("v_lshl_add_u32", vWR4[n], t[3], 5, t[10]))
    e(valu("v_lshlrev_b32", t[10], 6, krow))
    e(valu("v_lshl_add_u32", t[10], c4, 3, t[10]))
    e(valu("v_lshl_add_u32", t[10], grp, 12, t[10]))
    e(valu("v_lshl_add_u32", vW2R[0][0], grp, 5, t[10]))
    e(valu("v_xor_b32", t[11], 1, grp))
    e(valu("v_lshl_add_u32", vW2R[1][0], t[11], 5, t[10]))
    e(valu("v_add_u32", vW2R[0][1], 2 * XW, vW2R[0][0]))
    e(valu("v_add_u32", vW2R[1][1], 2 * XW, vW2R[1][0]))
    return items


def setup_fill(typ):
    head = typ != "glu"
    t = [V(TMP + i) for i in range(12)]
    r8, c8 = t[0], t[1]
    items = []
    e = items.append
    e(salu("s_and_b32", sT0, sW, 1))
    e(salu("s_lshl_b32", sT0, sT0, 5))
    e(salu("s_and_b32", sT1, sW, 2))
    e(valu("v_lshrrev_b32", t[5], 2, vLANE))
    e(valu("v_add_u32", t[5], sT0, t[5]))
    e(valu("v_mul_u32_u24", t[5], 3584, t[5]))
    e(valu("v_and_b32", t[6], 3, vLANE))
    e(valu("v_xor_b32", t[6], sT1, t[6]))
    e(valu("v_lshl_add_u32", t[5], t[6], 4, t[5]))
    e(valu("v_add_u32", vW2, sT4, t[5]))
    e(salu("s_lshl_b32", sW2D, sW, 11))
    if not head:
        e(salu("s_lshl_b32", sP2O, sJ, 12))
        e(salu("s_sub_u32", sP2O, 24 * 2048, sP2O))
    else:
        e(salu("s_sub_u32", sP2O, sU, sJ))
        e(salu("s_lshl_b32", sP2O, sP2O, 12))
        e(salu("s_add_u32", sP2O, sP2O, 24 * 2048))
    e(salu("s_lshl_b32", sT0, sRB, 2))
    e(salu("s_add_u32", sT0, sT0, sW))
    e(salu("s_mul_i32", sT0, sT0, 144))
    e(salu("s_mul_i32", sT1, sCQ, 36))
    e(salu("s_add_u32", sT0, sT0, sT1))
    if head:
        e(salu("s_lshl_b32", sT1, sJ, 1))
        e(salu("s_add_u32", sT0, sT0, 8))
    else:
        e(salu("s_lshl_b32", sT1, sJ, 2))
    e(salu("s_add_u32", sT0, sT0, sT1))
    e(salu("s_lshl_b32", sT0, sT0, 11))
    e(valu("v_add_u32", vST, sT0, vL16))
    e([salu("s_mov_b32", sT0, 1664525), valu("v_mul_lo_u32", V(vTAG[1]), V(vTAG[1]), sT0)])
    e(valu("v_add_u32", V(vTAG[1]), 1013904223, V(vTAG[1])))
    e([salu("s_mov_b32", sT0, 22695477), valu("v_mul_lo_u32", V(vTAG[1] + 1), V(vTAG[1] + 1), sT0)])
    e(valu("v_add_u32", V(vTAG[1] + 1), 1, V(vTAG[1] + 1)))
    e([scmp("s_cmp_gt_u32", sJ, 3), salu("s_cselect_b32", sT0, 1, 0), salu("s_sub_u32", sJC, sJ, sT0)])
    e(valu("v_bfe_u32", t[5], vLANE, 4, 1))
    e(valu("v_lshlrev_b32", t[5], 2, t[5]))
    e(valu("v_xor_b32", t[5], t[5], c8))
    e(valu("v_mul_u32_u24", t[6], 896, r8))
    e(valu("v_lshl_add_u32", t[6], t[5], 4, t[6]))
    e(salu("s_lshl_b32", sT0, sJC, 7))
    e(salu("s_mul_i32", sT1, sW, 112 * 896))
    e(salu("s_add_u32", sT1, sT1, sT0))
    e(valu("v_add_u32", vBo, sT1, t[6]))
    e(salu("s_mul_i32", sT1, sW, 448 * 896))
    e(salu("s_add_u32", sT1, sT1, sT0))
    e(valu("v_add_u32", vBd, sT1, t[6]))
    e(salu("s_lshl_b32", sT0, sRB, 2))
    e(salu("s_add_u32", sT0, sT0, sCQ))
    e(salu("s_lshl_b32", sT0, sT0, 2))
    e(salu("s_add_u32", sT0, sT0, sW))
    e(salu("s_lshl_b32", sT0, sT0, 7))
    e(salu("s_add_u32", sT0, sT0, FLAG_OFF))
    e(valu("v_and_b32", t[5], 15, vLANE))
    e(valu("v_lshlrev_b32", t[5], 3, t[5]))
    e(valu("v_add_u32", vFP, sT0, t[5]))
    e(salu("s_lshl_b32", sT0, sRB, 2))
    e(salu("s_add_u32", sT0, sT0, sCQ))
    e(salu("s_mul_i32", sT0, sT0, 144))
    e(salu("s_mul_i32", sT1, sW, 36))
    e(salu("s_add_u32", sT0, sT0, sT1))
    e(salu("s_lshl_b32", sT0, sT0, 11))
    e(salu("s_mul_i32", sT1, sJC, 37))
    e(valu("v_min_u32", t[5], 36, vLANE))
    e(valu("v_add_u32", t[5], sT1, t[5]))
    e(valu("v_min_u32", t[5], 255, t[5]))
    e(valu("v_lshlrev_b32", t[5], 7, t[5]))
    e(valu("v_add_u32", vPAe, sT0, t[5]))
    e(salu("s_mul_i32", sTOPB, sW, 3584))
    e(salu("s_add_u32", sTOPB, sTOPB, TOP_BASE))
    e(salu("s_mul_i32", sWRB, sW, 12288))
    e(salu("s_add_u32", sWRB, sWRB, WR_BASE))
    if not Opt.kpf:
        items += srd_items(SRD_OUT, P_OUT, 2048 * 896)
    items += srd_items(SRD_WD, P_WD, 1792 * 896)
    e(salu("s_lshr_b32", sT0, sWG, 3))
    e(salu("s_and_b32", sT1, sWG, 7))
    e(salu("s_lshl_b32", sT1, sT1, 2))
    e(salu("s_add_u32", sT0, sT0, sT1))
    e(salu("s_and_b32", sT0, sT0, 31))
    e(salu("s_lshl_b32", sT0, sT0, 2))
    e(salu("s_add_u32", sT0, sT0, sW))
    e(valu("v_min_u32", t[6], 24, vLANE))
    e(valu("v_lshlrev_b32", t[6], 7, t[6]))
    e(salu("s_mul_i32", sT1, sT0, 98 * 128))
    e(valu("v_add_u32", vPW[0], sT1, t[6]))
    e(salu("s_mul_i32", sT1, sT0, 25 * 128))
    e(valu("v_add_u32", vPW[1], sT1, t[6]))
    if head:
        e(valu("v_mov_b32", vNEG, NEGBIG))
        e(salu("s_mov_b32", sC, CSC))
        e(salu("s_mov_b32", S(sLOMASK[1]), -1))
        e(salu("s_mov_b32", S(sLOMASK[1] + 1), 0))
        e(salu("s_or_b32", sT0, sRB, sW))
        e([scmp("s_cmp_eq_u32", sT0, 0), salu("s_cselect_b32", S(sFIRST[1]), 0, -1),
           salu("s_cselect_b32", S(sFIRST[1] + 1), 0, -1)])
        e(salu("s_mul_i32", sT0, sW, 6144))
        e(salu("s_add_u32", sT0, sT0, HP_BASE))
        e(valu("v_add_u32", vHP, sT0, vL16))
        e(salu("s_lshl_b32", sT0, sW, 10))
        e(salu("s_add_u32", sT0, sT0, HP_BASE))
        e(valu("v_add_u32", vHPK, sT0, vL16))
        e(salu("s_lshr_b32", sT0, sW, 1))
        e(salu("s_lshl_b32", sT0, sT0, 10))
        e(salu("s_and_b32", sT1, sW, 1))
        e(salu("s_lshl_b32", sT1, sT1, 3))
        e(salu("s_add_u32", sT0, sT0, sT1))
        e(salu("s_add_u32", sT1, sT0, HP_BASE + 4096))
        e(valu("v_add_u32", vHPV, sT1, vL16))
        e(salu("s_add_u32", sT1, sT0, HS_BASE))
        e(valu("v_add_u32", vHSK, sT1, vL16))
        e(salu("s_lshl_b32", sT1, sW, 2))
        e(salu("s_add_u32", sT1, sT1, HS_BASE + 2048))
        e(valu("v_add_u32", vHSV, sT1, vL16))
        e(salu("s_mul_i32", sT1, sW, 3072))
        e(salu("s_add_u32", sT1, sT1, HS_BASE))
        e(valu("v_add_u32", vHSI, sT1, vL16))
        if typ == "h0":
            items += mask_items(128)
    return items


def mask_items(M):
    its = []
    for r in range(24):
        if r < 16:
            fn = lambda l, r=r: ((l & 31) - ((r & 3) + 8 * (r >> 2) + 4 * (l >> 5))) in range(0, 16, 2)
        else:
            fn = lambda l, r=r - 8: ((l & 31) - ((r & 3) + 8 * (r >> 2) + 4 * (l >> 5)) + 32) in range(0, 16, 2)
        mk = lane_mask(fn) ^ ((1 << 64) - 1)
        its.append([I(f"s_mov_b32 vcc_lo, 0x{mk & 0xffffffff:x}", (), regset("vcc"), "salu"),
                    I(f"s_mov_b32 vcc_hi, 0x{mk >> 32:x}", (), regset("vcc"), "salu"),
                    valu("v_cndmask_b32", V(M + r), 0, vNEG, "vcc")])
    return its


def dma_item(m0_base, m0_off, voff, srd, soff, tag, fl=None):
    fl = Opt.ld1 if fl is None else fl
    it = [salu("s_add_u32", "m0", m0_base, m0_off) if m0_base is not None else salu("s_mov_b32", "m0", m0_off)]
    if isinstance(soff, tuple):
        sreg, mul, add = soff
        if mul != 1:
            it.append(salu("s_mul_i32", sSO, sreg, mul))
            if add:
                it.append(salu("s_add_u32", sSO, sSO, add))
            it.append(dma(voff, srd, sSO, tag, fl))
        elif add:
            it.append(salu("s_add_u32", sSO, sreg, add))
            it.append(dma(voff, srd, sSO, tag, fl))
        else:
            it.append(dma(voff, srd, sreg, tag, fl))
    elif soff:
        it.append(salu("s_mov_b32", sSO, soff))
        it.append(dma(voff, srd, sSO, tag, fl))
    else:
        it.append(dma(voff, srd, 0, tag, fl))
    return it


def load_group(kb, typ):
    head = typ != "glu"
    slot = kb % 3
    tag = f"L{kb}"
    xs = [dma_item(sXB, slot * 8192 + i * 1024, vXo if i & 1 else vXe, SRD_X, (sKX[kb], 1, (i >> 1) * 14336), tag) for i in range(8)]
    if head:
        ws = [dma_item(sWD, slot * WR_SLOT_H + q * 1024, vW[q], SRD_QKV, (sKX[kb], 1344, 0), tag) for q in range(3)]
        ws.append(dma_item(sHXD, slot * 4096, vHX, SRD_X, (sKX[kb], 1, 0), tag))
    else:
        ws = [dma_item(sWD, slot * WR_SLOT_G + q * 1024, vW[0], SRD_GU, (sKX[kb], 1792, q * 8 * 3584), tag) for q in range(4)]
    its = []
    for q in range(4):
        its += [ws[q]] + xs[2 * q:2 * q + 2]
    return its


def load_group2(kbs, tag, typ):
    its = []
    for kb2 in kbs:
        for q in range(2):
            its.append(dma_item(sW2D, pieces(kb2) + q * 1024, vW2, SRD_GU, (sKX[kb2], 1792, 16 * q * 3584), tag))
    return its


def xfrag(s, t):
    return A((s * 2 + t) * 4, 4)


def wf1(buf, n):
    return A(224 + buf * (12 if Opt.n1 == 3 else 16) + n * 4, 4)


def wf2(buf, n):
    return A(224 + buf * 8 + n * 4, 4)


def acc1(n, t):
    return V((n * 2 + t) * 16, 16)


def acc2(n, t):
    return V(128 + (n * 2 + t) * 16, 16)


def reads1(s, typ):
    head = typ != "glu"
    kb, e = divmod(s, 4)
    slot = kb % 3
    buf = s & 1
    its = []

    def wr(n):
        f = wf1(buf, n)
        if not head:
            o = slot * WR_SLOT_G + e * 2048
            return [ds_read(64, A(f[1], 2), vWR4[n], o, tr=True), ds_read(64, A(f[1] + 2, 2), vWR4[n], o + 512, tr=True)]
        o = slot * WR_SLOT_H + e * 3072 + n * 64
        r = [ds_read(64, A(f[1], 2), vWR, o, tr=True), ds_read(64, A(f[1] + 2, 2), vWR, o + 768, tr=True)]
        if n == 0:
            r.append([set_exec(sGMASK), ds_read(128, f, vGWs, e * 32), set_exec(-1)])
        return r
    if head and e == 0:
        its.append(valu("v_add_u32", vGWs, sKX[kb], vGW))
    its.append(ds_read(128, xfrag(s, 0), vXR[e], slot * 8192))
    its += wr(0)
    its.append(ds_read(128, xfrag(s, 1), vXR[e], slot * 8192 + 4096))
    for n in range(1, Opt.n1):
        its += wr(n)
    return its


def reads2(s, typ):
    kb2, e = divmod(s, 4)
    buf = s & 1
    base = pieces(kb2)
    hi = base >= 2 * XW
    if hi:
        base -= 2 * XW
    its = []
    for n in range(2):
        f = wf2(buf, n)
        o = base + e * 1024
        its.append(ds_read(64, A(f[1], 2), vW2R[n][hi], o, tr=True))
        its.append(ds_read(64, A(f[1] + 2, 2), vW2R[n][hi], o + 256, tr=True))
    return its


def glu_epi(acc, koff, tag):
    b = acc[1]
    its = []
    for e in range(8):
        its.append(valu("v_mul_f32", V(b + e), -LOG2E, V(b + e)))
    for e in range(8):
        its.append(valu("v_exp_f32", V(b + e), V(b + e)))
    for e in range(8):
        its.append(valu("v_add_f32", V(b + e), 1.0, V(b + e)))
    for e in range(8):
        its.append(valu("v_rcp_f32", V(b + e), V(b + e)))
    for e in range(8):
        its.append(valu("v_mul_f32", V(b + e), V(b + e), V(b + 8 + e)))
    for e in range(4):
        its.append(valu("v_cvt_pk_bf16_f32", V(b + 8 + e), V(b + 2 * e), V(b + 2 * e + 1)))
    its.append(store_frag(V(b + 8, 4), koff, tag))
    return its


def store_frag(src, koff, tag):
    fl = Opt.st1
    if isinstance(koff, tuple):
        return buf_store(src, vST, SRD_WS, koff[0], koff[1], fl, tag)
    if koff < 4096:
        return buf_store(src, vST, SRD_WS, 0, koff, fl, tag)
    return [salu("s_mov_b32", sSO2, koff & ~4095), buf_store(src, vST, SRD_WS, sSO2, koff & 4095, fl, tag)]


def flag_set(p, need):
    st = buf_store(vTAG, vFL, SRD_WS, 0, 0, " sc1", None, need=need)
    w = I("s_nop 0", kind="nop", need=need)
    return [w, set_exec(1 << p), st, set_exec(-1)]


def lane_mask(fn):
    m = 0
    for l in range(64):
        if fn(l):
            m |= 1 << l
    return m


def pack_inplace(dst, src, n):
    return [valu("v_cvt_pk_bf16_f32", V(dst + i), V(src + 2 * i), V(src + 2 * i + 1)) for i in range(n)]


def dsw(width, addr, src, off, tag):
    i = ds_write(width, addr, src, off, tag=tag)
    i.cost = {128: 3, 64: 2, 32: 1}[width]
    return i


def head_epi(typ):
    its = []
    a = its.append
    Q0, Q1, K0, K1, V0, V1 = 0, 16, 32, 48, 64, 80
    HK, HV = 96, 112
    M = 128 if typ == "h0" else 96
    tg = [V(192), V(193)]
    mx, mx2, sm, sm2, nb, rinv, rz = [V(120 + i) for i in range(7)]
    a(valu("v_mov_b32", tg[0], V(Q0 + 12)))
    a(valu("v_mov_b32", tg[1], V(Q1 + 12)))
    pk = pack_inplace(K0, K0, 8) + pack_inplace(K0 + 8, K1, 8) + pack_inplace(V0, V0, 8) + pack_inplace(V0 + 8, V1, 8)
    wr = [dsw(128, vHP, V(HK + 4 * q, 4), q * 1024, "hp") for q in range(4)]
    wr += [dsw(128, vHP, V(HV + 8 + 4 * q, 4), (4 + q) * 1024, "hp") for q in range(2)]
    for k, x in enumerate(pk):
        a(x)
        if k % 5 == 4 and wr:
            a(wr.pop(0))
    its.extend(wr)
    qp_ = pack_inplace(Q0, Q0, 8) + pack_inplace(Q0 + 8, Q1, 8)
    wr = [dsw(128, vHSI, V(K0 + 8, 4), 3072, "hp"), dsw(128, vHSI, V(K0 + 12, 4), 3072 + 1024, "hp"),
          dsw(128, vHSI, V(V0 + 12, 4), 3072 + 2048, "hp")]
    for k, x in enumerate(qp_):
        if k % 5 == 0 and wr:
            a(wr.pop(0))
        a(x)
    for t in range(2):
        for r in (6, 7):
            a(valu("v_cndmask_b32", V(Q0 + 8 * t + r), 0, V(Q0 + 8 * t + r), sLOMASK))
    a(barrier(need=("hp",)))
    T, TV = K1, TMP - 16
    for p in range(4):
        a(ds_read(128, V(T + 4 * p, 4), vHPK, p * 6144))
        a(ds_read(64, V(TV + 16 + 2 * p, 2), vHPV, p * 6144))
    if typ != "h0":
        its.extend(mask_items(M))
    Sd, Sp, O = V1, Q1, K1

    def qk(t, kprev):
        kp = [V(K0 + 8 * t, 4), V(K0 + 8 * t + 4, 4)]
        qp = [V(Q0 + 8 * t, 4), V(Q0 + 8 * t + 4, 4)]
        a(mfma(V(Sd, 16), kp[0], qp[0], V(M, 16)))
        a(mfma(V(Sp, 16), kprev[0], qp[0], V(M + 8, 16)))
        a(mfma(V(Sd, 16), kp[1], qp[1], V(Sd, 16)))
        a(mfma(V(Sp, 16), kprev[1], qp[1], V(Sp, 16)))

    def softmax_pv(t, vprev):
        vt = [V(V0 + 8 * t, 4), V(V0 + 8 * t + 4, 4)]
        vals = [V(Sd + r) for r in range(16)] + [V(Sp + r) for r in range(8, 16)]
        a(valu("v_max3_f32", mx, vals[0], vals[1], vals[2]))
        a(valu("v_max3_f32", mx2, vals[3], vals[4], vals[5]))
        rest = vals[6:]
        k = 0
        while rest:
            tgt = mx if k % 2 == 0 else mx2
            a(valu("v_max3_f32", tgt, tgt, rest[0], rest[1]))
            rest = rest[2:]
            k += 1
        a(valu("v_max_f32", mx, mx, mx2))
        a(valu("v_mov_b32", mx2, mx))
        g = tg[t]
        a(valu("v_mul_f32", g, -LOG2E, g))
        a(valu("v_exp_f32", g, g))
        a(permswap(mx, mx2))
        a(valu("v_max_f32", mx, mx, mx2))
        a(valu("v_mul_f32", nb, -CSC, mx))
        for v_ in vals:
            a(valu("v_fma_f32", v_, v_, sC, nb))
        for v_ in vals:
            a(valu("v_exp_f32", v_, v_))
        a(valu("v_add_f32", g, 1.0, g))
        a(valu("v_add_f32", sm, vals[0], vals[1]))
        a(valu("v_add_f32", sm2, vals[2], vals[3]))
        for k, v_ in enumerate(vals[4:]):
            tgt = sm if k % 2 == 0 else sm2
            a(valu("v_add_f32", tgt, tgt, v_))
        its.extend(pack_inplace(Sd, Sd, 8))
        its.extend(pack_inplace(Sp + 8, Sp + 8, 4))
        a(valu("v_add_f32", sm, sm, sm2))
        a(valu("v_mov_b32", sm2, sm))
        a(mfma(V(O, 16), vt[0], V(Sd, 4), 0))
        a(mfma(V(O, 16), vt[1], V(Sd + 4, 4), V(O, 16)))
        a(mfma(V(O, 16), vprev, V(Sp + 8, 4), V(O, 16)))
        a(permswap(sm, sm2))
        a(valu("v_add_f32", sm, sm, sm2))
        a(valu("v_rcp_f32", rinv, sm))
        a(valu("v_rcp_f32", g, g))
        a(valu("v_cndmask_b32", rz, 0, rinv, sLOMASK))
        a(buf_store(g, vHP, SRD_WS, 0, t * 256, Opt.st1, "e1"))

    def finish(t):
        for r in range(16):
            a(valu("v_mul_f32", V(O + r), V(O + r), rz if r >= 12 else rinv))
        its.extend(pack_inplace(O, O, 8))
        a(store_frag(V(O, 4), t * 1024, "e1"))
        a(store_frag(V(O + 4, 4), 2048 + t * 1024, "e1"))

    qk(1, [V(K0, 4), V(K0 + 4, 4)])
    for i in range(4):
        a(valu("v_add_f32", V(T + i), V(T + i), V(T + 4 + i)))
        a(valu("v_add_f32", V(T + 8 + i), V(T + 8 + i), V(T + 12 + i)))
    for i in range(2):
        a(valu("v_add_f32", V(TV + 16 + i), V(TV + 16 + i), V(TV + 18 + i)))
        a(valu("v_add_f32", V(TV + 20 + i), V(TV + 20 + i), V(TV + 22 + i)))
    for i in range(4):
        a(valu("v_add_f32", V(T + i), V(T + i), V(T + 8 + i)))
    for i in range(2):
        a(valu("v_add_f32", V(TV + 16 + i), V(TV + 16 + i), V(TV + 20 + i)))
    a(valu("v_cvt_pk_bf16_f32", V(T + 0), V(T + 0), V(T + 1)))
    a(valu("v_cvt_pk_bf16_f32", V(T + 1), V(T + 2), V(T + 3)))
    a(valu("v_cvt_pk_bf16_f32", V(TV + 16), V(TV + 16), V(TV + 17)))
    a(dsw(64, vHSK, V(T, 2), 0, "hs"))
    a(dsw(32, vHSV, V(TV + 16), 0, "hs"))
    a([salu("s_lshl_b32", sT0, sRB, 2), salu("s_add_u32", sT0, sT0, sW), salu("s_lshl_b32", sT0, sT0, 2),
       salu("s_add_u32", sT0, sT0, sCQ)])
    a([salu("s_lshl_b32", sT0, sT0, 2), salu("s_add_u32", sT0, sT0, sJ), salu("s_lshl_b32", sT0, sT0, 9),
       salu("s_add_u32", sT0, sT0, G_OFF - 4 * 512)])
    a(valu("v_lshlrev_b32", vHP, 2, vLANE))
    a(valu("v_add_u32", vHP, sT0, vHP))
    softmax_pv(1, V(V0 + 4, 4))
    a(barrier(need=("hs",)))
    a(ds_read(128, A(240, 4), vHSI, 0))
    a(ds_read(128, A(244, 4), vHSI, 1024))
    a(ds_read(128, A(248, 4), vHSI, 2048))
    a(I("s_mov_b64 vcc, s[0:1]", regset(sFIRST), regset("vcc"), "salu"))
    for r in range(16, 24):
        a(valu("v_cndmask_b32", V(M + r), vNEG, V(M + r), "vcc"))
    qk(0, [A(240, 4), A(244, 4)])
    finish(1)
    softmax_pv(0, A(248, 4))
    return its, (lambda: (its.clear(), finish(0), list(its))[2])


def chunk(slot):
    if slot < 16:
        return ("f", slot)
    if slot < 24:
        return ("o", slot - 16)
    return ("f", slot - 8)


PHMASK = [0x000F, 0x00F0, 0xFF00]
PHSTART = [0, 16, 24]
PHEND = [16, 24, 36]


vFP, vFD = V(216), V(218, 2)
vPW = [V(213), V(214)]
vPAe = V(215)
vPFD = V(217)


def poll():
    return buf_load(vFD, vFP, SRD_WS, 0, 0, " sc1")


def blocks(typ):
    x0 = [("x", i * 2048) for i in range(4)]
    x1 = [("x", 8192 + i * 2048) for i in range(4)]
    x2 = [("x", 16384 + i * 2048) for i in range(4)]
    top = [("t", 0)]
    wr = [("w", i * 2048) for i in range(6)]
    if typ == "h0":
        return top + x0 + x1 + x2 + wr, 13, 13
    if typ == "h2":
        return top + x0 + x1 + x2 + wr, 5, 9
    return top + x0 + wr + x1 + x2, 11, 15


def b_dma(i, typ):
    kind, ks = chunk(i)
    blk = blocks(typ)[0]
    reg, off = blk[i % len(blk)]
    base = {"x": sXB, "t": sTOPB, "w": sWRB}[reg]
    if kind == "o":
        row, vo, srd = 28 * (ks >> 1) + 16 * (ks & 1), vBo, SRD_WO
    else:
        row, vo, srd = 16 * ks, vBd, SRD_WD
    if Opt.nob:
        return []
    return [dma_item(base, off + h * 1024, vo, srd, (row + 8 * h) * 896, f"B{i}", Opt.ldb) for h in range(2)]


def gen_p1(E, typ):
    head = typ != "glu"
    Opt.n1 = 3 if head else 4
    n1, n2 = Opt.n1, (0 if typ == "h0" else 2)
    setup_early(E, typ)
    if Opt.kpf:
        setup_kpf(E, typ)
    E.emit(I("s_waitcnt lgkmcnt(0)", kind="wait"))
    stamp(E, 1, 1)
    if Opt.kpf:
        p = SRD_KPF[1]
        if head:
            o0, o1 = S(P_WQKV), S(P_WQKV + 1)
        else:
            E.emit(scmp("s_cmp_lt_u32", sW, 2))
            E.emit(salu("s_cselect_b32", S(p), S(P_WG), S(P_WU)))
            E.emit(salu("s_cselect_b32", S(p + 1), S(P_WG + 1), S(P_WU + 1)))
            o0, o1 = S(p), S(p + 1)
        E.emit(scmp("s_cmp_eq_u32", sW, 0))
        E.emit(salu("s_cselect_b32", S(p), S(P_X), o0))
        E.emit(salu("s_cselect_b32", S(p + 1), S(P_X + 1), o1))
        E.emit(salu("s_mov_b32", S(p + 2), 448 * (2688 if head else 3584)))
        E.emit(salu("s_cselect_b32", S(p + 2), 2048 * 896, S(p + 2)))
        E.emit(salu("s_mov_b32", S(p + 3), 0x20000))
        E.emit(kpf(0))
        E.emit(kpf(1))
    E.emit(srd_items(SRD_X, P_X, 2048 * 896))
    if head:
        E.emit(srd_items(SRD_QKV, P_WQKV, 448 * 2688))
    b = SRD_GU[1]
    E.emit(scmp("s_cmp_lt_u32", sW, 2))
    E.emit(salu("s_cselect_b32", S(b), S(P_WG), S(P_WU)))
    E.emit(salu("s_cselect_b32", S(b + 1), S(P_WG + 1), S(P_WU + 1)))
    E.emit(salu("s_mov_b32", S(b + 2), 448 * 3584))
    E.emit(salu("s_mov_b32", S(b + 3), 0x20000))
    E.emit(srd_items(SRD_WO, P_WO, 448 * 896))
    E.emit(salu("s_lshl_b32", sKX[0], sT5, 7))
    stamp(E, 2, 1)
    g0 = load_group(0, typ)
    for it in g0[:3]:
        E.emit(it)
    for kb in range(1, 7):
        E.emit(salu("s_add_u32", sKX[kb], sKX[kb - 1], 128))
        E.emit(scmp("s_cmp_eq_u32", sKX[kb], 896))
        E.emit(salu("s_cselect_b32", sKX[kb], 0, sKX[kb]))
    E.emit(srd_items(SRD_WS, P_WS, WS_BYTES))
    E.emit(buf_load(vTAG, vGA, SRD_WS, 0, 0, " sc1", tag="L0"))
    for it in g0[3:]:
        E.emit(it)
    if head:
        E.emit(srd_items(SRD_GW, P_GW, 896))
        E.emit(dma_item(None, GW_BASE, vL16, SRD_GW, 0, "L0"))
    stamp(E, 3, 1)
    if Opt.kpf:
        E.emit(kpf(2))
    for it in load_group(1, typ):
        E.emit(it)
    if Opt.kpf:
        E.emit(kpf(3))
    stamp(E, 4, 1)
    for it in setup_late(typ):
        E.emit(it)
    stamp(E, 1)
    stamp(E, 6, 1)
    E.wait_tags("L0")
    E.emit(barrier())
    stamp(E, 2)
    stamp(E, 7, 1)
    for it in reads1(0, typ):
        E.emit(it)

    fill = deque(setup_fill(typ))
    pend = deque(load_group(2, typ))
    HWK, HWV, HXF = V(192, 4), V(196, 4), A(248, 4)
    blk, npre0, npre = blocks(typ)
    for s in range(28):
        kb, e = divmod(s, 4)
        slot = kb % 3
        buf = s & 1
        ms = []
        for n in range(n1):
            for t in range(2):
                c = 0 if s == 0 else acc1(n, t)
                if head and n == 2:
                    ms.append(mfma(acc1(n, t), xfrag(s, t), wf1(buf, n), c))
                else:
                    ms.append(mfma(acc1(n, t), wf1(buf, n), xfrag(s, t), c))
        must = []
        pre = None
        hold = 0
        if head and e == 2:
            ms.append(mfma(V(96, 16), HWK, HXF, 0 if kb == 0 else V(96, 16)))
            ms.append(mfma(V(112, 16), HXF, HWV, 0 if kb == 0 else V(112, 16)))
        nxt = reads1(s + 1, typ) if s < 27 else (reads2(0, typ) if n2 else [])
        if e == 3:
            tagn = f"L{kb + 1}" if kb < 6 else "W2a"
            hold = 2

            def pre_fn(tagn=tagn):
                E._wait(None, 0)
                E.wait_tags(tagn)
                E.emit(barrier())
            pre = [pre_fn]
            if kb + 3 <= 6:
                pend.extend(load_group(kb + 3, typ))
            elif kb == 4 and n2:
                pend.extend(load_group2([0, 1, 2, 3], "W2a", typ))
            elif kb == 5 and n2:
                pend.extend(load_group2([4, 5, 6], "W2b", typ))
        must += nxt
        if head and e == 0:
            must.append(ds_read(128, HXF, vHXR, slot * 4096))
            for n, f in ((1, HWK), (2, HWV)):
                o = slot * WR_SLOT_H + n * 64
                must.append(ds_read(64, V(f[1], 2), vWH, o, tr=True))
                must.append(ds_read(64, V(f[1] + 2, 2), vWH, o + 768, tr=True))
        if s == 19:
            assert len(fill) <= (24 if typ == "h0" else 0), len(fill)
        if s == Opt.pfw and s:
            assert len(fill) <= (56 if head else 0), len(fill)
        if Opt.pfw > 0 and s >= Opt.pfw and (s - Opt.pfw) % Opt.pfstep == 0 and (s - Opt.pfw) // Opt.pfstep < 5:
            k = (s - Opt.pfw) // Opt.pfstep
            if k < 4:
                must.append(buf_load(vPFD, vPW[0], SRD_WD, 0, 0, Opt.ldpf) if k == 0 else
                            [salu("s_mov_b32", sSO2, k * 3200), buf_load(vPFD, vPW[0], SRD_WD, sSO2, 0, Opt.ldpf)])
            else:
                must.append(buf_load(vPFD, vPW[1], SRD_WO, 0, 0, Opt.ldpf))
        if Opt.kpf and s in (Opt.kpf, Opt.kpf + 3, Opt.kpf + 6):
            must.insert(0, kpf(4 + (s - Opt.kpf) // 3))
        if s == 12 and Opt.kpf:
            must += srd_items(SRD_OUT, P_OUT, 2048 * 896)
        steps_left = 4 if e == 3 else 3 - e
        ndma = math.ceil(len(pend) / steps_left)
        dm = [pend.popleft() for _ in range(ndma)]
        weave(E, ms, must, fill, hold=hold, pre=pre, dmas=dm, must_per_gap=Opt.rpg)
    assert not pend and not fill
    stamp(E, 3)
    if head:
        its, tail = head_epi(typ)
        fill.extend(its)
        fill.extend(tail())
    else:
        for n in range(4):
            for t in range(2):
                fill.extend(glu_epi(acc1(n, t), (n * 2 + t) * 1024, "e1"))
    done_at = None
    flagged = False
    nb_iss = 0
    if n2 == 0:
        while fill:
            put(E, fill.popleft())
        stamp(E, 4)
        while nb_iss < Opt.h0b:
            for it in b_dma(nb_iss, typ):
                E.emit(it)
            nb_iss += 1
        its = flag_set(0, ("e1",))
        its[1] = set_exec(3)
        E.emit(its)
        while nb_iss < npre:
            for it in b_dma(nb_iss, typ):
                E.emit(it)
            nb_iss += 1
        E.emit(poll())
        stamp(E, 5)
        stamp(E, 1, 2)
        return nb_iss
    for s in range(28):
        buf = s & 1
        ms = []
        for n in range(n2):
            for t in range(2):
                c = 0 if s == 0 else acc2(n, t)
                ms.append(mfma(acc2(n, t), wf2(buf, n), xfrag(s, t), c))
        must = reads2(s + 1, typ) if s < 27 else []
        hold, pre = 0, None
        if s == 15:
            hold = 1

            def pre_fn():
                E._wait(None, 0)
                E.wait_tags("W2b")
                E.emit(barrier())
            pre = [pre_fn]
        dm = []
        if done_at is not None:
            lim = npre if s > 15 else npre0
            per = math.ceil((npre - nb_iss) / max(1, 27 - s))
            while nb_iss < lim and per > 0:
                dm.extend(b_dma(nb_iss, typ))
                nb_iss += 1
                per -= 1
            if not flagged and s >= done_at + Opt.f1d:
                dm.append(flag_set(0, ("e1",)))
                flagged = True
        bud = Opt.budget2h if head else Opt.budget2
        weave(E, ms, must, fill, hold=hold, pre=pre, budget=bud, dmas=dm)
        if not fill and done_at is None:
            done_at = s
    stamp(E, 4)
    assert not fill
    epi = []
    for n in range(n2):
        for t in range(2):
            epi.append(glu_epi(acc2(n, t), (sP2O, (n * 2 + t) * 1024), "e2"))
    for k in range(max(len(x) for x in epi)):
        if k == Opt.poll0:
            if not flagged:
                E.emit(flag_set(0, ("e1",)))
                flagged = True
            E.emit(poll())
        for ep in epi:
            if k < len(ep):
                E.emit(ep[k])
    stamp(E, 5)
    stamp(E, 1, 2)
    return nb_iss


def diag_store(E, nst):
    if not Opt.diag:
        return
    E.emit(I("s_waitcnt lgkmcnt(0)", kind="wait"))
    E.lg = []
    E.emit(salu("s_lshl_b32", sT0, sWG, 2))
    E.emit(salu("s_add_u32", sT0, sT0, sW))
    E.emit(salu("s_lshl_b32", sT0, sT0, 6))
    E.emit(salu("s_add_u32", sT0, sT0, DIAG_OFF))
    E.emit(valu("v_mov_b32", V(1), sT0))
    for i in range(nst):
        E.emit(valu("v_mov_b32", V(2), S(sDIAG + 2 * i)))
        E.emit(buf_store(V(2), V(1), SRD_WS, 0, 4 * i))
        E.nop(2)


def gen_p2(E, typ, npre):
    head = typ != "glu"
    ACCH, ACCO = 0, 64
    vA, vG0, vG1, vRW, vRR, vO = [V(200 + i) for i in range(6)]
    t = [V(208 + i) for i in range(8)]
    vT = {(r, c): V(128 + k) for k, (r, c) in enumerate((r, c) for r in "xtw" for c in range(2))}
    BF = 136
    fl = Opt.ld2
    blk = blocks(typ)[0]
    NB = len(blk)
    D = Opt.D
    RA = 28
    lab = typ

    def publish_last():
        if typ == "h0":
            its = flag_set(0, ("e1",))
            its[1] = set_exec(3)
            return its
        return flag_set(1, ("e2",))

    if not head:
        E.emit(scmp("s_cmp_eq_u32", sJ, 3))
        E.emit(branch("s_cbranch_scc0", "L_p2_go"))
        sv = (list(E.vm), list(E.lg), list(E.hist))
        E.emit(publish_last())
        diag_store(E, 8)
        E.emit(I("s_endpgm", kind="branch"))
        E.label("L_p2_go")
        E.vm, E.lg, E.hist = sv
    E.emit(salu("s_lshl_b32", sT0, sRB, 2))
    E.emit(salu("s_add_u32", sT0, sT0, sCQ))
    E.emit(salu("s_mov_b32", sSPIN, 0))

    def check(ph):
        mask = PHMASK[ph]
        E.emit(valu("v_cmp_eq_u64", "vcc", vTAG, vFD))
        E.emit(I(f"s_and_b32 {rs(sT5)}, vcc_lo, 0x{mask:x}", regset("vcc"), regset(sT5), "salu"))
        E.emit(scmp("s_cmp_eq_u32", sT5, mask))
        E.emit(branch("s_cbranch_scc1", f"L_fl_ok_{lab}_{ph}"))
        E.label(f"L_fl_loop_{lab}_{ph}")
        E.raw("    s_sleep 4")
        E.raw(f"    buffer_load_dwordx2 {rs(vFD)}, {rs(vFP)}, {rs(SRD_WS)}, 0 offen sc1")
        E.raw("    s_waitcnt vmcnt(0)")
        E.raw(f"    v_cmp_eq_u64 vcc, {rs(vTAG)}, {rs(vFD)}")
        E.raw(f"    s_add_u32 {rs(sSPIN)}, {rs(sSPIN)}, 1")
        E.raw(f"    s_cmp_gt_u32 {rs(sSPIN)}, {Opt.spin}")
        E.raw(f"    s_cbranch_scc1 L_fl_ok_{lab}_{ph}")
        E.raw(f"    s_and_b32 {rs(sT5)}, vcc_lo, 0x{mask:x}")
        E.raw(f"    s_cmp_eq_u32 {rs(sT5)}, 0x{mask:x}")
        E.raw(f"    s_cbranch_scc0 L_fl_loop_{lab}_{ph}")
        E.label(f"L_fl_ok_{lab}_{ph}")

    E.emit(barrier(need=()))
    E.emit(salu("s_mul_i32", sT1, sT0, 144))
    E.emit(salu("s_mul_i32", sT2, sW, 36))
    E.emit(salu("s_add_u32", sT1, sT1, sT2))
    E.emit(salu("s_lshl_b32", sT1, sT1, 11))
    E.emit(valu("v_add_u32", vA, sT1, vL16))
    hf, r4, gi, ng = t[0], t[1], t[2], t[3]
    E.emit(valu("v_lshrrev_b32", hf, 5, vLANE))
    E.emit(valu("v_bfe_u32", r4, vLANE, 2, 2))
    E.emit(valu("v_bfe_u32", gi, vLANE, 4, 1))
    E.emit(valu("v_and_b32", t[4], 3, vLANE))
    E.emit(valu("v_lshl_add_u32", gi, gi, 2, t[4]))
    E.emit(valu("v_and_b32", t[4], 1, gi))
    E.emit(valu("v_lshrrev_b32", ng, 1, gi))
    E.emit(valu("v_lshl_add_u32", ng, t[4], 2, ng))
    E.emit(valu("v_lshl_add_u32", t[4], hf, 2, r4))
    E.emit(valu("v_lshlrev_b32", t[4], 7, t[4]))
    E.emit(valu("v_lshl_add_u32", t[4], ng, 3, t[4]))
    E.emit(valu("v_lshrrev_b32", t[5], 1, r4))
    E.emit(valu("v_lshl_add_u32", t[6], t[5], 6, t[4]))
    E.emit(valu("v_xor_b32", t[5], 1, t[5]))
    E.emit(valu("v_lshl_add_u32", t[7], t[5], 6, t[4]))
    for r, sb in (("x", sXB), ("t", sTOPB), ("w", sWRB)):
        E.emit(valu("v_add_u32", vT[(r, 0)], sb, t[6]))
        E.emit(valu("v_add_u32", vT[(r, 1)], sb, t[7]))

    vPA = [V(152), V(153), V(154)]
    for ph in range(3):
        nl = (PHEND[ph] - PHSTART[ph]) * 16
        per = -(-nl // 7)
        E.emit(salu("s_mul_i32", sT2, sJC, per))
        E.emit(valu("v_min_u32", t[4], per - 1, vLANE))
        E.emit(valu("v_add_u32", t[4], sT2, t[4]))
        E.emit(valu("v_min_u32", t[4], nl - 1, t[4]))
        E.emit(valu("v_lshlrev_b32", t[4], 7, t[4]))
        E.emit(salu("s_add_u32", sT2, sT1, PHSTART[ph] * 2048))
        E.emit(valu("v_add_u32", vPA[ph], sT2, t[4]))

    def areg(i):
        return A((i % 32) * 8, 8)

    def a_loads(i):
        f, r, _ = areg(i)
        so = (i * 2048) & ~4095
        io = (i * 2048) & 4095
        its = []
        if so:
            its.append(salu("s_mov_b32", sSO2, so))
        sof = sSO2 if so else 0
        its.append(buf_load((f, r, 4), vA, SRD_WS, sof, io, fl))
        its.append(buf_load((f, r + 4, 4), vA, SRD_WS, sof, io + 1024, fl))
        return its

    def b_reads(i):
        reg, off = blk[i % NB]
        o = BF + (i & 1) * 8
        its = []
        for c in range(2):
            its.append(ds_read(64, V(o + 4 * c, 2), vT[(reg, c)], off, tr=True, need=(f"B{i}",)))
            its.append(ds_read(64, V(o + 4 * c + 2, 2), vT[(reg, c)], off + 1024, tr=True, need=(f"B{i}",)))
        return its

    published = [False]
    nxt = {"a": 0, "b": npre}

    def phase(ph):
        if ph == 0:
            stamp(E, 2, 2)
        check(ph)
        stamp(E, 3 + ph, 2)
        if Opt.pfa:
            E.emit(buf_load(vPFD, vPA[ph], SRD_WS, 0, 0, " sc1"))
        if ph == 1:
            E.emit(salu("s_lshl_b32", sT1, sT0, 2))
            E.emit(salu("s_add_u32", sT1, sT1, sW))
            E.emit(salu("s_lshl_b32", sT1, sT1, 11))
            E.emit(salu("s_add_u32", sT1, sT1, G_OFF + 128))
            E.emit(valu("v_and_b32", t[0], 31, vLANE))
            E.emit(valu("v_lshlrev_b32", t[1], 2, t[0]))
            E.emit(valu("v_add_u32", t[1], sT1, t[1]))
            E.emit(buf_load(vG0, t[1], SRD_WS, 0, 0, " sc1"))
            E.emit(buf_load(vG1, t[1], SRD_WS, 0, 256, " sc1"))

    def issue_a(upto):
        while nxt["a"] < min(upto, 36):
            i = nxt["a"]
            if i in PHSTART:
                phase(PHSTART.index(i))
            E.emit(a_loads(i))
            nxt["a"] += 1
            if i + Opt.pollahead in PHSTART[1:]:
                E.emit(poll())
            if not published[0] and i >= Opt.pubat:
                E.emit(publish_last())
                published[0] = True

    def issue_b(upto):
        while nxt["b"] < min(upto, 36):
            for it in b_dma(nxt["b"], typ):
                E.emit(it)
            nxt["b"] += 1

    if typ == "h0":
        published[0] = True
    issue_a(4)
    issue_b(min(NB, npre + Opt.bfirst))
    issue_a(D)
    E.emit(salu("s_lshl_b32", sT1, sW, 12))
    E.emit(valu("v_add_u32", vRW, sT1, vL16))
    E.emit(salu("s_lshl_b32", sT1, sW, 14))
    E.emit(valu("v_add_u32", vRR, sT1, vL16))
    E.emit(salu("s_lshl_b32", sT1, sT0, 6))
    E.emit(salu("s_lshr_b32", sT2, sW, 1))
    E.emit(salu("s_lshl_b32", sT2, sT2, 5))
    E.emit(salu("s_add_u32", sT1, sT1, sT2))
    E.emit(valu("v_and_b32", t[4], 31, vLANE))
    E.emit(valu("v_add_u32", t[4], sT1, t[4]))
    E.emit(valu("v_mul_u32_u24", t[4], 896, t[4]))
    E.emit(valu("v_lshrrev_b32", t[5], 5, vLANE))
    E.emit(valu("v_lshl_add_u32", t[4], t[5], 5, t[4]))
    E.emit(salu("s_lshl_b32", sT1, sJC, 7))
    E.emit(salu("s_and_b32", sT2, sW, 1))
    E.emit(salu("s_lshl_b32", sT2, sT2, 6))
    E.emit(salu("s_add_u32", sT1, sT1, sT2))
    E.emit(valu("v_add_u32", vO, sT1, t[4]))
    stamp(E, 6)
    for it in b_reads(0):
        E.emit(it)
    seen = set()
    gsc = deque([valu("v_sub_f32", t[0], 1.0, vG0), valu("v_sub_f32", t[1], 1.0, vG1)])
    for tt in range(2):
        for r in range(32):
            gsc.append(valu("v_mul_f32", V(ACCO + tt * 32 + r), V(ACCO + tt * 32 + r), vG0 if tt == 0 else vG1))
    for i in range(36):
        f, r, _ = areg(i)
        o = BF + (i & 1) * 8
        if i in (20, 30):
            stamp(E, {20: 6, 30: 7}[i], 2)
        base = ACCO if chunk(i)[0] == "o" else ACCH
        k = 0
        for tt in range(2):
            for c in range(2):
                d = V(base + (tt * 2 + c) * 16, 16)
                first = (base, tt, c) not in seen
                seen.add((base, tt, c))
                E.emit(mfma(d, V(o + 4 * c, 4), (f, r + 4 * tt, 4), 0 if first else d))
                if k == 0 and i + 1 < 36:
                    for it in b_reads(i + 1):
                        E.emit(it)
                if k >= 2 and i >= 25:
                    for _ in range(4):
                        if gsc:
                            E.emit(gsc.popleft())
                if k == 1:
                    issue_a(i + D + 1)
                    issue_b(min(i + NB + 1, nxt["b"] + Opt.bstep))
                k += 1
    assert published[0]
    stamp(E, 7)
    while gsc:
        E.emit(gsc.popleft())
    E.emit(barrier())
    for q in range(4):
        for r in range(16):
            E.emit(valu("v_fmac_f32", V(ACCO + q * 16 + r), V(ACCH + q * 16 + r), t[q >> 1]))
        for k in range(4):
            E.emit(ds_write(128, vRW, V(ACCO + q * 16 + 4 * k, 4), q * 16384 + k * 1024, tag="red"))
    E.emit(barrier(need=("red",)))
    for src in range(4):
        for k in range(4):
            E.emit(ds_read(128, V(ACCH + src * 16 + 4 * k, 4), vRR, src * 4096 + k * 1024))
    for r in range(16):
        E.emit(valu("v_add_f32", V(ACCH + r), V(ACCH + r), V(ACCH + 16 + r)))
    for r in range(16):
        E.emit(valu("v_add_f32", V(ACCH + 32 + r), V(ACCH + 32 + r), V(ACCH + 48 + r)))
    for r in range(16):
        E.emit(valu("v_add_f32", V(ACCH + r), V(ACCH + r), V(ACCH + 32 + r)))
    for it in pack_inplace(ACCH, ACCH, 8):
        E.emit(it)
    E.emit(buf_store(V(ACCH, 4), vO, SRD_OUT, 0, 0))
    E.emit(buf_store(V(ACCH + 4, 4), vO, SRD_OUT, 0, 16))
    if not head:
        E.emit(salu("s_or_b32", sT1, sCQ, sJ))
        E.emit(salu("s_or_b32", sT1, sT1, sW))
        E.emit(scmp("s_cmp_eq_u32", sT1, 0))
        E.emit(branch("s_cbranch_scc0", "L_nogen"))
        E.emit([set_exec(1), buf_store(vTAG, vGA, SRD_WS, 0, 0, " sc1"), set_exec(-1)])
        E.label("L_nogen")
    if Opt.diag and Opt.sset == 0:
        E.emit(I(f"s_memtime s[{sDIAG + 2}:{sDIAG + 3}]", (), (), "smem"))


KD = """.section .rodata,"a"
.p2align 6
.amdhsa_kernel {name}
  .amdhsa_next_free_vgpr 512
  .amdhsa_next_free_sgpr 102
  .amdhsa_accum_offset 256
  .amdhsa_group_segment_fixed_size 0
  .amdhsa_kernarg_size 88
  .amdhsa_user_sgpr_count 2
  .amdhsa_user_sgpr_kernarg_segment_ptr 1
  .amdhsa_system_sgpr_workgroup_id_x 1
.end_amdhsa_kernel
"""


def header(launches):
    h = open(f"cdna_kernels/{NAME}.s.ref").read().split("\n")
    out = []
    for l in h:
        if l.startswith("; @launch") or l.startswith("; Override") or l.startswith("; grid=ceil"):
            continue
        if not l.startswith(";"):
            break
        out.append(l)
    out += launches
    out.append('.amdgcn_target "amdgcn-amd-amdhsa--gfx950"')
    out.append(".text")
    return "\n".join(out) + "\n"


def gen():
    kn = NAME + "_kernel"
    txt = header([f"; @launch grid=(256,1,1) block=(256,1,1) lds={LDS_BYTES}"])
    E = Emitter()
    common_prologue(E)
    E.emit(salu("s_movk_i32", sT3, 0x55A3))
    E.emit(salu("s_lshl_b32", sHD, sCQ, 2))
    E.emit(salu("s_add_u32", sHD, sHD, sJ))
    E.emit(salu("s_sub_u32", sHD, sHD, 4))
    E.emit(scmp("s_cmp_lt_u32", sJ, 4))
    E.emit(branch("s_cbranch_scc1", "L_glu"))
    E.emit(I(f"s_bitcmp1_b32 {rs(sT3)}, {rs(sHD)}", regset(sT3, sHD), (), "salu"))
    E.emit(branch("s_cbranch_scc1", "L_h2"))
    st = (list(E.vm), list(E.lg), list(E.hist))
    for typ in ("h0", "h2", "glu"):
        if typ != "h0":
            E.label(f"L_{typ}")
            E.vm, E.lg, E.hist = list(st[0]), list(st[1]), list(st[2])
        npre = gen_p1(E, typ)
        gen_p2(E, typ, npre)
        diag_store(E, 8)
        if typ != "glu":
            E.emit(I("s_endpgm", kind="branch"))
    E.label("L_end")
    E.emit(I("s_endpgm", kind="branch"))
    E.label("L_codeend")
    txt += f".globl {kn}\n.p2align 8\n.type {kn},@function\n{kn}:\n" + E.text()
    txt += ".fill 64, 4, 0xBF800000\n"
    txt += KD.format(name=kn)
    sys.stderr.write(f"nops: {E.nops}\n")
    return txt


if __name__ == "__main__":
    ap = argparse.ArgumentParser()
    ap.add_argument("--diag", action="store_true")
    ap.add_argument("--sset", type=int, default=0)
    ap.add_argument("--budget", type=int, default=5)
    ap.add_argument("--norot", action="store_true")
    ap.add_argument("--rpg", type=int, default=2)
    ap.add_argument("--ld1", default="")
    ap.add_argument("--st1", default="sc1")
    ap.add_argument("--ld2", default="sc1")
    ap.add_argument("--ldb", default="")
    ap.add_argument("--npre", type=int, default=99)
    ap.add_argument("--D", type=int, default=8)
    ap.add_argument("--epoll", type=int, default=24)
    ap.add_argument("--bfirst", type=int, default=4)
    ap.add_argument("--pollahead", type=int, default=4)
    ap.add_argument("--pubat", type=int, default=6)
    ap.add_argument("--poll0", type=int, default=24)
    ap.add_argument("--pfw", type=int, default=12)
    ap.add_argument("--pfstep", type=int, default=3)
    ap.add_argument("--c1", type=int, default=0)
    ap.add_argument("--c2", type=int, default=16)
    ap.add_argument("--astep", type=int, default=2)
    ap.add_argument("--h0b", type=int, default=3)
    ap.add_argument("--kpf", type=int, default=0)
    ap.add_argument("--ldk", default="")
    ap.add_argument("--bstep", type=int, default=1)
    ap.add_argument("--f1d", type=int, default=8)
    ap.add_argument("--f1dh", type=int, default=12)
    ap.add_argument("--budget2h", type=int, default=12)
    ap.add_argument("--noa", action="store_true")
    ap.add_argument("--fakeh", action="store_true")
    ap.add_argument("--nob", action="store_true")
    ap.add_argument("--pfa", type=int, default=0)
    ap.add_argument("--lead", type=int, default=4)
    ap.add_argument("--budget2", type=int, default=12)
    ap.add_argument("--ldpf", default="")
    ap.add_argument("--f1u", type=int, default=7)
    ap.add_argument("--spin", type=int, default=20000)
    ap.add_argument("-o", default=f"cdna_kernels/{NAME}.s")
    args = ap.parse_args()
    for k, v in vars(args).items():
        setattr(Opt, k, v)
    Opt.rot = not args.norot
    fx = lambda x: (" " + x.replace("+", " ")) if x else ""
    Opt.ld1, Opt.st1, Opt.ld2, Opt.ldb = fx(args.ld1), fx(args.st1), fx(args.ld2), fx(args.ldb)
    Opt.ldpf = fx(args.ldpf)
    Opt.ldk = fx(args.ldk)
    for p in range(768):
        assert (p * 43691) >> 19 == p // 12
    open(args.o, "w").write(gen())
```

```python
import sys, math, argparse
from collections import deque
from emit import *

NAME = "gated_mix__sliding_local_dilated__glu_gated_glu__prompt"

A2_OFF = 0x0
G_OFF = 0xC00000
FLAG_OFF = 0xD00000
GEN_OFF = FLAG_OFF + 0x4000
DIAG_OFF = 0xE00000
WS_BYTES = 0x1000000

XW = 24576
WR_BASE = 98304
WR_SLOT_H = 12544
WR_SLOT_G = 16384
HX_BASE = WR_BASE + 3 * WR_SLOT_H
GW_BASE = HX_BASE + 3 * 4096
TOP_BASE = 149504
HP_BASE = WR_BASE
HS_BASE = WR_BASE + 4 * 6144
assert HS_BASE + 5 * 3072 <= GW_BASE
LDS_BYTES = 163840

LOG2E = 1.4426950408889634
CSC = (28 ** -0.5) * LOG2E
NEGBIG = -1.0e30

sWG = S(2)
P_X, P_WQKV, P_WO, P_BX, P_WG, P_WU, P_WD, P_GW, P_OUT, P_DBG, P_WS = [4 + 2 * i for i in range(11)]
SRD_X, SRD_QKV, SRD_GU, SRD_WO, SRD_GW, SRD_OUT, SRD_WS, SRD_DBG = [S(28 + 4 * i, 4) for i in range(8)]
SRD_WD = SRD_DBG
sW, sRB, sCQ, sJ = S(60), S(61), S(62), S(63)
sT0, sT1, sT2, sT3, sT4, sT5 = [S(64 + i) for i in range(6)]
sXB = S(70)
sWD = S(71)
sW2D = S(72)
sHXD = S(73)
sHD = S(74)
sU = S(77)
sSO = S(75)
sSO2 = S(76)
sC = S(83)
sGMASK = S(78, 2)
sLOMASK = S(80, 2)
sFIRST = S(0, 2)
sPC = S(84, 2)
sP2O = S(27)
sTOPB = S(26)
sWRB = S(3)
sSPIN = S(84)
sJC = S(85)
sDIAG = 86
sKX = [S(4 + i) for i in range(7)]

vL16 = V(224)
vXe, vXo = V(225), V(226)
vW = [V(227), V(228), V(229)]
vW2 = V(230)
vHX = V(231)
vXR = [V(232 + i) for i in range(4)]
vWR = V(236)
vWH = V(237)
vHXR = V(238)
vW2R = [[V(239), V(240)], [V(241), V(242)]]
vGW = V(243)
vWR4 = [V(236), V(237), V(238), V(243)]
vFL = V(244)
vBo, vBd = V(245), V(223)
vST = V(246)
vLANE = V(247)
vNEG = V(248)
vHP, vHPK, vHPV, vHSK, vHSV, vHSI = [V(249 + i) for i in range(6)]
vGWs = V(255)
vGA = V(222)
vTAG = V(220, 2)
TMP = 200


def pieces(i):
    if i < 4:
        return i * XW + 8192
    return (i - 4) * XW + 16384


class Opt:
    pass


def stamp(E, idx, sset=0):
    if Opt.diag and (sset == Opt.sset or sset < 0):
        E.emit(I(f"s_memtime s[{sDIAG + 2 * idx}:{sDIAG + 2 * idx + 1}]", (), (), "smem"))


def item_cost(it):
    if callable(it):
        return 0
    if isinstance(it, I):
        return it.cost
    return sum(x.cost for x in it)


def put(E, it):
    if callable(it):
        it()
    else:
        E.emit(it)


def weave(E, mfmas, must, fill, budget=None, hold=0, pre=None, dmas=(), must_per_gap=None):
    budget = budget or Opt.budget
    must = deque(must)
    dmas = list(dmas)
    n = len(mfmas)
    first = max(hold - 1, 0)
    slots = {}
    if dmas:
        ng = n - first
        for k, d in enumerate(dmas):
            g = first + min(ng - 1, int((k + 0.5) * ng / len(dmas)))
            slots.setdefault(g, []).append(d)
    for g, m in enumerate(mfmas):
        E.emit(m)
        if g + 1 == hold and pre is not None:
            for it in pre:
                put(E, it)
        b = budget
        if g + 1 >= hold:
            gaps_left = n - g
            tot = sum(item_cost(x) for x in must)
            quota = max(must_per_gap or budget, math.ceil(tot / gaps_left))
            while must and quota > 0:
                it = must.popleft()
                put(E, it)
                quota -= item_cost(it)
                b -= item_cost(it)
            for it in slots.get(g, ()):
                put(E, it)
                b -= item_cost(it)
        while fill and b >= item_cost(fill[0]) and b > 0:
            it = fill.popleft()
            put(E, it)
            b -= item_cost(it)
    while must:
        put(E, must.popleft())


def srd_items(srd, ptr, nbytes):
    b = srd[1]
    return [salu("s_mov_b32", S(b), S(ptr)), salu("s_mov_b32", S(b + 1), S(ptr + 1)),
            salu("s_mov_b32", S(b + 2), nbytes), salu("s_mov_b32", S(b + 3), 0x20000)]


def set_exec(val):
    if isinstance(val, int):
        return I(f"s_mov_b64 exec, {val}", (), regset("exec"), "salu")
    return I(f"s_mov_b64 exec, {rs(val)}", regset(val), regset("exec"), "salu")


def common_prologue(E):
    E.emit(scmp("s_cmp_ge_u32", sWG, 256))
    E.emit(branch("s_cbranch_scc1", "L_end"))
    stamp(E, 0, -1)
    if Opt.dbgclk:
        E.raw("    s_memtime s[86:87]\n    s_memrealtime s[88:89]")
    E.emit(I("s_load_dwordx16 s[4:19], s[0:1], 0x0", kind="smem"))
    E.emit(I("s_load_dwordx4 s[20:23], s[0:1], 0x40", kind="smem"))
    E.emit(I("s_load_dwordx2 s[24:25], s[0:1], 0x50", kind="smem"))
    E.emit(I("s_getpc_b64 s[84:85]", (), regset(sPC), "salu"))
    E.label("L_pc")
    E.emit(valu("v_and_b32", vLANE, 63, V(0)))
    E.emit(valu("v_lshrrev_b32", V(1), 6, V(0)))
    E.emit(salu("s_lshr_b32", sT0, sWG, 3))
    E.emit(readfirstlane(sW, V(1)))
    E.emit(salu("s_and_b32", sT1, sT0, 3))
    E.emit(valu("v_lshlrev_b32", V(2), 2, V(0)))
    E.emit(valu("v_add_u32", V(2), sT1, V(2)))
    E.emit(valu("v_lshlrev_b32", V(2), 7, V(2)))
    E.emit(valu("v_cmp_gt_u32", "vcc", "L_codeend-L_pc", V(2)))
    E.emit(I("s_and_saveexec_b64 s[66:67], vcc", regset("vcc"), regset(S(66, 2), "exec"), "salu"))
    E.emit(branch("s_cbranch_execz", "L_nopf"))
    E.emit(I("global_load_dword v3, v2, s[84:85]", regset(V(2), sPC), regset(V(3)), "vm_ld"))
    E.label("L_nopf")
    E.emit(set_exec(-1))
    E.vm = []
    E.emit(valu("v_lshlrev_b32", vL16, 4, vLANE))
    E.emit(salu("s_and_b32", sT1, sWG, 1))
    E.emit(salu("s_lshl_b32", sT1, sT1, 2))
    E.emit(salu("s_lshr_b32", sT2, sT0, 3))
    E.emit(salu("s_add_u32", sRB, sT1, sT2))
    E.emit(salu("s_and_b32", sT1, sWG, 7))
    E.emit(salu("s_lshr_b32", sCQ, sT1, 1))
    E.emit(salu("s_and_b32", sJ, sT0, 7))
    t = [V(TMP + i) for i in range(8)]
    r8, c8, ch = t[0], t[1], t[2]
    E.emit(valu("v_lshrrev_b32", r8, 3, vLANE))
    E.emit(valu("v_and_b32", c8, 7, vLANE))
    E.emit(valu("v_lshrrev_b32", ch, 1, r8))
    E.emit(valu("v_xor_b32", ch, ch, c8))
    E.emit(salu("s_lshl_b32", sT0, sRB, 8))
    E.emit(salu("s_lshl_b32", sT1, sW, 6))
    E.emit(salu("s_add_u32", sT0, sT0, sT1))
    E.emit(valu("v_add_u32", t[3], sT0, r8))
    E.emit(valu("v_mul_u32_u24", t[3], 896, t[3]))
    E.emit(valu("v_lshl_add_u32", vXe, ch, 4, t[3]))
    E.emit(valu("v_xor_b32", t[4], 4, ch))
    E.emit(valu("v_lshl_add_u32", vXo, t[4], 4, t[3]))
    E.emit(valu("v_add_u32", vXo, 8 * 896, vXo))
    E.emit(salu("s_mul_i32", sXB, sW, XW))
    if Opt.rot:
        E.emit(salu("s_and_b32", sT5, sRB, 3))
        E.emit(salu("s_lshl_b32", sT5, sT5, 1))
        E.emit(salu("s_add_u32", sT5, sT5, sJ))
        E.emit(scmp("s_cmp_ge_u32", sT5, 7))
        E.emit(salu("s_cselect_b32", sT1, 7, 0))
        E.emit(salu("s_sub_u32", sT5, sT5, sT1))
    else:
        E.emit(salu("s_mov_b32", sT5, 0))
    E.emit(salu("s_lshl_b32", sT0, sRB, 2))
    E.emit(salu("s_add_u32", sT0, sT0, sW))
    E.emit(salu("s_lshl_b32", sT0, sT0, 2))
    E.emit(salu("s_add_u32", sT0, sT0, sCQ))
    E.emit(salu("s_lshl_b32", sT0, sT0, 4))
    E.emit(salu("s_add_u32", sT0, sT0, sJ))
    E.emit(salu("s_lshl_b32", sT0, sT0, 3))
    E.emit(salu("s_add_u32", sT0, sT0, FLAG_OFF))
    E.emit(valu("v_and_b32", t[3], 1, vLANE))
    E.emit(valu("v_lshlrev_b32", t[3], 6, t[3]))
    E.emit(valu("v_add_u32", vFL, sT0, t[3]))
    E.emit(salu("s_lshl_b32", sT0, sRB, 7))
    E.emit(salu("s_add_u32", sT0, sT0, GEN_OFF))
    E.emit(valu("v_mov_b32", vGA, sT0))


def setup_early(E, typ):
    t = [V(TMP + i) for i in range(12)]
    r8, c8, ch = t[0], t[1], t[2]
    head = typ != "glu"
    E.emit(salu("s_mul_i32", sT4, sCQ, 896))
    if head:
        E.emit(salu("s_mul_i32", sT0, sW, 192))
        E.emit(salu("s_mul_i32", sT1, sHD, 56))
        for q in range(3):
            p, row, cx = t[5], t[6], t[7]
            E.emit(valu("v_add_u32", p, sT0, vLANE))
            if q:
                E.emit(valu("v_add_u32", p, 64 * q, p))
            E.emit(valu("v_mul_u32_u24", row, 43691, p))
            E.emit(valu("v_lshrrev_b32", row, 19, row))
            E.emit(valu("v_mul_u32_u24", cx, 12, row))
            E.emit(valu("v_sub_u32", cx, p, cx))
            E.emit(valu("v_mul_u32_u24", row, 2688, row))
            E.emit(valu("v_lshrrev_b32", p, 2, cx))
            E.emit(valu("v_mul_u32_u24", p, 896, p))
            E.emit(valu("v_add_u32", row, row, p))
            E.emit(valu("v_and_b32", cx, 3, cx))
            E.emit(valu("v_lshl_add_u32", row, cx, 4, row))
            E.emit(valu("v_add_u32", vW[q], sT1, row))
        E.emit(salu("s_mul_i32", sWD, sW, 3072))
        E.emit(salu("s_add_u32", sWD, sWD, WR_BASE))
        E.emit(salu("s_lshl_b32", sT0, sRB, 8))
        E.emit(salu("s_lshl_b32", sT1, sW, 3))
        E.emit(salu("s_add_u32", sT0, sT0, sT1))
        E.emit(salu("s_sub_u32", sT0, sT0, 32))
        E.emit(valu("v_add_u32", t[5], sT0, r8))
        E.emit(salu("s_movk_i32", sT2, 896))
        E.emit(valu("v_mul_lo_u32", t[5], t[5], sT2))
        E.emit(salu("s_and_b32", sT1, sW, 1))
        E.emit(salu("s_lshl_b32", sT1, sT1, 2))
        E.emit(valu("v_xor_b32", t[6], sT1, ch))
        E.emit(valu("v_lshl_add_u32", vHX, t[6], 4, t[5]))
        E.emit(salu("s_lshl_b32", sHXD, sW, 10))
        E.emit(salu("s_add_u32", sHXD, sHXD, HX_BASE))
        E.emit(salu("s_lshr_b32", sT1, 0x4482, sHD))
        E.emit(salu("s_and_b32", sU, sT1, 1))
        E.emit(salu("s_lshl_b32", sT1, sU, 6))
        E.emit(salu("s_add_u32", sT4, sT4, sT1))
        E.emit(salu("s_add_u32", sT4, sT4, 768))
    else:
        E.emit(salu("s_lshl_b32", sT1, sJ, 7))
        E.emit(salu("s_add_u32", sT1, sT4, sT1))
        E.emit(salu("s_and_b32", sT0, sW, 1))
        E.emit(salu("s_lshl_b32", sT0, sT0, 5))
        E.emit(valu("v_add_u32", t[5], sT0, r8))
        E.emit(valu("v_mul_u32_u24", t[5], 3584, t[5]))
        E.emit(valu("v_bfe_u32", t[6], vLANE, 4, 1))
        E.emit(valu("v_lshlrev_b32", t[6], 1, t[6]))
        E.emit(valu("v_xor_b32", t[6], t[6], c8))
        E.emit(salu("s_and_b32", sT0, sW, 2))
        E.emit(salu("s_lshl_b32", sT0, sT0, 1))
        E.emit(valu("v_xor_b32", t[6], sT0, t[6]))
        E.emit(valu("v_lshl_add_u32", t[5], t[6], 4, t[5]))
        E.emit(valu("v_add_u32", vW[0], sT1, t[5]))
        E.emit(salu("s_lshl_b32", sWD, sW, 12))
        E.emit(salu("s_add_u32", sWD, sWD, WR_BASE))
        E.emit(salu("s_lshl_b32", sT1, sJ, 6))
        E.emit(salu("s_add_u32", sT4, sT4, sT1))
        E.emit(salu("s_add_u32", sT4, sT4, 512))


SRD_PF = SRD_GW
vPF = V(212)
sPFS = S(82)


def setup_kpf(E, typ):
    head = typ != "glu"
    t = [V(TMP + 8 + i) for i in range(4)]
    E.emit(salu("s_lshl_b32", sT0, sRB, 8))
    E.emit(salu("s_lshl_b32", sT1, sJ, 5))
    E.emit(salu("s_add_u32", sT0, sT0, sT1))
    E.emit(valu("v_and_b32", t[0], 31, vLANE))
    E.emit(valu("v_add_u32", t[0], sT0, t[0]))
    E.emit(valu("v_mul_u32_u24", t[0], 896, t[0]))
    pitch = 2688 if head else 3584
    E.emit(salu("s_and_b32", sT0, sRB, 3))
    E.emit(salu("s_lshl_b32", sT0, sT0, 4))
    E.emit(valu("v_bfe_u32", t[1], vLANE, 1, 4))
    E.emit(valu("v_add_u32", t[1], sT0, t[1]))
    E.emit(valu("v_mul_u32_u24", t[1], pitch, t[1]))
    E.emit(valu("v_and_b32", t[2], 1, vLANE))
    if head:
        E.emit(valu("v_mul_u32_u24", t[2], 60, t[2]))
        E.emit(salu("s_mul_i32", sT1, sHD, 56))
        E.emit(salu("s_mul_i32", sT0, sW, 896))
        E.emit(salu("s_add_u32", sT1, sT1, sT0))
        E.emit(salu("s_sub_u32", sT1, sT1, 896))
        E.emit(valu("v_add_u32", t[1], t[1], t[2]))
        E.emit(valu("v_add_u32", t[1], sT1, t[1]))
    else:
        E.emit(salu("s_mul_i32", sT1, sCQ, 896))
        E.emit(salu("s_lshl_b32", sT0, sJ, 7))
        E.emit(salu("s_add_u32", sT1, sT1, sT0))
        E.emit(salu("s_sub_u32", sT0, sT4, sT1))
        E.emit(valu("v_mul_lo_u32", t[2], t[2], sT0))
        E.emit(valu("v_add_u32", t[1], t[1], t[2]))
        E.emit(valu("v_add_u32", t[1], sT1, t[1]))
    E.emit(scmp("s_cmp_eq_u32", sW, 0))
    E.emit(I("s_cselect_b64 vcc, -1, 0", (), regset("vcc"), "salu"))
    E.emit(valu("v_cndmask_b32", vPF, t[1], t[0], "vcc"))
    E.emit(salu("s_mov_b32", sPFS, 64 * pitch))
    E.emit(salu("s_cselect_b32", sPFS, 128, sPFS))


def kpf(k):
    if k == 0:
        return [buf_load(vPFD, vPF, SRD_KPF, 0, 0, Opt.ldk)]
    return [salu("s_mul_i32", sSO, sPFS, k), buf_load(vPFD, vPF, SRD_KPF, sSO, 0, Opt.ldk)]


SRD_KPF = SRD_OUT


def setup_late(typ):
    head = typ != "glu"
    t = [V(TMP + i) for i in range(12)]
    r8, c8 = t[0], t[1]
    items = []
    e = items.append
    m, hf, sw, base = t[5], t[6], t[7], t[8]
    e(valu("v_and_b32", m, 31, vLANE))
    e(valu("v_lshrrev_b32", hf, 5, vLANE))
    e(valu("v_bfe_u32", sw, m, 1, 3))
    e(valu("v_lshlrev_b32", base, 7, m))
    e(valu("v_xor_b32", sw, sw, hf))
    for ee in range(4):
        e(valu("v_xor_b32", t[9], 2 * ee, sw))
        e(valu("v_lshl_add_u32", t[9], t[9], 4, base))
        e(valu("v_add_u32", vXR[ee], sXB, t[9]))
    if head:
        e(salu("s_lshl_b32", sT0, sW, 1))
        e(valu("v_xor_b32", t[9], sT0, sw))
        e(valu("v_lshl_add_u32", t[9], t[9], 4, base))
        e(valu("v_add_u32", vHXR, HX_BASE, t[9]))
    grp, r4, c4, krow = t[5], t[7], t[8], t[9]
    e(valu("v_bfe_u32", grp, vLANE, 4, 1))
    e(valu("v_bfe_u32", r4, vLANE, 2, 2))
    e(valu("v_and_b32", c4, 3, vLANE))
    e(valu("v_lshl_add_u32", krow, hf, 3, r4))
    if head:
        e(valu("v_mul_u32_u24", t[10], 192, krow))
        e(valu("v_lshl_add_u32", t[10], grp, 5, t[10]))
        e(valu("v_lshl_add_u32", t[10], c4, 3, t[10]))
        e(valu("v_add_u32", vWR, WR_BASE, t[10]))
        e(salu("s_mul_i32", sT0, sW, 3072))
        e(valu("v_add_u32", vWH, sT0, vWR))
        e(valu("v_lshlrev_b32", t[10], 4, hf))
        e(valu("v_add_u32", vGW, GW_BASE, t[10]))
        e(salu("s_mov_b32", S(sGMASK[1]), 1 << 28))
        e(salu("s_mov_b32", S(sGMASK[1] + 1), 1 << 28))
    else:
        e(valu("v_lshlrev_b32", t[10], 7, krow))
        e(valu("v_lshl_add_u32", t[10], grp, 13, t[10]))
        e(valu("v_lshl_add_u32", t[10], c4, 3, t[10]))
        e(valu("v_add_u32", t[10], WR_BASE, t[10]))
        e(valu("v_lshrrev_b32", t[11], 1, r4))
        e(valu("v_lshl_add_u32", t[11], grp, 1, t[11]))
        for n in range(4):
            e(valu("v_xor_b32", t[3], n, t[11]))
            e(valu("v_lshl_add_u32", vWR4[n], t[3], 5, t[10]))
    e(valu("v_lshlrev_b32", t[10], 6, krow))
    e(valu("v_lshl_add_u32", t[10], c4, 3, t[10]))
    e(valu("v_lshl_add_u32", t[10], grp, 12, t[10]))
    e(valu("v_lshl_add_u32", vW2R[0][0], grp, 5, t[10]))
    e(valu("v_xor_b32", t[11], 1, grp))
    e(valu("v_lshl_add_u32", vW2R[1][0], t[11], 5, t[10]))
    e(valu("v_add_u32", vW2R[0][1], 2 * XW, vW2R[0][0]))
    e(valu("v_add_u32", vW2R[1][1], 2 * XW, vW2R[1][0]))
    return items


def setup_fill(typ):
    head = typ != "glu"
    t = [V(TMP + i) for i in range(12)]
    r8, c8 = t[0], t[1]
    items = []
    e = items.append
    e(salu("s_and_b32", sT0, sW, 1))
    e(salu("s_lshl_b32", sT0, sT0, 5))
    e(salu("s_and_b32", sT1, sW, 2))
    e(valu("v_lshrrev_b32", t[5], 2, vLANE))
    e(valu("v_add_u32", t[5], sT0, t[5]))
    e(valu("v_mul_u32_u24", t[5], 3584, t[5]))
    e(valu("v_and_b32", t[6], 3, vLANE))
    e(valu("v_xor_b32", t[6], sT1, t[6]))
    e(valu("v_lshl_add_u32", t[5], t[6], 4, t[5]))
    e(valu("v_add_u32", vW2, sT4, t[5]))
    e(salu("s_lshl_b32", sW2D, sW, 11))
    if not head:
        e(salu("s_lshl_b32", sP2O, sJ, 12))
        e(salu("s_sub_u32", sP2O, 24 * 2048, sP2O))
    else:
        e(salu("s_sub_u32", sP2O, sU, sJ))
        e(salu("s_lshl_b32", sP2O, sP2O, 12))
        e(salu("s_add_u32", sP2O, sP2O, 24 * 2048))
    e(salu("s_lshl_b32", sT0, sRB, 2))
    e(salu("s_add_u32", sT0, sT0, sW))
    e(salu("s_mul_i32", sT0, sT0, 144))
    e(salu("s_mul_i32", sT1, sCQ, 36))
    e(salu("s_add_u32", sT0, sT0, sT1))
    if head:
        e(salu("s_lshl_b32", sT1, sJ, 1))
        e(salu("s_add_u32", sT0, sT0, 8))
    else:
        e(salu("s_lshl_b32", sT1, sJ, 2))
    e(salu("s_add_u32", sT0, sT0, sT1))
    e(salu("s_lshl_b32", sT0, sT0, 11))
    e(valu("v_add_u32", vST, sT0, vL16))
    e([salu("s_mov_b32", sT0, 1664525), valu("v_mul_lo_u32", V(vTAG[1]), V(vTAG[1]), sT0)])
    e(valu("v_add_u32", V(vTAG[1]), 1013904223, V(vTAG[1])))
    e([salu("s_mov_b32", sT0, 22695477), valu("v_mul_lo_u32", V(vTAG[1] + 1), V(vTAG[1] + 1), sT0)])
    e(valu("v_add_u32", V(vTAG[1] + 1), 1, V(vTAG[1] + 1)))
    e([scmp("s_cmp_gt_u32", sJ, 3), salu("s_cselect_b32", sT0, 1, 0), salu("s_sub_u32", sJC, sJ, sT0)])
    e(valu("v_bfe_u32", t[5], vLANE, 4, 1))
    e(valu("v_lshlrev_b32", t[5], 2, t[5]))
    e(valu("v_xor_b32", t[5], t[5], c8))
    e(valu("v_mul_u32_u24", t[6], 896, r8))
    e(valu("v_lshl_add_u32", t[6], t[5], 4, t[6]))
    e(salu("s_lshl_b32", sT0, sJC, 7))
    e(salu("s_mul_i32", sT1, sW, 112 * 896))
    e(salu("s_add_u32", sT1, sT1, sT0))
    e(valu("v_add_u32", vBo, sT1, t[6]))
    e(salu("s_mul_i32", sT1, sW, 448 * 896))
    e(salu("s_add_u32", sT1, sT1, sT0))
    e(valu("v_add_u32", vBd, sT1, t[6]))
    e(salu("s_lshl_b32", sT0, sRB, 2))
    e(salu("s_add_u32", sT0, sT0, sCQ))
    e(salu("s_lshl_b32", sT0, sT0, 2))
    e(salu("s_add_u32", sT0, sT0, sW))
    e(salu("s_lshl_b32", sT0, sT0, 7))
    e(salu("s_add_u32", sT0, sT0, FLAG_OFF))
    e(valu("v_and_b32", t[5], 15, vLANE))
    e(valu("v_lshlrev_b32", t[5], 3, t[5]))
    e(valu("v_add_u32", vFP, sT0, t[5]))
    e(salu("s_lshl_b32", sT0, sRB, 2))
    e(salu("s_add_u32", sT0, sT0, sCQ))
    e(salu("s_mul_i32", sT0, sT0, 144))
    e(salu("s_mul_i32", sT1, sW, 36))
    e(salu("s_add_u32", sT0, sT0, sT1))
    e(salu("s_lshl_b32", sT0, sT0, 11))
    e(salu("s_mul_i32", sT1, sJC, 37))
    e(valu("v_min_u32", t[5], 36, vLANE))
    e(valu("v_add_u32", t[5], sT1, t[5]))
    e(valu("v_min_u32", t[5], 255, t[5]))
    e(valu("v_lshlrev_b32", t[5], 7, t[5]))
    e(valu("v_add_u32", vPAe, sT0, t[5]))
    e(salu("s_mul_i32", sTOPB, sW, 3584))
    e(salu("s_add_u32", sTOPB, sTOPB, TOP_BASE))
    e(salu("s_mul_i32", sWRB, sW, 12288))
    e(salu("s_add_u32", sWRB, sWRB, WR_BASE))
    if not Opt.kpf:
        items += srd_items(SRD_OUT, P_OUT, 2048 * 896)
    items += srd_items(SRD_WD, P_WD, 1792 * 896)
    e(salu("s_lshr_b32", sT0, sWG, 3))
    e(salu("s_and_b32", sT1, sWG, 7))
    e(salu("s_lshl_b32", sT1, sT1, 2))
    e(salu("s_add_u32", sT0, sT0, sT1))
    e(salu("s_and_b32", sT0, sT0, 31))
    e(salu("s_lshl_b32", sT0, sT0, 2))
    e(salu("s_add_u32", sT0, sT0, sW))
    e(valu("v_min_u32", t[6], 24, vLANE))
    e(valu("v_lshlrev_b32", t[6], 7, t[6]))
    e(salu("s_mul_i32", sT1, sT0, 98 * 128))
    e(valu("v_add_u32", vPW[0], sT1, t[6]))
    e(salu("s_mul_i32", sT1, sT0, 25 * 128))
    e(valu("v_add_u32", vPW[1], sT1, t[6]))
    if head:
        e(valu("v_mov_b32", vNEG, NEGBIG))
        e(salu("s_mov_b32", sC, CSC))
        e(salu("s_mov_b32", S(sLOMASK[1]), -1))
        e(salu("s_mov_b32", S(sLOMASK[1] + 1), 0))
        e(salu("s_or_b32", sT0, sRB, sW))
        e([scmp("s_cmp_eq_u32", sT0, 0), salu("s_cselect_b32", S(sFIRST[1]), 0, -1),
           salu("s_cselect_b32", S(sFIRST[1] + 1), 0, -1)])
        e(salu("s_mul_i32", sT0, sW, 6144))
        e(salu("s_add_u32", sT0, sT0, HP_BASE))
        e(valu("v_add_u32", vHP, sT0, vL16))
        e(salu("s_lshl_b32", sT0, sW, 10))
        e(salu("s_add_u32", sT0, sT0, HP_BASE))
        e(valu("v_add_u32", vHPK, sT0, vL16))
        e(salu("s_lshr_b32", sT0, sW, 1))
        e(salu("s_lshl_b32", sT0, sT0, 10))
        e(salu("s_and_b32", sT1, sW, 1))
        e(salu("s_lshl_b32", sT1, sT1, 3))
        e(salu("s_add_u32", sT0, sT0, sT1))
        e(salu("s_add_u32", sT1, sT0, HP_BASE + 4096))
        e(valu("v_add_u32", vHPV, sT1, vL16))
        e(salu("s_add_u32", sT1, sT0, HS_BASE))
        e(valu("v_add_u32", vHSK, sT1, vL16))
        e(salu("s_lshl_b32", sT1, sW, 2))
        e(salu("s_add_u32", sT1, sT1, HS_BASE + 2048))
        e(valu("v_add_u32", vHSV, sT1, vL16))
        e(salu("s_mul_i32", sT1, sW, 3072))
        e(salu("s_add_u32", sT1, sT1, HS_BASE))
        e(valu("v_add_u32", vHSI, sT1, vL16))
        if typ == "h0":
            items += mask_items(128)
    return items


def mask_items(M):
    its = []
    for r in range(24):
        if r < 16:
            fn = lambda l, r=r: ((l & 31) - ((r & 3) + 8 * (r >> 2) + 4 * (l >> 5))) in range(0, 16, 2)
        else:
            fn = lambda l, r=r - 8: ((l & 31) - ((r & 3) + 8 * (r >> 2) + 4 * (l >> 5)) + 32) in range(0, 16, 2)
        mk = lane_mask(fn) ^ ((1 << 64) - 1)
        its.append([I(f"s_mov_b32 vcc_lo, 0x{mk & 0xffffffff:x}", (), regset("vcc"), "salu"),
                    I(f"s_mov_b32 vcc_hi, 0x{mk >> 32:x}", (), regset("vcc"), "salu"),
                    valu("v_cndmask_b32", V(M + r), 0, vNEG, "vcc")])
    return its


def dma_item(m0_base, m0_off, voff, srd, soff, tag, fl=None):
    fl = Opt.ld1 if fl is None else fl
    it = [salu("s_add_u32", "m0", m0_base, m0_off) if m0_base is not None else salu("s_mov_b32", "m0", m0_off)]
    if isinstance(soff, tuple):
        sreg, mul, add = soff
        if mul != 1:
            it.append(salu("s_mul_i32", sSO, sreg, mul))
            if add:
                it.append(salu("s_add_u32", sSO, sSO, add))
            it.append(dma(voff, srd, sSO, tag, fl))
        elif add:
            it.append(salu("s_add_u32", sSO, sreg, add))
            it.append(dma(voff, srd, sSO, tag, fl))
        else:
            it.append(dma(voff, srd, sreg, tag, fl))
    elif soff:
        it.append(salu("s_mov_b32", sSO, soff))
        it.append(dma(voff, srd, sSO, tag, fl))
    else:
        it.append(dma(voff, srd, 0, tag, fl))
    return it


def load_group(kb, typ):
    head = typ != "glu"
    slot = kb % 3
    tag = f"L{kb}"
    xs = [dma_item(sXB, slot * 8192 + i * 1024, vXo if i & 1 else vXe, SRD_X, (sKX[kb], 1, (i >> 1) * 14336), tag) for i in range(8)]
    if head:
        ws = [dma_item(sWD, slot * WR_SLOT_H + q * 1024, vW[q], SRD_QKV, (sKX[kb], 1344, 0), tag) for q in range(3)]
        ws.append(dma_item(sHXD, slot * 4096, vHX, SRD_X, (sKX[kb], 1, 0), tag))
    else:
        ws = [dma_item(sWD, slot * WR_SLOT_G + q * 1024, vW[0], SRD_GU, (sKX[kb], 1792, q * 8 * 3584), tag) for q in range(4)]
    its = []
    for q in range(4):
        its += [ws[q]] + xs[2 * q:2 * q + 2]
    return its


def load_group2(kbs, tag, typ):
    its = []
    for kb2 in kbs:
        for q in range(2):
            its.append(dma_item(sW2D, pieces(kb2) + q * 1024, vW2, SRD_GU, (sKX[kb2], 1792, 16 * q * 3584), tag))
    return its


def xfrag(s, t):
    return A((s * 2 + t) * 4, 4)


def wf1(buf, n):
    return A(224 + buf * (12 if Opt.n1 == 3 else 16) + n * 4, 4)


def wf2(buf, n):
    return A(224 + buf * 8 + n * 4, 4)


def acc1(n, t):
    return V((n * 2 + t) * 16, 16)


def acc2(n, t):
    return V(128 + (n * 2 + t) * 16, 16)


def reads1(s, typ):
    head = typ != "glu"
    kb, e = divmod(s, 4)
    slot = kb % 3
    buf = s & 1
    its = []

    def wr(n):
        f = wf1(buf, n)
        if not head:
            o = slot * WR_SLOT_G + e * 2048
            return [ds_read(64, A(f[1], 2), vWR4[n], o, tr=True), ds_read(64, A(f[1] + 2, 2), vWR4[n], o + 512, tr=True)]
        o = slot * WR_SLOT_H + e * 3072 + n * 64
        r = [ds_read(64, A(f[1], 2), vWR, o, tr=True), ds_read(64, A(f[1] + 2, 2), vWR, o + 768, tr=True)]
        if n == 0:
            r.append([set_exec(sGMASK), ds_read(128, f, vGWs, e * 32), set_exec(-1)])
        return r
    if head and e == 0:
        its.append(valu("v_add_u32", vGWs, sKX[kb], vGW))
    its.append(ds_read(128, xfrag(s, 0), vXR[e], slot * 8192))
    its += wr(0)
    its.append(ds_read(128, xfrag(s, 1), vXR[e], slot * 8192 + 4096))
    for n in range(1, Opt.n1):
        its += wr(n)
    return its


def reads2(s, typ):
    kb2, e = divmod(s, 4)
    buf = s & 1
    base = pieces(kb2)
    hi = base >= 2 * XW
    if hi:
        base -= 2 * XW
    its = []
    for n in range(2):
        f = wf2(buf, n)
        o = base + e * 1024
        its.append(ds_read(64, A(f[1], 2), vW2R[n][hi], o, tr=True))
        its.append(ds_read(64, A(f[1] + 2, 2), vW2R[n][hi], o + 256, tr=True))
    return its


def glu_epi(acc, koff, tag):
    b = acc[1]
    its = []
    for e in range(8):
        its.append(valu("v_mul_f32", V(b + e), -LOG2E, V(b + e)))
    for e in range(8):
        its.append(valu("v_exp_f32", V(b + e), V(b + e)))
    for e in range(8):
        its.append(valu("v_add_f32", V(b + e), 1.0, V(b + e)))
    for e in range(8):
        its.append(valu("v_rcp_f32", V(b + e), V(b + e)))
    for e in range(8):
        its.append(valu("v_mul_f32", V(b + e), V(b + e), V(b + 8 + e)))
    for e in range(4):
        its.append(valu("v_cvt_pk_bf16_f32", V(b + 8 + e), V(b + 2 * e), V(b + 2 * e + 1)))
    its.append(store_frag(V(b + 8, 4), koff, tag))
    return its


def store_frag(src, koff, tag):
    fl = Opt.st1
    if isinstance(koff, tuple):
        return buf_store(src, vST, SRD_WS, koff[0], koff[1], fl, tag)
    if koff < 4096:
        return buf_store(src, vST, SRD_WS, 0, koff, fl, tag)
    return [salu("s_mov_b32", sSO2, koff & ~4095), buf_store(src, vST, SRD_WS, sSO2, koff & 4095, fl, tag)]


def flag_set(p, need):
    st = buf_store(vTAG, vFL, SRD_WS, 0, 0, " sc1", None, need=need)
    w = I("s_nop 0", kind="nop", need=need)
    return [w, set_exec(1 << p), st, set_exec(-1)]


def lane_mask(fn):
    m = 0
    for l in range(64):
        if fn(l):
            m |= 1 << l
    return m


def pack_inplace(dst, src, n):
    return [valu("v_cvt_pk_bf16_f32", V(dst + i), V(src + 2 * i), V(src + 2 * i + 1)) for i in range(n)]


def dsw(width, addr, src, off, tag):
    i = ds_write(width, addr, src, off, tag=tag)
    i.cost = {128: 3, 64: 2, 32: 1}[width]
    return i


def head_epi(typ):
    its = []
    a = its.append
    Q0, Q1, K0, K1, V0, V1 = 0, 16, 32, 48, 64, 80
    HK, HV = 96, 112
    M = 128 if typ == "h0" else 96
    tg = [V(192), V(193)]
    mx, mx2, sm, sm2, nb, rinv, rz = [V(120 + i) for i in range(7)]
    a(valu("v_mov_b32", tg[0], V(Q0 + 12)))
    a(valu("v_mov_b32", tg[1], V(Q1 + 12)))
    pk = pack_inplace(K0, K0, 8) + pack_inplace(K0 + 8, K1, 8) + pack_inplace(V0, V0, 8) + pack_inplace(V0 + 8, V1, 8)
    wr = [dsw(128, vHP, V(HK + 4 * q, 4), q * 1024, "hp") for q in range(4)]
    wr += [dsw(128, vHP, V(HV + 8 + 4 * q, 4), (4 + q) * 1024, "hp") for q in range(2)]
    for k, x in enumerate(pk):
        a(x)
        if k % 5 == 4 and wr:
            a(wr.pop(0))
    its.extend(wr)
    qp_ = pack_inplace(Q0, Q0, 8) + pack_inplace(Q0 + 8, Q1, 8)
    wr = [dsw(128, vHSI, V(K0 + 8, 4), 3072, "hp"), dsw(128, vHSI, V(K0 + 12, 4), 3072 + 1024, "hp"),
          dsw(128, vHSI, V(V0 + 12, 4), 3072 + 2048, "hp")]
    for k, x in enumerate(qp_):
        if k % 5 == 0 and wr:
            a(wr.pop(0))
        a(x)
    for t in range(2):
        for r in (6, 7):
            a(valu("v_cndmask_b32", V(Q0 + 8 * t + r), 0, V(Q0 + 8 * t + r), sLOMASK))
    a(barrier(need=("hp",)))
    T, TV = K1, TMP - 16
    for p in range(4):
        a(ds_read(128, V(T + 4 * p, 4), vHPK, p * 6144))
        a(ds_read(64, V(TV + 16 + 2 * p, 2), vHPV, p * 6144))
    if typ != "h0":
        its.extend(mask_items(M))
    Sd, Sp, O = V1, Q1, K1

    def qk(t, kprev):
        kp = [V(K0 + 8 * t, 4), V(K0 + 8 * t + 4, 4)]
        qp = [V(Q0 + 8 * t, 4), V(Q0 + 8 * t + 4, 4)]
        a(mfma(V(Sd, 16), kp[0], qp[0], V(M, 16)))
        a(mfma(V(Sp, 16), kprev[0], qp[0], V(M + 8, 16)))
        a(mfma(V(Sd, 16), kp[1], qp[1], V(Sd, 16)))
        a(mfma(V(Sp, 16), kprev[1], qp[1], V(Sp, 16)))

    def softmax_pv(t, vprev):
        vt = [V(V0 + 8 * t, 4), V(V0 + 8 * t + 4, 4)]
        vals = [V(Sd + r) for r in range(16)] + [V(Sp + r) for r in range(8, 16)]
        a(valu("v_max3_f32", mx, vals[0], vals[1], vals[2]))
        a(valu("v_max3_f32", mx2, vals[3], vals[4], vals[5]))
        rest = vals[6:]
        k = 0
        while rest:
            tgt = mx if k % 2 == 0 else mx2
            a(valu("v_max3_f32", tgt, tgt, rest[0], rest[1]))
            rest = rest[2:]
            k += 1
        a(valu("v_max_f32", mx, mx, mx2))
        a(valu("v_mov_b32", mx2, mx))
        g = tg[t]
        a(valu("v_mul_f32", g, -LOG2E, g))
        a(valu("v_exp_f32", g, g))
        a(permswap(mx, mx2))
        a(valu("v_max_f32", mx, mx, mx2))
        a(valu("v_mul_f32", nb, -CSC, mx))
        for v_ in vals:
            a(valu("v_fma_f32", v_, v_, sC, nb))
        for v_ in vals:
            a(valu("v_exp_f32", v_, v_))
        a(valu("v_add_f32", g, 1.0, g))
        a(valu("v_add_f32", sm, vals[0], vals[1]))
        a(valu("v_add_f32", sm2, vals[2], vals[3]))
        for k, v_ in enumerate(vals[4:]):
            tgt = sm if k % 2 == 0 else sm2
            a(valu("v_add_f32", tgt, tgt, v_))
        its.extend(pack_inplace(Sd, Sd, 8))
        its.extend(pack_inplace(Sp + 8, Sp + 8, 4))
        a(valu("v_add_f32", sm, sm, sm2))
        a(valu("v_mov_b32", sm2, sm))
        a(mfma(V(O, 16), vt[0], V(Sd, 4), 0))
        a(mfma(V(O, 16), vt[1], V(Sd + 4, 4), V(O, 16)))
        a(mfma(V(O, 16), vprev, V(Sp + 8, 4), V(O, 16)))
        a(permswap(sm, sm2))
        a(valu("v_add_f32", sm, sm, sm2))
        a(valu("v_rcp_f32", rinv, sm))
        a(valu("v_rcp_f32", g, g))
        a(valu("v_cndmask_b32", rz, 0, rinv, sLOMASK))
        a(buf_store(g, vHP, SRD_WS, 0, t * 256, Opt.st1, "e1"))

    def finish(t):
        for r in range(16):
            a(valu("v_mul_f32", V(O + r), V(O + r), rz if r >= 12 else rinv))
        its.extend(pack_inplace(O, O, 8))
        a(store_frag(V(O, 4), t * 1024, "e1"))
        a(store_frag(V(O + 4, 4), 2048 + t * 1024, "e1"))

    qk(1, [V(K0, 4), V(K0 + 4, 4)])
    for i in range(4):
        a(valu("v_add_f32", V(T + i), V(T + i), V(T + 4 + i)))
        a(valu("v_add_f32", V(T + 8 + i), V(T + 8 + i), V(T + 12 + i)))
    for i in range(2):
        a(valu("v_add_f32", V(TV + 16 + i), V(TV + 16 + i), V(TV + 18 + i)))
        a(valu("v_add_f32", V(TV + 20 + i), V(TV + 20 + i), V(TV + 22 + i)))
    for i in range(4):
        a(valu("v_add_f32", V(T + i), V(T + i), V(T + 8 + i)))
    for i in range(2):
        a(valu("v_add_f32", V(TV + 16 + i), V(TV + 16 + i), V(TV + 20 + i)))
    a(valu("v_cvt_pk_bf16_f32", V(T + 0), V(T + 0), V(T + 1)))
    a(valu("v_cvt_pk_bf16_f32", V(T + 1), V(T + 2), V(T + 3)))
    a(valu("v_cvt_pk_bf16_f32", V(TV + 16), V(TV + 16), V(TV + 17)))
    a(dsw(64, vHSK, V(T, 2), 0, "hs"))
    a(dsw(32, vHSV, V(TV + 16), 0, "hs"))
    a([salu("s_lshl_b32", sT0, sRB, 2), salu("s_add_u32", sT0, sT0, sW), salu("s_lshl_b32", sT0, sT0, 2),
       salu("s_add_u32", sT0, sT0, sCQ)])
    a([salu("s_lshl_b32", sT0, sT0, 2), salu("s_add_u32", sT0, sT0, sJ), salu("s_lshl_b32", sT0, sT0, 9),
       salu("s_add_u32", sT0, sT0, G_OFF - 4 * 512)])
    a(valu("v_lshlrev_b32", vHP, 2, vLANE))
    a(valu("v_add_u32", vHP, sT0, vHP))
    softmax_pv(1, V(V0 + 4, 4))
    a(barrier(need=("hs",)))
    a(ds_read(128, A(240, 4), vHSI, 0))
    a(ds_read(128, A(244, 4), vHSI, 1024))
    a(ds_read(128, A(248, 4), vHSI, 2048))
    a(I("s_mov_b64 vcc, s[0:1]", regset(sFIRST), regset("vcc"), "salu"))
    for r in range(16, 24):
        a(valu("v_cndmask_b32", V(M + r), vNEG, V(M + r), "vcc"))
    qk(0, [A(240, 4), A(244, 4)])
    finish(1)
    softmax_pv(0, A(248, 4))
    return its, (lambda: (its.clear(), finish(0), list(its))[2])


def chunk(slot):
    if slot < 16:
        return ("f", slot)
    if slot < 24:
        return ("o", slot - 16)
    return ("f", slot - 8)


PHMASK = [0x000F, 0x00F0, 0xFF00]
PHSTART = [0, 16, 24]
PHEND = [16, 24, 36]


vFP, vFD = V(216), V(218, 2)
vPW = [V(213), V(214)]
vPAe = V(215)
vPFD = V(217)


def poll():
    return buf_load(vFD, vFP, SRD_WS, 0, 0, " sc1")


def blocks(typ):
    x0 = [("x", i * 2048) for i in range(4)]
    x1 = [("x", 8192 + i * 2048) for i in range(4)]
    x2 = [("x", 16384 + i * 2048) for i in range(4)]
    top = [("t", 0)]
    wr = [("w", i * 2048) for i in range(6)]
    if typ == "h0":
        return top + x0 + x1 + x2 + wr, 13, 13
    if typ == "h2":
        return top + x0 + x1 + x2 + wr, 5, 9
    return top + x0 + wr + x1 + x2, 11, 15


def b_dma(i, typ):
    kind, ks = chunk(i)
    blk = blocks(typ)[0]
    reg, off = blk[i % len(blk)]
    base = {"x": sXB, "t": sTOPB, "w": sWRB}[reg]
    if kind == "o":
        row, vo, srd = 28 * (ks >> 1) + 16 * (ks & 1), vBo, SRD_WO
    else:
        row, vo, srd = 16 * ks, vBd, SRD_WD
    if Opt.nob:
        return []
    return [dma_item(base, off + h * 1024, vo, srd, (row + 8 * h) * 896, f"B{i}", Opt.ldb) for h in range(2)]


def gen_p1(E, typ):
    head = typ != "glu"
    Opt.n1 = 3 if head else 4
    n1, n2 = Opt.n1, (0 if typ == "h0" else 2)
    setup_early(E, typ)
    if Opt.kpf:
        setup_kpf(E, typ)
    E.emit(I("s_waitcnt lgkmcnt(0)", kind="wait"))
    stamp(E, 1, 1)
    if Opt.kpf:
        p = SRD_KPF[1]
        if head:
            o0, o1 = S(P_WQKV), S(P_WQKV + 1)
        else:
            E.emit(scmp("s_cmp_lt_u32", sW, 2))
            E.emit(salu("s_cselect_b32", S(p), S(P_WG), S(P_WU)))
            E.emit(salu("s_cselect_b32", S(p + 1), S(P_WG + 1), S(P_WU + 1)))
            o0, o1 = S(p), S(p + 1)
        E.emit(scmp("s_cmp_eq_u32", sW, 0))
        E.emit(salu("s_cselect_b32", S(p), S(P_X), o0))
        E.emit(salu("s_cselect_b32", S(p + 1), S(P_X + 1), o1))
        E.emit(salu("s_mov_b32", S(p + 2), 448 * (2688 if head else 3584)))
        E.emit(salu("s_cselect_b32", S(p + 2), 2048 * 896, S(p + 2)))
        E.emit(salu("s_mov_b32", S(p + 3), 0x20000))
        E.emit(kpf(0))
        E.emit(kpf(1))
    E.emit(srd_items(SRD_X, P_X, 2048 * 896))
    if head:
        E.emit(srd_items(SRD_QKV, P_WQKV, 448 * 2688))
    b = SRD_GU[1]
    E.emit(scmp("s_cmp_lt_u32", sW, 2))
    E.emit(salu("s_cselect_b32", S(b), S(P_WG), S(P_WU)))
    E.emit(salu("s_cselect_b32", S(b + 1), S(P_WG + 1), S(P_WU + 1)))
    E.emit(salu("s_mov_b32", S(b + 2), 448 * 3584))
    E.emit(salu("s_mov_b32", S(b + 3), 0x20000))
    E.emit(srd_items(SRD_WO, P_WO, 448 * 896))
    E.emit(salu("s_lshl_b32", sKX[0], sT5, 7))
    stamp(E, 2, 1)
    g0 = load_group(0, typ)
    for it in g0[:3]:
        E.emit(it)
    for kb in range(1, 7):
        E.emit(salu("s_add_u32", sKX[kb], sKX[kb - 1], 128))
        E.emit(scmp("s_cmp_eq_u32", sKX[kb], 896))
        E.emit(salu("s_cselect_b32", sKX[kb], 0, sKX[kb]))
    E.emit(srd_items(SRD_WS, P_WS, WS_BYTES))
    E.emit(buf_load(vTAG, vGA, SRD_WS, 0, 0, " sc1", tag="L0"))
    for it in g0[3:]:
        E.emit(it)
    if head:
        E.emit(srd_items(SRD_GW, P_GW, 896))
        E.emit(dma_item(None, GW_BASE, vL16, SRD_GW, 0, "L0"))
    stamp(E, 3, 1)
    if Opt.kpf:
        E.emit(kpf(2))
    for it in load_group(1, typ):
        E.emit(it)
    if Opt.kpf:
        E.emit(kpf(3))
    stamp(E, 4, 1)
    for it in setup_late(typ):
        E.emit(it)
    stamp(E, 1)
    stamp(E, 6, 1)
    E.wait_tags("L0")
    E.emit(barrier())
    stamp(E, 2)
    stamp(E, 7, 1)
    for it in reads1(0, typ):
        E.emit(it)

    fill = deque(setup_fill(typ))
    pend = deque(load_group(2, typ))
    HWK, HWV, HXF = V(192, 4), V(196, 4), A(248, 4)
    blk, npre0, npre = blocks(typ)
    for s in range(28):
        kb, e = divmod(s, 4)
        slot = kb % 3
        buf = s & 1
        ms = []
        for n in range(n1):
            for t in range(2):
                c = 0 if s == 0 else acc1(n, t)
                if head and n == 2:
                    ms.append(mfma(acc1(n, t), xfrag(s, t), wf1(buf, n), c))
                else:
                    ms.append(mfma(acc1(n, t), wf1(buf, n), xfrag(s, t), c))
        must = []
        pre = None
        hold = 0
        if head and e == 2:
            ms.append(mfma(V(96, 16), HWK, HXF, 0 if kb == 0 else V(96, 16)))
            ms.append(mfma(V(112, 16), HXF, HWV, 0 if kb == 0 else V(112, 16)))
        nxt = reads1(s + 1, typ) if s < 27 else (reads2(0, typ) if n2 else [])
        if e == 3:
            tagn = f"L{kb + 1}" if kb < 6 else "W2a"
            hold = 2

            def pre_fn(tagn=tagn):
                E._wait(None, 0)
                E.wait_tags(tagn)
                E.emit(barrier())
            pre = [pre_fn]
            if kb + 3 <= 6:
                pend.extend(load_group(kb + 3, typ))
            elif kb == 4 and n2:
                pend.extend(load_group2([0, 1, 2, 3], "W2a", typ))
            elif kb == 5 and n2:
                pend.extend(load_group2([4, 5, 6], "W2b", typ))
        must += nxt
        if head and e == 0:
            must.append(ds_read(128, HXF, vHXR, slot * 4096))
            for n, f in ((1, HWK), (2, HWV)):
                o = slot * WR_SLOT_H + n * 64
                must.append(ds_read(64, V(f[1], 2), vWH, o, tr=True))
                must.append(ds_read(64, V(f[1] + 2, 2), vWH, o + 768, tr=True))
        if s == 19:
            assert len(fill) <= (24 if typ == "h0" else 0), len(fill)
        if s == Opt.pfw and s:
            assert len(fill) <= (56 if head else 0), len(fill)
        if Opt.pfw > 0 and s >= Opt.pfw and (s - Opt.pfw) % Opt.pfstep == 0 and (s - Opt.pfw) // Opt.pfstep < 5:
            k = (s - Opt.pfw) // Opt.pfstep
            if k < 4:
                must.append(buf_load(vPFD, vPW[0], SRD_WD, 0, 0, Opt.ldpf) if k == 0 else
                            [salu("s_mov_b32", sSO2, k * 3200), buf_load(vPFD, vPW[0], SRD_WD, sSO2, 0, Opt.ldpf)])
            else:
                must.append(buf_load(vPFD, vPW[1], SRD_WO, 0, 0, Opt.ldpf))
        if Opt.kpf and s in (Opt.kpf, Opt.kpf + 3, Opt.kpf + 6):
            must.insert(0, kpf(4 + (s - Opt.kpf) // 3))
        if s == 12 and Opt.kpf:
            must += srd_items(SRD_OUT, P_OUT, 2048 * 896)
        steps_left = 4 if e == 3 else 3 - e
        ndma = math.ceil(len(pend) / steps_left)
        dm = [pend.popleft() for _ in range(ndma)]
        weave(E, ms, must, fill, hold=hold, pre=pre, dmas=dm, must_per_gap=Opt.rpg)
    assert not pend and not fill
    stamp(E, 3)
    if head:
        its, tail = head_epi(typ)
        fill.extend(its)
        fill.extend(tail())
    else:
        for n in range(4):
            for t in range(2):
                fill.extend(glu_epi(acc1(n, t), (n * 2 + t) * 1024, "e1"))
    done_at = None
    flagged = False
    nb_iss = 0
    if n2 == 0:
        while fill:
            put(E, fill.popleft())
        stamp(E, 4)
        while nb_iss < Opt.h0b:
            for it in b_dma(nb_iss, typ):
                E.emit(it)
            nb_iss += 1
        its = flag_set(0, ("e1",))
        its[1] = set_exec(3)
        E.emit(its)
        while nb_iss < npre:
            for it in b_dma(nb_iss, typ):
                E.emit(it)
            nb_iss += 1
        E.emit(poll())
        stamp(E, 5)
        stamp(E, 1, 2)
        return nb_iss
    for s in range(28):
        buf = s & 1
        ms = []
        for n in range(n2):
            for t in range(2):
                c = 0 if s == 0 else acc2(n, t)
                ms.append(mfma(acc2(n, t), wf2(buf, n), xfrag(s, t), c))
        must = reads2(s + 1, typ) if s < 27 else []
        hold, pre = 0, None
        if s == 15:
            hold = 1

            def pre_fn():
                E._wait(None, 0)
                E.wait_tags("W2b")
                E.emit(barrier())
            pre = [pre_fn]
        dm = []
        if done_at is not None:
            lim = npre if s > 15 else npre0
            per = math.ceil((npre - nb_iss) / max(1, 27 - s))
            while nb_iss < lim and per > 0:
                dm.extend(b_dma(nb_iss, typ))
                nb_iss += 1
                per -= 1
            if not flagged and s >= done_at + Opt.f1d:
                dm.append(flag_set(0, ("e1",)))
                flagged = True
        bud = Opt.budget2h if head else Opt.budget2
        weave(E, ms, must, fill, hold=hold, pre=pre, budget=bud, dmas=dm)
        if not fill and done_at is None:
            done_at = s
    stamp(E, 4)
    assert not fill
    epi = []
    for n in range(n2):
        for t in range(2):
            epi.append(glu_epi(acc2(n, t), (sP2O, (n * 2 + t) * 1024), "e2"))
    for k in range(max(len(x) for x in epi)):
        if k == Opt.poll0:
            if not flagged:
                E.emit(flag_set(0, ("e1",)))
                flagged = True
            E.emit(poll())
        for ep in epi:
            if k < len(ep):
                E.emit(ep[k])
    stamp(E, 5)
    stamp(E, 1, 2)
    return nb_iss


def diag_store(E, nst):
    if Opt.dbgclk:
        lab = f"L_dbg{len(E.out)}"
        E.raw(f"""    s_memtime s[90:91]
    s_memrealtime s[92:93]
    s_waitcnt lgkmcnt(0)
    s_cmp_lt_u32 s2, 8
    s_cbranch_scc0 {lab}
    s_cmp_eq_u32 s60, 0
    s_cbranch_scc0 {lab}
    s_mov_b32 s28, s22
    s_mov_b32 s29, s23
    s_mov_b32 s30, 256
    s_mov_b32 s31, 0x20000
    s_sub_u32 s90, s90, s86
    s_sub_u32 s92, s92, s88
    s_lshl_b32 s64, s2, 3
    v_mov_b32 v1, s64
    v_mov_b32 v2, s90
    v_mov_b32 v3, s92
    s_mov_b64 exec, 1
    s_nop 4
    buffer_store_dwordx2 v[2:3], v1, s[28:31], 0 offen
{lab}:""")
        return
    if not Opt.diag:
        return
    E.emit(I("s_waitcnt lgkmcnt(0)", kind="wait"))
    E.lg = []
    E.emit(salu("s_lshl_b32", sT0, sWG, 2))
    E.emit(salu("s_add_u32", sT0, sT0, sW))
    E.emit(salu("s_lshl_b32", sT0, sT0, 6))
    E.emit(salu("s_add_u32", sT0, sT0, DIAG_OFF))
    E.emit(valu("v_mov_b32", V(1), sT0))
    for i in range(nst):
        E.emit(valu("v_mov_b32", V(2), S(sDIAG + 2 * i)))
        E.emit(buf_store(V(2), V(1), SRD_WS, 0, 4 * i))
        E.nop(2)


def gen_p2(E, typ, npre):
    head = typ != "glu"
    ACCH, ACCO = 0, 64
    vA, vG0, vG1, vRW, vRR, vO = [V(200 + i) for i in range(6)]
    t = [V(208 + i) for i in range(8)]
    vT = {(r, c): V(128 + k) for k, (r, c) in enumerate((r, c) for r in "xtw" for c in range(2))}
    BF = 136
    fl = Opt.ld2
    blk = blocks(typ)[0]
    NB = len(blk)
    D = Opt.D
    RA = 28
    lab = typ

    def publish_last():
        if typ == "h0":
            its = flag_set(0, ("e1",))
            its[1] = set_exec(3)
            return its
        return flag_set(1, ("e2",))

    if not head:
        E.emit(scmp("s_cmp_eq_u32", sJ, 3))
        E.emit(branch("s_cbranch_scc0", "L_p2_go"))
        sv = (list(E.vm), list(E.lg), list(E.hist))
        E.emit(publish_last())
        diag_store(E, 8)
        E.emit(I("s_endpgm", kind="branch"))
        E.label("L_p2_go")
        E.vm, E.lg, E.hist = sv
    E.emit(salu("s_lshl_b32", sT0, sRB, 2))
    E.emit(salu("s_add_u32", sT0, sT0, sCQ))
    E.emit(salu("s_mov_b32", sSPIN, 0))

    def check(ph):
        mask = PHMASK[ph]
        E.emit(valu("v_cmp_eq_u64", "vcc", vTAG, vFD))
        E.emit(I(f"s_and_b32 {rs(sT5)}, vcc_lo, 0x{mask:x}", regset("vcc"), regset(sT5), "salu"))
        E.emit(scmp("s_cmp_eq_u32", sT5, mask))
        E.emit(branch("s_cbranch_scc1", f"L_fl_ok_{lab}_{ph}"))
        E.label(f"L_fl_loop_{lab}_{ph}")
        E.raw("    s_sleep 4")
        E.raw(f"    buffer_load_dwordx2 {rs(vFD)}, {rs(vFP)}, {rs(SRD_WS)}, 0 offen sc1")
        E.raw("    s_waitcnt vmcnt(0)")
        E.raw(f"    v_cmp_eq_u64 vcc, {rs(vTAG)}, {rs(vFD)}")
        E.raw(f"    s_add_u32 {rs(sSPIN)}, {rs(sSPIN)}, 1")
        E.raw(f"    s_cmp_gt_u32 {rs(sSPIN)}, {Opt.spin}")
        E.raw(f"    s_cbranch_scc1 L_fl_ok_{lab}_{ph}")
        E.raw(f"    s_and_b32 {rs(sT5)}, vcc_lo, 0x{mask:x}")
        E.raw(f"    s_cmp_eq_u32 {rs(sT5)}, 0x{mask:x}")
        E.raw(f"    s_cbranch_scc0 L_fl_loop_{lab}_{ph}")
        E.label(f"L_fl_ok_{lab}_{ph}")

    E.emit(barrier(need=()))
    E.emit(salu("s_mul_i32", sT1, sT0, 144))
    E.emit(salu("s_mul_i32", sT2, sW, 36))
    E.emit(salu("s_add_u32", sT1, sT1, sT2))
    E.emit(salu("s_lshl_b32", sT1, sT1, 11))
    E.emit(valu("v_add_u32", vA, sT1, vL16))
    hf, r4, gi, ng = t[0], t[1], t[2], t[3]
    E.emit(valu("v_lshrrev_b32", hf, 5, vLANE))
    E.emit(valu("v_bfe_u32", r4, vLANE, 2, 2))
    E.emit(valu("v_bfe_u32", gi, vLANE, 4, 1))
    E.emit(valu("v_and_b32", t[4], 3, vLANE))
    E.emit(valu("v_lshl_add_u32", gi, gi, 2, t[4]))
    E.emit(valu("v_and_b32", t[4], 1, gi))
    E.emit(valu("v_lshrrev_b32", ng, 1, gi))
    E.emit(valu("v_lshl_add_u32", ng, t[4], 2, ng))
    E.emit(valu("v_lshl_add_u32", t[4], hf, 2, r4))
    E.emit(valu("v_lshlrev_b32", t[4], 7, t[4]))
    E.emit(valu("v_lshl_add_u32", t[4], ng, 3, t[4]))
    E.emit(valu("v_lshrrev_b32", t[5], 1, r4))
    E.emit(valu("v_lshl_add_u32", t[6], t[5], 6, t[4]))
    E.emit(valu("v_xor_b32", t[5], 1, t[5]))
    E.emit(valu("v_lshl_add_u32", t[7], t[5], 6, t[4]))
    for r, sb in (("x", sXB), ("t", sTOPB), ("w", sWRB)):
        E.emit(valu("v_add_u32", vT[(r, 0)], sb, t[6]))
        E.emit(valu("v_add_u32", vT[(r, 1)], sb, t[7]))

    vPA = [V(152), V(153), V(154)]
    for ph in range(3):
        nl = (PHEND[ph] - PHSTART[ph]) * 16
        per = -(-nl // 7)
        E.emit(salu("s_mul_i32", sT2, sJC, per))
        E.emit(valu("v_min_u32", t[4], per - 1, vLANE))
        E.emit(valu("v_add_u32", t[4], sT2, t[4]))
        E.emit(valu("v_min_u32", t[4], nl - 1, t[4]))
        E.emit(valu("v_lshlrev_b32", t[4], 7, t[4]))
        E.emit(salu("s_add_u32", sT2, sT1, PHSTART[ph] * 2048))
        E.emit(valu("v_add_u32", vPA[ph], sT2, t[4]))

    def areg(i):
        return A((i % 32) * 8, 8)

    def a_loads(i):
        f, r, _ = areg(i)
        so = (i * 2048) & ~4095
        io = (i * 2048) & 4095
        its = []
        if so:
            its.append(salu("s_mov_b32", sSO2, so))
        sof = sSO2 if so else 0
        its.append(buf_load((f, r, 4), vA, SRD_WS, sof, io, fl))
        its.append(buf_load((f, r + 4, 4), vA, SRD_WS, sof, io + 1024, fl))
        return its

    def b_reads(i):
        reg, off = blk[i % NB]
        o = BF + (i & 1) * 8
        its = []
        for c in range(2):
            its.append(ds_read(64, V(o + 4 * c, 2), vT[(reg, c)], off, tr=True, need=(f"B{i}",)))
            its.append(ds_read(64, V(o + 4 * c + 2, 2), vT[(reg, c)], off + 1024, tr=True, need=(f"B{i}",)))
        return its

    published = [False]
    nxt = {"a": 0, "b": npre}

    def phase(ph):
        if ph == 0:
            stamp(E, 2, 2)
        check(ph)
        stamp(E, 3 + ph, 2)
        if Opt.pfa:
            E.emit(buf_load(vPFD, vPA[ph], SRD_WS, 0, 0, " sc1"))
        if ph == 1:
            E.emit(salu("s_lshl_b32", sT1, sT0, 2))
            E.emit(salu("s_add_u32", sT1, sT1, sW))
            E.emit(salu("s_lshl_b32", sT1, sT1, 11))
            E.emit(salu("s_add_u32", sT1, sT1, G_OFF + 128))
            E.emit(valu("v_and_b32", t[0], 31, vLANE))
            E.emit(valu("v_lshlrev_b32", t[1], 2, t[0]))
            E.emit(valu("v_add_u32", t[1], sT1, t[1]))
            E.emit(buf_load(vG0, t[1], SRD_WS, 0, 0, " sc1"))
            E.emit(buf_load(vG1, t[1], SRD_WS, 0, 256, " sc1"))

    def issue_a(upto):
        while nxt["a"] < min(upto, 36):
            i = nxt["a"]
            if i in PHSTART:
                phase(PHSTART.index(i))
            E.emit(a_loads(i))
            nxt["a"] += 1
            if i + Opt.pollahead in PHSTART[1:]:
                E.emit(poll())
            if not published[0] and i >= Opt.pubat:
                E.emit(publish_last())
                published[0] = True

    def issue_b(upto):
        while nxt["b"] < min(upto, 36):
            for it in b_dma(nxt["b"], typ):
                E.emit(it)
            nxt["b"] += 1

    if typ == "h0":
        published[0] = True
    issue_a(4)
    issue_b(min(NB, npre + Opt.bfirst))
    issue_a(D)
    E.emit(salu("s_lshl_b32", sT1, sW, 12))
    E.emit(valu("v_add_u32", vRW, sT1, vL16))
    E.emit(salu("s_lshl_b32", sT1, sW, 14))
    E.emit(valu("v_add_u32", vRR, sT1, vL16))
    E.emit(salu("s_lshl_b32", sT1, sT0, 6))
    E.emit(salu("s_lshr_b32", sT2, sW, 1))
    E.emit(salu("s_lshl_b32", sT2, sT2, 5))
    E.emit(salu("s_add_u32", sT1, sT1, sT2))
    E.emit(valu("v_and_b32", t[4], 31, vLANE))
    E.emit(valu("v_add_u32", t[4], sT1, t[4]))
    E.emit(valu("v_mul_u32_u24", t[4], 896, t[4]))
    E.emit(valu("v_lshrrev_b32", t[5], 5, vLANE))
    E.emit(valu("v_lshl_add_u32", t[4], t[5], 5, t[4]))
    E.emit(salu("s_lshl_b32", sT1, sJC, 7))
    E.emit(salu("s_and_b32", sT2, sW, 1))
    E.emit(salu("s_lshl_b32", sT2, sT2, 6))
    E.emit(salu("s_add_u32", sT1, sT1, sT2))
    E.emit(valu("v_add_u32", vO, sT1, t[4]))
    stamp(E, 6)
    for it in b_reads(0):
        E.emit(it)
    seen = set()
    gsc = deque([valu("v_sub_f32", t[0], 1.0, vG0), valu("v_sub_f32", t[1], 1.0, vG1)])
    for tt in range(2):
        for r in range(32):
            gsc.append(valu("v_mul_f32", V(ACCO + tt * 32 + r), V(ACCO + tt * 32 + r), vG0 if tt == 0 else vG1))
    for i in range(36):
        f, r, _ = areg(i)
        o = BF + (i & 1) * 8
        if i in (20, 30):
            stamp(E, {20: 6, 30: 7}[i], 2)
        base = ACCO if chunk(i)[0] == "o" else ACCH
        k = 0
        for tt in range(2):
            for c in range(2):
                d = V(base + (tt * 2 + c) * 16, 16)
                first = (base, tt, c) not in seen
                seen.add((base, tt, c))
                E.emit(mfma(d, V(o + 4 * c, 4), (f, r + 4 * tt, 4), 0 if first else d))
                if k == 0 and i + 1 < 36:
                    for it in b_reads(i + 1):
                        E.emit(it)
                if k >= 2 and i >= 25:
                    for _ in range(4):
                        if gsc:
                            E.emit(gsc.popleft())
                if k == 1:
                    issue_a(i + D + 1)
                    issue_b(min(i + NB + 1, nxt["b"] + Opt.bstep))
                k += 1
    assert published[0]
    stamp(E, 7)
    while gsc:
        E.emit(gsc.popleft())
    E.emit(barrier())
    for q in range(4):
        for r in range(16):
            E.emit(valu("v_fmac_f32", V(ACCO + q * 16 + r), V(ACCH + q * 16 + r), t[q >> 1]))
        for k in range(4):
            E.emit(ds_write(128, vRW, V(ACCO + q * 16 + 4 * k, 4), q * 16384 + k * 1024, tag="red"))
    E.emit(barrier(need=("red",)))
    for src in range(4):
        for k in range(4):
            E.emit(ds_read(128, V(ACCH + src * 16 + 4 * k, 4), vRR, src * 4096 + k * 1024))
    for r in range(16):
        E.emit(valu("v_add_f32", V(ACCH + r), V(ACCH + r), V(ACCH + 16 + r)))
    for r in range(16):
        E.emit(valu("v_add_f32", V(ACCH + 32 + r), V(ACCH + 32 + r), V(ACCH + 48 + r)))
    for r in range(16):
        E.emit(valu("v_add_f32", V(ACCH + r), V(ACCH + r), V(ACCH + 32 + r)))
    for it in pack_inplace(ACCH, ACCH, 8):
        E.emit(it)
    E.emit(buf_store(V(ACCH, 4), vO, SRD_OUT, 0, 0))
    E.emit(buf_store(V(ACCH + 4, 4), vO, SRD_OUT, 0, 16))
    if not head:
        E.emit(salu("s_or_b32", sT1, sCQ, sJ))
        E.emit(salu("s_or_b32", sT1, sT1, sW))
        E.emit(scmp("s_cmp_eq_u32", sT1, 0))
        E.emit(branch("s_cbranch_scc0", "L_nogen"))
        E.emit([set_exec(1), buf_store(vTAG, vGA, SRD_WS, 0, 0, " sc1"), set_exec(-1)])
        E.label("L_nogen")
    if Opt.diag and Opt.sset == 0:
        E.emit(I(f"s_memtime s[{sDIAG + 2}:{sDIAG + 3}]", (), (), "smem"))


KD = """.section .rodata,"a"
.p2align 6
.amdhsa_kernel {name}
  .amdhsa_next_free_vgpr 512
  .amdhsa_next_free_sgpr 102
  .amdhsa_accum_offset 256
  .amdhsa_group_segment_fixed_size 0
  .amdhsa_kernarg_size 88
  .amdhsa_user_sgpr_count 2
  .amdhsa_user_sgpr_kernarg_segment_ptr 1
  .amdhsa_system_sgpr_workgroup_id_x 1
.end_amdhsa_kernel
"""


def header(launches):
    h = open(f"cdna_kernels/{NAME}.s.ref").read().split("\n")
    out = []
    for l in h:
        if l.startswith("; @launch") or l.startswith("; Override") or l.startswith("; grid=ceil"):
            continue
        if not l.startswith(";"):
            break
        out.append(l)
    out += launches
    out.append('.amdgcn_target "amdgcn-amd-amdhsa--gfx950"')
    out.append(".text")
    return "\n".join(out) + "\n"


def gen():
    kn = NAME + "_kernel"
    txt = header([f"; @launch grid=(256,1,1) block=(256,1,1) lds={LDS_BYTES}"])
    E = Emitter()
    common_prologue(E)
    E.emit(salu("s_movk_i32", sT3, 0x55A3))
    E.emit(salu("s_lshl_b32", sHD, sCQ, 2))
    E.emit(salu("s_add_u32", sHD, sHD, sJ))
    E.emit(salu("s_sub_u32", sHD, sHD, 4))
    E.emit(scmp("s_cmp_lt_u32", sJ, 4))
    E.emit(branch("s_cbranch_scc1", "L_glu"))
    E.emit(I(f"s_bitcmp1_b32 {rs(sT3)}, {rs(sHD)}", regset(sT3, sHD), (), "salu"))
    E.emit(branch("s_cbranch_scc1", "L_h2"))
    st = (list(E.vm), list(E.lg), list(E.hist))
    for typ in ("h0", "h2", "glu"):
        if typ != "h0":
            E.label(f"L_{typ}")
            E.vm, E.lg, E.hist = list(st[0]), list(st[1]), list(st[2])
        npre = gen_p1(E, typ)
        gen_p2(E, typ, npre)
        diag_store(E, 8)
        if typ != "glu":
            E.emit(I("s_endpgm", kind="branch"))
    E.label("L_end")
    E.emit(I("s_endpgm", kind="branch"))
    E.label("L_codeend")
    txt += f".globl {kn}\n.p2align 8\n.type {kn},@function\n{kn}:\n" + E.text()
    txt += ".fill 64, 4, 0xBF800000\n"
    txt += KD.format(name=kn)
    sys.stderr.write(f"nops: {E.nops}\n")
    return txt


if __name__ == "__main__":
    ap = argparse.ArgumentParser()
    ap.add_argument("--diag", action="store_true")
    ap.add_argument("--sset", type=int, default=0)
    ap.add_argument("--budget", type=int, default=5)
    ap.add_argument("--norot", action="store_true")
    ap.add_argument("--rpg", type=int, default=2)
    ap.add_argument("--ld1", default="")
    ap.add_argument("--st1", default="sc1")
    ap.add_argument("--ld2", default="sc1")
    ap.add_argument("--ldb", default="")
    ap.add_argument("--npre", type=int, default=99)
    ap.add_argument("--D", type=int, default=8)
    ap.add_argument("--epoll", type=int, default=24)
    ap.add_argument("--bfirst", type=int, default=4)
    ap.add_argument("--pollahead", type=int, default=4)
    ap.add_argument("--pubat", type=int, default=6)
    ap.add_argument("--poll0", type=int, default=24)
    ap.add_argument("--pfw", type=int, default=12)
    ap.add_argument("--pfstep", type=int, default=3)
    ap.add_argument("--c1", type=int, default=0)
    ap.add_argument("--c2", type=int, default=16)
    ap.add_argument("--astep", type=int, default=2)
    ap.add_argument("--h0b", type=int, default=3)
    ap.add_argument("--kpf", type=int, default=0)
    ap.add_argument("--dbgclk", action="store_true")
    ap.add_argument("--ldk", default="")
    ap.add_argument("--bstep", type=int, default=1)
    ap.add_argument("--f1d", type=int, default=8)
    ap.add_argument("--f1dh", type=int, default=12)
    ap.add_argument("--budget2h", type=int, default=12)
    ap.add_argument("--noa", action="store_true")
    ap.add_argument("--fakeh", action="store_true")
    ap.add_argument("--nob", action="store_true")
    ap.add_argument("--pfa", type=int, default=0)
    ap.add_argument("--lead", type=int, default=4)
    ap.add_argument("--budget2", type=int, default=12)
    ap.add_argument("--ldpf", default="")
    ap.add_argument("--f1u", type=int, default=7)
    ap.add_argument("--spin", type=int, default=20000)
    ap.add_argument("-o", default=f"cdna_kernels/{NAME}.s")
    args = ap.parse_args()
    for k, v in vars(args).items():
        setattr(Opt, k, v)
    Opt.rot = not args.norot
    fx = lambda x: (" " + x.replace("+", " ")) if x else ""
    Opt.ld1, Opt.st1, Opt.ld2, Opt.ldb = fx(args.ld1), fx(args.st1), fx(args.ld2), fx(args.ldb)
    Opt.ldpf = fx(args.ldpf)
    Opt.ldk = fx(args.ldk)
    for p in range(768):
        assert (p * 43691) >> 19 == p // 12
    open(args.o, "w").write(gen())
```

```python
import sys, math, argparse
from collections import deque
from emit import *

NAME = "gated_mix__sliding_local_dilated__glu_gated_glu__prompt"

A2_OFF = 0x0
G_OFF = 0xC00000
FLAG_OFF = 0xD00000
GEN_OFF = FLAG_OFF + 0x4000
DIAG_OFF = 0xE00000
WS_BYTES = 0x1000000

XW = 24576
WR_BASE = 98304
WR_SLOT_H = 12544
WR_SLOT_G = 16384
HX_BASE = WR_BASE + 3 * WR_SLOT_H
GW_BASE = HX_BASE + 3 * 4096
TOP_BASE = 149504
HP_BASE = WR_BASE
HS_BASE = WR_BASE + 4 * 6144
assert HS_BASE + 5 * 3072 <= GW_BASE
LDS_BYTES = 163840

LOG2E = 1.4426950408889634
CSC = (28 ** -0.5) * LOG2E
NEGBIG = -1.0e30

sWG = S(2)
P_X, P_WQKV, P_WO, P_BX, P_WG, P_WU, P_WD, P_GW, P_OUT, P_DBG, P_WS = [4 + 2 * i for i in range(11)]
SRD_X, SRD_QKV, SRD_GU, SRD_WO, SRD_GW, SRD_OUT, SRD_WS, SRD_DBG = [S(28 + 4 * i, 4) for i in range(8)]
SRD_WD = SRD_DBG
sW, sRB, sCQ, sJ = S(60), S(61), S(62), S(63)
sT0, sT1, sT2, sT3, sT4, sT5 = [S(64 + i) for i in range(6)]
sXB = S(70)
sWD = S(71)
sW2D = S(72)
sHXD = S(73)
sHD = S(74)
sU = S(77)
sSO = S(75)
sSO2 = S(76)
sC = S(83)
sGMASK = S(78, 2)
sLOMASK = S(80, 2)
sFIRST = S(0, 2)
sPC = S(84, 2)
sP2O = S(27)
sTOPB = S(26)
sWRB = S(3)
sSPIN = S(84)
sJC = S(85)
sDIAG = 86
sKX = [S(4 + i) for i in range(7)]

vL16 = V(224)
vXe, vXo = V(225), V(226)
vW = [V(227), V(228), V(229)]
vW2 = V(230)
vHX = V(231)
vXR = [V(232 + i) for i in range(4)]
vWR = V(236)
vWH = V(237)
vHXR = V(238)
vW2R = [[V(239), V(240)], [V(241), V(242)]]
vGW = V(243)
vWR4 = [V(236), V(237), V(238), V(243)]
vFL = V(244)
vBo, vBd = V(245), V(223)
vST = V(246)
vLANE = V(247)
vNEG = V(248)
vHP, vHPK, vHPV, vHSK, vHSV, vHSI = [V(249 + i) for i in range(6)]
vGWs = V(255)
vGA = V(222)
vTAG = V(220, 2)
TMP = 200


def pieces(i):
    if i < 4:
        return i * XW + 8192
    return (i - 4) * XW + 16384


class Opt:
    pass


def stamp(E, idx, sset=0):
    if Opt.diag and (sset == Opt.sset or sset < 0):
        E.emit(I(f"s_memtime s[{sDIAG + 2 * idx}:{sDIAG + 2 * idx + 1}]", (), (), "smem"))


def item_cost(it):
    if callable(it):
        return 0
    if isinstance(it, I):
        return it.cost
    return sum(x.cost for x in it)


def put(E, it):
    if callable(it):
        it()
    else:
        E.emit(it)


def weave(E, mfmas, must, fill, budget=None, hold=0, pre=None, dmas=(), must_per_gap=None):
    budget = budget or Opt.budget
    must = deque(must)
    dmas = list(dmas)
    n = len(mfmas)
    first = max(hold - 1, 0)
    slots = {}
    if dmas:
        ng = n - first
        for k, d in enumerate(dmas):
            g = first + min(ng - 1, int((k + 0.5) * ng / len(dmas)))
            slots.setdefault(g, []).append(d)
    for g, m in enumerate(mfmas):
        E.emit(m)
        if g + 1 == hold and pre is not None:
            for it in pre:
                put(E, it)
        b = budget
        if g + 1 >= hold:
            gaps_left = n - g
            tot = sum(item_cost(x) for x in must)
            quota = max(must_per_gap or budget, math.ceil(tot / gaps_left))
            while must and quota > 0:
                it = must.popleft()
                put(E, it)
                quota -= item_cost(it)
                b -= item_cost(it)
            for it in slots.get(g, ()):
                put(E, it)
                b -= item_cost(it)
        while fill and b >= item_cost(fill[0]) and b > 0:
            it = fill.popleft()
            put(E, it)
            b -= item_cost(it)
    while must:
        put(E, must.popleft())


def srd_items(srd, ptr, nbytes):
    b = srd[1]
    return [salu("s_mov_b32", S(b), S(ptr)), salu("s_mov_b32", S(b + 1), S(ptr + 1)),
            salu("s_mov_b32", S(b + 2), nbytes), salu("s_mov_b32", S(b + 3), 0x20000)]


def set_exec(val):
    if isinstance(val, int):
        return I(f"s_mov_b64 exec, {val}", (), regset("exec"), "salu")
    return I(f"s_mov_b64 exec, {rs(val)}", regset(val), regset("exec"), "salu")


def common_prologue(E):
    E.emit(scmp("s_cmp_ge_u32", sWG, 256))
    E.emit(branch("s_cbranch_scc1", "L_end"))
    stamp(E, 0, -1)
    if Opt.dbgclk:
        E.raw("    s_memtime s[86:87]\n    s_memrealtime s[88:89]")
    E.emit(I("s_load_dwordx16 s[4:19], s[0:1], 0x0", kind="smem"))
    E.emit(I("s_load_dwordx4 s[20:23], s[0:1], 0x40", kind="smem"))
    E.emit(I("s_load_dwordx2 s[24:25], s[0:1], 0x50", kind="smem"))
    E.emit(I("s_getpc_b64 s[84:85]", (), regset(sPC), "salu"))
    E.label("L_pc")
    E.emit(valu("v_and_b32", vLANE, 63, V(0)))
    E.emit(valu("v_lshrrev_b32", V(1), 6, V(0)))
    E.emit(salu("s_lshr_b32", sT0, sWG, 3))
    E.emit(readfirstlane(sW, V(1)))
    E.emit(salu("s_and_b32", sT1, sT0, 3))
    E.emit(valu("v_lshlrev_b32", V(2), 2, V(0)))
    E.emit(valu("v_add_u32", V(2), sT1, V(2)))
    E.emit(valu("v_lshlrev_b32", V(2), 7, V(2)))
    E.emit(valu("v_cmp_gt_u32", "vcc", "L_codeend-L_pc", V(2)))
    E.emit(I("s_and_saveexec_b64 s[66:67], vcc", regset("vcc"), regset(S(66, 2), "exec"), "salu"))
    E.emit(branch("s_cbranch_execz", "L_nopf"))
    E.emit(I("global_load_dword v3, v2, s[84:85]", regset(V(2), sPC), regset(V(3)), "vm_ld"))
    E.label("L_nopf")
    E.emit(set_exec(-1))
    E.vm = []
    E.emit(valu("v_lshlrev_b32", vL16, 4, vLANE))
    E.emit(salu("s_and_b32", sT1, sWG, 1))
    E.emit(salu("s_lshl_b32", sT1, sT1, 2))
    E.emit(salu("s_lshr_b32", sT2, sT0, 3))
    E.emit(salu("s_add_u32", sRB, sT1, sT2))
    E.emit(salu("s_and_b32", sT1, sWG, 7))
    E.emit(salu("s_lshr_b32", sCQ, sT1, 1))
    E.emit(salu("s_and_b32", sJ, sT0, 7))
    t = [V(TMP + i) for i in range(8)]
    r8, c8, ch = t[0], t[1], t[2]
    E.emit(valu("v_lshrrev_b32", r8, 3, vLANE))
    E.emit(valu("v_and_b32", c8, 7, vLANE))
    E.emit(valu("v_lshrrev_b32", ch, 1, r8))
    E.emit(valu("v_xor_b32", ch, ch, c8))
    E.emit(salu("s_lshl_b32", sT0, sRB, 8))
    E.emit(salu("s_lshl_b32", sT1, sW, 6))
    E.emit(salu("s_add_u32", sT0, sT0, sT1))
    E.emit(valu("v_add_u32", t[3], sT0, r8))
    E.emit(valu("v_mul_u32_u24", t[3], 896, t[3]))
    E.emit(valu("v_lshl_add_u32", vXe, ch, 4, t[3]))
    E.emit(valu("v_xor_b32", t[4], 4, ch))
    E.emit(valu("v_lshl_add_u32", vXo, t[4], 4, t[3]))
    E.emit(valu("v_add_u32", vXo, 8 * 896, vXo))
    E.emit(salu("s_mul_i32", sXB, sW, XW))
    if Opt.rot:
        E.emit(salu("s_and_b32", sT5, sRB, 3))
        E.emit(salu("s_lshl_b32", sT5, sT5, 1))
        E.emit(salu("s_add_u32", sT5, sT5, sJ))
        E.emit(scmp("s_cmp_ge_u32", sT5, 7))
        E.emit(salu("s_cselect_b32", sT1, 7, 0))
        E.emit(salu("s_sub_u32", sT5, sT5, sT1))
    else:
        E.emit(salu("s_mov_b32", sT5, 0))
    E.emit(salu("s_movk_i32", sT3, 0x55A3))
    E.emit(salu("s_lshl_b32", sHD, sCQ, 2))
    E.emit(salu("s_add_u32", sHD, sHD, sJ))
    E.emit(salu("s_sub_u32", sHD, sHD, 4))
    E.emit(I("s_waitcnt lgkmcnt(0)", kind="wait"))
    stamp(E, 1, 1)
    E.emit(srd_items(SRD_X, P_X, 2048 * 896))
    E.emit(salu("s_lshl_b32", sKX[0], sT5, 7))
    for it in x_group(0):
        E.emit(it)
    stamp(E, 2, 1)


def setup_early(E, typ):
    t = [V(TMP + i) for i in range(12)]
    r8, c8, ch = t[0], t[1], t[2]
    head = typ != "glu"
    E.emit(salu("s_mul_i32", sT4, sCQ, 896))
    if head:
        E.emit(salu("s_mul_i32", sT0, sW, 192))
        E.emit(salu("s_mul_i32", sT1, sHD, 56))
        for q in range(3):
            p, row, cx = t[5], t[6], t[7]
            E.emit(valu("v_add_u32", p, sT0, vLANE))
            if q:
                E.emit(valu("v_add_u32", p, 64 * q, p))
            E.emit(valu("v_mul_u32_u24", row, 43691, p))
            E.emit(valu("v_lshrrev_b32", row, 19, row))
            E.emit(valu("v_mul_u32_u24", cx, 12, row))
            E.emit(valu("v_sub_u32", cx, p, cx))
            E.emit(valu("v_mul_u32_u24", row, 2688, row))
            E.emit(valu("v_lshrrev_b32", p, 2, cx))
            E.emit(valu("v_mul_u32_u24", p, 896, p))
            E.emit(valu("v_add_u32", row, row, p))
            E.emit(valu("v_and_b32", cx, 3, cx))
            E.emit(valu("v_lshl_add_u32", row, cx, 4, row))
            E.emit(valu("v_add_u32", vW[q], sT1, row))
        E.emit(salu("s_mul_i32", sWD, sW, 3072))
        E.emit(salu("s_add_u32", sWD, sWD, WR_BASE))
        E.emit(salu("s_lshl_b32", sT0, sRB, 8))
        E.emit(salu("s_lshl_b32", sT1, sW, 3))
        E.emit(salu("s_add_u32", sT0, sT0, sT1))
        E.emit(salu("s_sub_u32", sT0, sT0, 32))
        E.emit(valu("v_add_u32", t[5], sT0, r8))
        E.emit(salu("s_movk_i32", sT2, 896))
        E.emit(valu("v_mul_lo_u32", t[5], t[5], sT2))
        E.emit(salu("s_and_b32", sT1, sW, 1))
        E.emit(salu("s_lshl_b32", sT1, sT1, 2))
        E.emit(valu("v_xor_b32", t[6], sT1, ch))
        E.emit(valu("v_lshl_add_u32", vHX, t[6], 4, t[5]))
        E.emit(salu("s_lshl_b32", sHXD, sW, 10))
        E.emit(salu("s_add_u32", sHXD, sHXD, HX_BASE))
        E.emit(salu("s_lshr_b32", sT1, 0x4482, sHD))
        E.emit(salu("s_and_b32", sU, sT1, 1))
        E.emit(salu("s_lshl_b32", sT1, sU, 6))
        E.emit(salu("s_add_u32", sT4, sT4, sT1))
        E.emit(salu("s_add_u32", sT4, sT4, 768))
    else:
        E.emit(salu("s_lshl_b32", sT1, sJ, 7))
        E.emit(salu("s_add_u32", sT1, sT4, sT1))
        E.emit(salu("s_and_b32", sT0, sW, 1))
        E.emit(salu("s_lshl_b32", sT0, sT0, 5))
        E.emit(valu("v_add_u32", t[5], sT0, r8))
        E.emit(valu("v_mul_u32_u24", t[5], 3584, t[5]))
        E.emit(valu("v_bfe_u32", t[6], vLANE, 4, 1))
        E.emit(valu("v_lshlrev_b32", t[6], 1, t[6]))
        E.emit(valu("v_xor_b32", t[6], t[6], c8))
        E.emit(salu("s_and_b32", sT0, sW, 2))
        E.emit(salu("s_lshl_b32", sT0, sT0, 1))
        E.emit(valu("v_xor_b32", t[6], sT0, t[6]))
        E.emit(valu("v_lshl_add_u32", t[5], t[6], 4, t[5]))
        E.emit(valu("v_add_u32", vW[0], sT1, t[5]))
        E.emit(salu("s_lshl_b32", sWD, sW, 12))
        E.emit(salu("s_add_u32", sWD, sWD, WR_BASE))
        E.emit(salu("s_lshl_b32", sT1, sJ, 6))
        E.emit(salu("s_add_u32", sT4, sT4, sT1))
        E.emit(salu("s_add_u32", sT4, sT4, 512))


SRD_PF = SRD_GW
vPF = V(212)
sPFS = S(82)
sPP = S(82)


def setup_kpf(E, typ):
    head = typ != "glu"
    t = [V(TMP + 8 + i) for i in range(4)]
    E.emit(salu("s_lshl_b32", sT0, sRB, 8))
    E.emit(salu("s_lshl_b32", sT1, sJ, 5))
    E.emit(salu("s_add_u32", sT0, sT0, sT1))
    E.emit(valu("v_and_b32", t[0], 31, vLANE))
    E.emit(valu("v_add_u32", t[0], sT0, t[0]))
    E.emit(valu("v_mul_u32_u24", t[0], 896, t[0]))
    pitch = 2688 if head else 3584
    E.emit(salu("s_and_b32", sT0, sRB, 3))
    E.emit(salu("s_lshl_b32", sT0, sT0, 4))
    E.emit(valu("v_bfe_u32", t[1], vLANE, 1, 4))
    E.emit(valu("v_add_u32", t[1], sT0, t[1]))
    E.emit(valu("v_mul_u32_u24", t[1], pitch, t[1]))
    E.emit(valu("v_and_b32", t[2], 1, vLANE))
    if head:
        E.emit(valu("v_mul_u32_u24", t[2], 60, t[2]))
        E.emit(salu("s_mul_i32", sT1, sHD, 56))
        E.emit(salu("s_mul_i32", sT0, sW, 896))
        E.emit(salu("s_add_u32", sT1, sT1, sT0))
        E.emit(salu("s_sub_u32", sT1, sT1, 896))
        E.emit(valu("v_add_u32", t[1], t[1], t[2]))
        E.emit(valu("v_add_u32", t[1], sT1, t[1]))
    else:
        E.emit(salu("s_mul_i32", sT1, sCQ, 896))
        E.emit(salu("s_lshl_b32", sT0, sJ, 7))
        E.emit(salu("s_add_u32", sT1, sT1, sT0))
        E.emit(salu("s_sub_u32", sT0, sT4, sT1))
        E.emit(valu("v_mul_lo_u32", t[2], t[2], sT0))
        E.emit(valu("v_add_u32", t[1], t[1], t[2]))
        E.emit(valu("v_add_u32", t[1], sT1, t[1]))
    E.emit(scmp("s_cmp_eq_u32", sW, 0))
    E.emit(I("s_cselect_b64 vcc, -1, 0", (), regset("vcc"), "salu"))
    E.emit(valu("v_cndmask_b32", vPF, t[1], t[0], "vcc"))
    E.emit(salu("s_mov_b32", sPFS, 64 * pitch))
    E.emit(salu("s_cselect_b32", sPFS, 128, sPFS))


def kpf(k):
    if k == 0:
        return [buf_load(vPFD, vPF, SRD_KPF, 0, 0, Opt.ldk)]
    return [salu("s_mul_i32", sSO, sPFS, k), buf_load(vPFD, vPF, SRD_KPF, sSO, 0, Opt.ldk)]


SRD_KPF = SRD_OUT


def setup_late(typ):
    head = typ != "glu"
    t = [V(TMP + i) for i in range(12)]
    r8, c8 = t[0], t[1]
    items = []
    e = items.append
    m, hf, sw, base = t[5], t[6], t[7], t[8]
    e(valu("v_and_b32", m, 31, vLANE))
    e(valu("v_lshrrev_b32", hf, 5, vLANE))
    e(valu("v_bfe_u32", sw, m, 1, 3))
    e(valu("v_lshlrev_b32", base, 7, m))
    e(valu("v_xor_b32", sw, sw, hf))
    for ee in range(4):
        e(valu("v_xor_b32", t[9], 2 * ee, sw))
        e(valu("v_lshl_add_u32", t[9], t[9], 4, base))
        e(valu("v_add_u32", vXR[ee], sXB, t[9]))
    if head:
        e(salu("s_lshl_b32", sT0, sW, 1))
        e(valu("v_xor_b32", t[9], sT0, sw))
        e(valu("v_lshl_add_u32", t[9], t[9], 4, base))
        e(valu("v_add_u32", vHXR, HX_BASE, t[9]))
    grp, r4, c4, krow = t[5], t[7], t[8], t[9]
    e(valu("v_bfe_u32", grp, vLANE, 4, 1))
    e(valu("v_bfe_u32", r4, vLANE, 2, 2))
    e(valu("v_and_b32", c4, 3, vLANE))
    e(valu("v_lshl_add_u32", krow, hf, 3, r4))
    if head:
        e(valu("v_mul_u32_u24", t[10], 192, krow))
        e(valu("v_lshl_add_u32", t[10], grp, 5, t[10]))
        e(valu("v_lshl_add_u32", t[10], c4, 3, t[10]))
        e(valu("v_add_u32", vWR, WR_BASE, t[10]))
        e(salu("s_mul_i32", sT0, sW, 3072))
        e(valu("v_add_u32", vWH, sT0, vWR))
        e(valu("v_lshlrev_b32", t[10], 4, hf))
        e(valu("v_add_u32", vGW, GW_BASE, t[10]))
        e(salu("s_mov_b32", S(sGMASK[1]), 1 << 28))
        e(salu("s_mov_b32", S(sGMASK[1] + 1), 1 << 28))
    else:
        e(valu("v_lshlrev_b32", t[10], 7, krow))
        e(valu("v_lshl_add_u32", t[10], grp, 13, t[10]))
        e(valu("v_lshl_add_u32", t[10], c4, 3, t[10]))
        e(valu("v_add_u32", t[10], WR_BASE, t[10]))
        e(valu("v_lshrrev_b32", t[11], 1, r4))
        e(valu("v_lshl_add_u32", t[11], grp, 1, t[11]))
        for n in range(4):
            e(valu("v_xor_b32", t[3], n, t[11]))
            e(valu("v_lshl_add_u32", vWR4[n], t[3], 5, t[10]))
    e(valu("v_lshlrev_b32", t[10], 6, krow))
    e(valu("v_lshl_add_u32", t[10], c4, 3, t[10]))
    e(valu("v_lshl_add_u32", t[10], grp, 12, t[10]))
    e(valu("v_lshl_add_u32", vW2R[0][0], grp, 5, t[10]))
    e(valu("v_xor_b32", t[11], 1, grp))
    e(valu("v_lshl_add_u32", vW2R[1][0], t[11], 5, t[10]))
    e(valu("v_add_u32", vW2R[0][1], 2 * XW, vW2R[0][0]))
    e(valu("v_add_u32", vW2R[1][1], 2 * XW, vW2R[1][0]))
    return items


def setup_fill(typ):
    head = typ != "glu"
    t = [V(TMP + i) for i in range(12)]
    r8, c8 = t[0], t[1]
    items = []
    e = items.append
    e(salu("s_and_b32", sT0, sW, 1))
    e(salu("s_lshl_b32", sT0, sT0, 5))
    e(salu("s_and_b32", sT1, sW, 2))
    e(valu("v_lshrrev_b32", t[5], 2, vLANE))
    e(valu("v_add_u32", t[5], sT0, t[5]))
    e(valu("v_mul_u32_u24", t[5], 3584, t[5]))
    e(valu("v_and_b32", t[6], 3, vLANE))
    e(valu("v_xor_b32", t[6], sT1, t[6]))
    e(valu("v_lshl_add_u32", t[5], t[6], 4, t[5]))
    e(valu("v_add_u32", vW2, sT4, t[5]))
    e(salu("s_lshl_b32", sW2D, sW, 11))
    if not head:
        e(salu("s_lshl_b32", sP2O, sJ, 12))
        e(salu("s_sub_u32", sP2O, 24 * 2048, sP2O))
    else:
        e(salu("s_sub_u32", sP2O, sU, sJ))
        e(salu("s_lshl_b32", sP2O, sP2O, 12))
        e(salu("s_add_u32", sP2O, sP2O, 24 * 2048))
    e(salu("s_lshl_b32", sT0, sRB, 2))
    e(salu("s_add_u32", sT0, sT0, sW))
    e(salu("s_mul_i32", sT0, sT0, 144))
    e(salu("s_mul_i32", sT1, sCQ, 36))
    e(salu("s_add_u32", sT0, sT0, sT1))
    if head:
        e(salu("s_lshl_b32", sT1, sJ, 1))
        e(salu("s_add_u32", sT0, sT0, 8))
    else:
        e(salu("s_lshl_b32", sT1, sJ, 2))
    e(salu("s_add_u32", sT0, sT0, sT1))
    e(salu("s_lshl_b32", sT0, sT0, 11))
    e(valu("v_add_u32", vST, sT0, vL16))
    e(salu("s_lshl_b32", sT0, sRB, 2))
    e(salu("s_add_u32", sT0, sT0, sW))
    e(salu("s_lshl_b32", sT0, sT0, 2))
    e(salu("s_add_u32", sT0, sT0, sCQ))
    e(salu("s_lshl_b32", sT0, sT0, 4))
    e(salu("s_add_u32", sT0, sT0, sJ))
    e(salu("s_lshl_b32", sT0, sT0, 3))
    e(salu("s_add_u32", sT0, sT0, FLAG_OFF))
    e(valu("v_and_b32", t[5], 1, vLANE))
    e(valu("v_lshlrev_b32", t[5], 6, t[5]))
    e(valu("v_add_u32", vFL, sT0, t[5]))
    e([salu("s_mov_b32", sT0, 1664525), valu("v_mul_lo_u32", V(vTAG[1]), V(vTAG[1]), sT0)])
    e(valu("v_add_u32", V(vTAG[1]), 1013904223, V(vTAG[1])))
    e([salu("s_mov_b32", sT0, 22695477), valu("v_mul_lo_u32", V(vTAG[1] + 1), V(vTAG[1] + 1), sT0)])
    e(valu("v_add_u32", V(vTAG[1] + 1), 1, V(vTAG[1] + 1)))
    e([scmp("s_cmp_gt_u32", sJ, 3), salu("s_cselect_b32", sT0, 1, 0), salu("s_sub_u32", sJC, sJ, sT0)])
    e(valu("v_bfe_u32", t[5], vLANE, 4, 1))
    e(valu("v_lshlrev_b32", t[5], 2, t[5]))
    e(valu("v_xor_b32", t[5], t[5], c8))
    e(valu("v_mul_u32_u24", t[6], 896, r8))
    e(valu("v_lshl_add_u32", t[6], t[5], 4, t[6]))
    e(salu("s_lshl_b32", sT0, sJC, 7))
    e(salu("s_mul_i32", sT1, sW, 112 * 896))
    e(salu("s_add_u32", sT1, sT1, sT0))
    e(valu("v_add_u32", vBo, sT1, t[6]))
    e(salu("s_mul_i32", sT1, sW, 448 * 896))
    e(salu("s_add_u32", sT1, sT1, sT0))
    e(valu("v_add_u32", vBd, sT1, t[6]))
    e(salu("s_lshl_b32", sT0, sRB, 2))
    e(salu("s_add_u32", sT0, sT0, sCQ))
    e(salu("s_lshl_b32", sT0, sT0, 2))
    e(salu("s_add_u32", sT0, sT0, sW))
    e(salu("s_lshl_b32", sT0, sT0, 7))
    e(salu("s_add_u32", sT0, sT0, FLAG_OFF))
    e(valu("v_and_b32", t[5], 15, vLANE))
    e(valu("v_lshlrev_b32", t[5], 3, t[5]))
    e(valu("v_add_u32", vFP, sT0, t[5]))
    e(salu("s_lshl_b32", sT0, sRB, 2))
    e(salu("s_add_u32", sT0, sT0, sCQ))
    e(salu("s_mul_i32", sT0, sT0, 144))
    e(salu("s_mul_i32", sT1, sW, 36))
    e(salu("s_add_u32", sT0, sT0, sT1))
    e(salu("s_lshl_b32", sT0, sT0, 11))
    e(salu("s_mul_i32", sT1, sJC, 37))
    e(valu("v_min_u32", t[5], 36, vLANE))
    e(valu("v_add_u32", t[5], sT1, t[5]))
    e(valu("v_min_u32", t[5], 255, t[5]))
    e(valu("v_lshlrev_b32", t[5], 7, t[5]))
    e(valu("v_add_u32", vPAe, sT0, t[5]))
    e(salu("s_mul_i32", sTOPB, sW, 3584))
    e(salu("s_add_u32", sTOPB, sTOPB, TOP_BASE))
    e(salu("s_mul_i32", sWRB, sW, 12288))
    e(salu("s_add_u32", sWRB, sWRB, WR_BASE))
    items += srd_items(SRD_OUT, P_OUT, 2048 * 896)
    items += srd_items(SRD_WD, P_WD, 1792 * 896)
    e(salu("s_lshr_b32", sT0, sWG, 3))
    e(salu("s_and_b32", sT1, sWG, 7))
    e(salu("s_lshl_b32", sT1, sT1, 2))
    e(salu("s_add_u32", sT0, sT0, sT1))
    e(salu("s_and_b32", sT0, sT0, 31))
    e(salu("s_lshl_b32", sT0, sT0, 2))
    e(salu("s_add_u32", sT0, sT0, sW))
    e(valu("v_min_u32", t[6], 24, vLANE))
    e(valu("v_lshlrev_b32", t[6], 7, t[6]))
    e(salu("s_mul_i32", sT1, sT0, 98 * 128))
    e(valu("v_add_u32", vPW[0], sT1, t[6]))
    e(salu("s_mul_i32", sT1, sT0, 25 * 128))
    e(valu("v_add_u32", vPW[1], sT1, t[6]))
    if head:
        e(valu("v_mov_b32", vNEG, NEGBIG))
        e(salu("s_mov_b32", sC, CSC))
        e(salu("s_mov_b32", S(sLOMASK[1]), -1))
        e(salu("s_mov_b32", S(sLOMASK[1] + 1), 0))
        e(salu("s_or_b32", sT0, sRB, sW))
        e([scmp("s_cmp_eq_u32", sT0, 0), salu("s_cselect_b32", S(sFIRST[1]), 0, -1),
           salu("s_cselect_b32", S(sFIRST[1] + 1), 0, -1)])
        e(salu("s_mul_i32", sT0, sW, 6144))
        e(salu("s_add_u32", sT0, sT0, HP_BASE))
        e(valu("v_add_u32", vHP, sT0, vL16))
        e(salu("s_lshl_b32", sT0, sW, 10))
        e(salu("s_add_u32", sT0, sT0, HP_BASE))
        e(valu("v_add_u32", vHPK, sT0, vL16))
        e(salu("s_lshr_b32", sT0, sW, 1))
        e(salu("s_lshl_b32", sT0, sT0, 10))
        e(salu("s_and_b32", sT1, sW, 1))
        e(salu("s_lshl_b32", sT1, sT1, 3))
        e(salu("s_add_u32", sT0, sT0, sT1))
        e(salu("s_add_u32", sT1, sT0, HP_BASE + 4096))
        e(valu("v_add_u32", vHPV, sT1, vL16))
        e(salu("s_add_u32", sT1, sT0, HS_BASE))
        e(valu("v_add_u32", vHSK, sT1, vL16))
        e(salu("s_lshl_b32", sT1, sW, 2))
        e(salu("s_add_u32", sT1, sT1, HS_BASE + 2048))
        e(valu("v_add_u32", vHSV, sT1, vL16))
        e(salu("s_mul_i32", sT1, sW, 3072))
        e(salu("s_add_u32", sT1, sT1, HS_BASE))
        e(valu("v_add_u32", vHSI, sT1, vL16))
        if typ == "h0":
            items += mask_items(128)
    return items


def mask_items(M):
    its = []
    for r in range(24):
        if r < 16:
            fn = lambda l, r=r: ((l & 31) - ((r & 3) + 8 * (r >> 2) + 4 * (l >> 5))) in range(0, 16, 2)
        else:
            fn = lambda l, r=r - 8: ((l & 31) - ((r & 3) + 8 * (r >> 2) + 4 * (l >> 5)) + 32) in range(0, 16, 2)
        mk = lane_mask(fn) ^ ((1 << 64) - 1)
        its.append([I(f"s_mov_b32 vcc_lo, 0x{mk & 0xffffffff:x}", (), regset("vcc"), "salu"),
                    I(f"s_mov_b32 vcc_hi, 0x{mk >> 32:x}", (), regset("vcc"), "salu"),
                    valu("v_cndmask_b32", V(M + r), 0, vNEG, "vcc")])
    return its


def dma_item(m0_base, m0_off, voff, srd, soff, tag, fl=None):
    fl = Opt.ld1 if fl is None else fl
    it = [salu("s_add_u32", "m0", m0_base, m0_off) if m0_base is not None else salu("s_mov_b32", "m0", m0_off)]
    if isinstance(soff, tuple):
        sreg, mul, add = soff
        if mul != 1:
            it.append(salu("s_mul_i32", sSO, sreg, mul))
            if add:
                it.append(salu("s_add_u32", sSO, sSO, add))
            it.append(dma(voff, srd, sSO, tag, fl))
        elif add:
            it.append(salu("s_add_u32", sSO, sreg, add))
            it.append(dma(voff, srd, sSO, tag, fl))
        else:
            it.append(dma(voff, srd, sreg, tag, fl))
    elif soff:
        it.append(salu("s_mov_b32", sSO, soff))
        it.append(dma(voff, srd, sSO, tag, fl))
    else:
        it.append(dma(voff, srd, 0, tag, fl))
    return it


def x_group(kb):
    slot = kb % 3
    return [dma_item(sXB, slot * 8192 + i * 1024, vXo if i & 1 else vXe, SRD_X, (sKX[kb], 1, (i >> 1) * 14336), f"L{kb}") for i in range(8)]


def load_group(kb, typ, nox=False):
    head = typ != "glu"
    slot = kb % 3
    tag = f"L{kb}"
    xs = [] if nox else x_group(kb)
    if head:
        ws = [dma_item(sWD, slot * WR_SLOT_H + q * 1024, vW[q], SRD_QKV, (sKX[kb], 1344, 0), tag) for q in range(3)]
        ws.append(dma_item(sHXD, slot * 4096, vHX, SRD_X, (sKX[kb], 1, 0), tag))
    else:
        ws = [dma_item(sWD, slot * WR_SLOT_G + q * 1024, vW[0], SRD_GU, (sKX[kb], 1792, q * 8 * 3584), tag) for q in range(4)]
    its = []
    for q in range(4):
        its += [ws[q]] + xs[2 * q:2 * q + 2]
    return its


def load_group2(kbs, tag, typ):
    its = []
    for kb2 in kbs:
        for q in range(2):
            its.append(dma_item(sW2D, pieces(kb2) + q * 1024, vW2, SRD_GU, (sKX[kb2], 1792, 16 * q * 3584), tag))
    return its


def xfrag(s, t):
    return A((s * 2 + t) * 4, 4)


def wf1(buf, n):
    return A(224 + buf * (12 if Opt.n1 == 3 else 16) + n * 4, 4)


def wf2(buf, n):
    return A(224 + buf * 4, 4)


def acc1(n, t):
    return V((n * 2 + t) * 16, 16)


def acc2(n, t):
    return V(128 + (n * 2 + t) * 16, 16)


def reads1(s, typ):
    head = typ != "glu"
    kb, e = divmod(s, 4)
    slot = kb % 3
    buf = s & 1
    its = []

    def wr(n):
        f = wf1(buf, n)
        if not head:
            o = slot * WR_SLOT_G + e * 2048
            return [ds_read(64, A(f[1], 2), vWR4[n], o, tr=True), ds_read(64, A(f[1] + 2, 2), vWR4[n], o + 512, tr=True)]
        o = slot * WR_SLOT_H + e * 3072 + n * 64
        r = [ds_read(64, A(f[1], 2), vWR, o, tr=True), ds_read(64, A(f[1] + 2, 2), vWR, o + 768, tr=True)]
        if n == 0:
            r.append([set_exec(sGMASK), ds_read(128, f, vGWs, e * 32), set_exec(-1)])
        return r
    if head and e == 0:
        its.append(valu("v_add_u32", vGWs, sKX[kb], vGW))
    its.append(ds_read(128, xfrag(s, 0), vXR[e], slot * 8192))
    its += wr(0)
    its.append(ds_read(128, xfrag(s, 1), vXR[e], slot * 8192 + 4096))
    for n in range(1, Opt.n1):
        its += wr(n)
    return its


def reads2(n, s):
    kb2, e = divmod(s, 4)
    base = pieces(kb2)
    hi = base >= 2 * XW
    if hi:
        base -= 2 * XW
    f = wf2(s & 1, 0)
    o = base + e * 1024
    return [ds_read(64, A(f[1], 2), vW2R[n][hi], o, tr=True), ds_read(64, A(f[1] + 2, 2), vW2R[n][hi], o + 256, tr=True)]


def glu_epi(acc, koff, tag):
    b = acc[1]
    its = []
    for e in range(8):
        its.append(valu("v_mul_f32", V(b + e), -LOG2E, V(b + e)))
    for e in range(8):
        its.append(valu("v_exp_f32", V(b + e), V(b + e)))
    for e in range(8):
        its.append(valu("v_add_f32", V(b + e), 1.0, V(b + e)))
    for e in range(8):
        its.append(valu("v_rcp_f32", V(b + e), V(b + e)))
    for e in range(8):
        its.append(valu("v_mul_f32", V(b + e), V(b + e), V(b + 8 + e)))
    for e in range(4):
        its.append(valu("v_cvt_pk_bf16_f32", V(b + 8 + e), V(b + 2 * e), V(b + 2 * e + 1)))
    its.append(store_frag(V(b + 8, 4), koff, tag))
    return its


def store_frag(src, koff, tag):
    fl = Opt.st1
    if isinstance(koff, tuple):
        return buf_store(src, vST, SRD_WS, koff[0], koff[1], fl, tag)
    if koff < 4096:
        return buf_store(src, vST, SRD_WS, 0, koff, fl, tag)
    return [salu("s_mov_b32", sSO2, koff & ~4095), buf_store(src, vST, SRD_WS, sSO2, koff & 4095, fl, tag)]


def flag_set(p, need):
    st = buf_store(vTAG, vFL, SRD_WS, 0, 0, " sc1", None, need=need)
    w = I("s_nop 0", kind="nop", need=need)
    return [w, set_exec(1 << p), st, set_exec(-1)]


def lane_mask(fn):
    m = 0
    for l in range(64):
        if fn(l):
            m |= 1 << l
    return m


def pack_inplace(dst, src, n):
    return [valu("v_cvt_pk_bf16_f32", V(dst + i), V(src + 2 * i), V(src + 2 * i + 1)) for i in range(n)]


def dsw(width, addr, src, off, tag):
    i = ds_write(width, addr, src, off, tag=tag)
    i.cost = {128: 3, 64: 2, 32: 1}[width]
    return i


def head_epi(typ):
    its = []
    a = its.append
    Q0, Q1, K0, K1, V0, V1 = 0, 16, 32, 48, 64, 80
    HK, HV = 96, 112
    M = 128 if typ == "h0" else 96
    tg = [V(192), V(193)]
    mx, mx2, sm, sm2, nb, rinv, rz = [V(120 + i) for i in range(7)]
    a(valu("v_mov_b32", tg[0], V(Q0 + 12)))
    a(valu("v_mov_b32", tg[1], V(Q1 + 12)))
    pk = pack_inplace(K0, K0, 8) + pack_inplace(K0 + 8, K1, 8) + pack_inplace(V0, V0, 8) + pack_inplace(V0 + 8, V1, 8)
    wr = [dsw(128, vHP, V(HK + 4 * q, 4), q * 1024, "hp") for q in range(4)]
    wr += [dsw(128, vHP, V(HV + 8 + 4 * q, 4), (4 + q) * 1024, "hp") for q in range(2)]
    for k, x in enumerate(pk):
        a(x)
        if k % 5 == 4 and wr:
            a(wr.pop(0))
    its.extend(wr)
    qp_ = pack_inplace(Q0, Q0, 8) + pack_inplace(Q0 + 8, Q1, 8)
    wr = [dsw(128, vHSI, V(K0 + 8, 4), 3072, "hp"), dsw(128, vHSI, V(K0 + 12, 4), 3072 + 1024, "hp"),
          dsw(128, vHSI, V(V0 + 12, 4), 3072 + 2048, "hp")]
    for k, x in enumerate(qp_):
        if k % 5 == 0 and wr:
            a(wr.pop(0))
        a(x)
    for t in range(2):
        for r in (6, 7):
            a(valu("v_cndmask_b32", V(Q0 + 8 * t + r), 0, V(Q0 + 8 * t + r), sLOMASK))
    a(barrier(need=("hp",)))
    T, TV = K1, TMP - 16
    for p in range(4):
        a(ds_read(128, V(T + 4 * p, 4), vHPK, p * 6144))
        a(ds_read(64, V(TV + 16 + 2 * p, 2), vHPV, p * 6144))
    if typ != "h0":
        its.extend(mask_items(M))
    Sd, Sp, O = V1, Q1, K1

    def qk(t, kprev):
        kp = [V(K0 + 8 * t, 4), V(K0 + 8 * t + 4, 4)]
        qp = [V(Q0 + 8 * t, 4), V(Q0 + 8 * t + 4, 4)]
        a(mfma(V(Sd, 16), kp[0], qp[0], V(M, 16)))
        a(mfma(V(Sp, 16), kprev[0], qp[0], V(M + 8, 16)))
        a(mfma(V(Sd, 16), kp[1], qp[1], V(Sd, 16)))
        a(mfma(V(Sp, 16), kprev[1], qp[1], V(Sp, 16)))

    def softmax_pv(t, vprev):
        vt = [V(V0 + 8 * t, 4), V(V0 + 8 * t + 4, 4)]
        vals = [V(Sd + r) for r in range(16)] + [V(Sp + r) for r in range(8, 16)]
        a(valu("v_max3_f32", mx, vals[0], vals[1], vals[2]))
        a(valu("v_max3_f32", mx2, vals[3], vals[4], vals[5]))
        rest = vals[6:]
        k = 0
        while rest:
            tgt = mx if k % 2 == 0 else mx2
            a(valu("v_max3_f32", tgt, tgt, rest[0], rest[1]))
            rest = rest[2:]
            k += 1
        a(valu("v_max_f32", mx, mx, mx2))
        a(valu("v_mov_b32", mx2, mx))
        g = tg[t]
        a(valu("v_mul_f32", g, -LOG2E, g))
        a(valu("v_exp_f32", g, g))
        a(permswap(mx, mx2))
        a(valu("v_max_f32", mx, mx, mx2))
        a(valu("v_mul_f32", nb, -CSC, mx))
        for v_ in vals:
            a(valu("v_fma_f32", v_, v_, sC, nb))
        for v_ in vals:
            a(valu("v_exp_f32", v_, v_))
        a(valu("v_add_f32", g, 1.0, g))
        a(valu("v_add_f32", sm, vals[0], vals[1]))
        a(valu("v_add_f32", sm2, vals[2], vals[3]))
        for k, v_ in enumerate(vals[4:]):
            tgt = sm if k % 2 == 0 else sm2
            a(valu("v_add_f32", tgt, tgt, v_))
        its.extend(pack_inplace(Sd, Sd, 8))
        its.extend(pack_inplace(Sp + 8, Sp + 8, 4))
        a(valu("v_add_f32", sm, sm, sm2))
        a(valu("v_mov_b32", sm2, sm))
        a(mfma(V(O, 16), vt[0], V(Sd, 4), 0))
        a(mfma(V(O, 16), vt[1], V(Sd + 4, 4), V(O, 16)))
        a(mfma(V(O, 16), vprev, V(Sp + 8, 4), V(O, 16)))
        a(permswap(sm, sm2))
        a(valu("v_add_f32", sm, sm, sm2))
        a(valu("v_rcp_f32", rinv, sm))
        a(valu("v_rcp_f32", g, g))
        a(valu("v_cndmask_b32", rz, 0, rinv, sLOMASK))
        a(buf_store(g, vHP, SRD_WS, 0, t * 256, Opt.st1, "e1"))

    def finish(t):
        for r in range(16):
            a(valu("v_mul_f32", V(O + r), V(O + r), rz if r >= 12 else rinv))
        its.extend(pack_inplace(O, O, 8))
        a(store_frag(V(O, 4), t * 1024, "e1"))
        a(store_frag(V(O + 4, 4), 2048 + t * 1024, "e1"))

    qk(1, [V(K0, 4), V(K0 + 4, 4)])
    for i in range(4):
        a(valu("v_add_f32", V(T + i), V(T + i), V(T + 4 + i)))
        a(valu("v_add_f32", V(T + 8 + i), V(T + 8 + i), V(T + 12 + i)))
    for i in range(2):
        a(valu("v_add_f32", V(TV + 16 + i), V(TV + 16 + i), V(TV + 18 + i)))
        a(valu("v_add_f32", V(TV + 20 + i), V(TV + 20 + i), V(TV + 22 + i)))
    for i in range(4):
        a(valu("v_add_f32", V(T + i), V(T + i), V(T + 8 + i)))
    for i in range(2):
        a(valu("v_add_f32", V(TV + 16 + i), V(TV + 16 + i), V(TV + 20 + i)))
    a(valu("v_cvt_pk_bf16_f32", V(T + 0), V(T + 0), V(T + 1)))
    a(valu("v_cvt_pk_bf16_f32", V(T + 1), V(T + 2), V(T + 3)))
    a(valu("v_cvt_pk_bf16_f32", V(TV + 16), V(TV + 16), V(TV + 17)))
    a(dsw(64, vHSK, V(T, 2), 0, "hs"))
    a(dsw(32, vHSV, V(TV + 16), 0, "hs"))
    a([salu("s_lshl_b32", sT0, sRB, 2), salu("s_add_u32", sT0, sT0, sW), salu("s_lshl_b32", sT0, sT0, 2),
       salu("s_add_u32", sT0, sT0, sCQ)])
    a([salu("s_lshl_b32", sT0, sT0, 2), salu("s_add_u32", sT0, sT0, sJ), salu("s_lshl_b32", sT0, sT0, 9),
       salu("s_add_u32", sT0, sT0, G_OFF - 4 * 512)])
    a(valu("v_lshlrev_b32", vHP, 2, vLANE))
    a(valu("v_add_u32", vHP, sT0, vHP))
    softmax_pv(1, V(V0 + 4, 4))
    a(barrier(need=("hs",)))
    a(ds_read(128, A(240, 4), vHSI, 0))
    a(ds_read(128, A(244, 4), vHSI, 1024))
    a(ds_read(128, A(248, 4), vHSI, 2048))
    a(I("s_mov_b64 vcc, s[0:1]", regset(sFIRST), regset("vcc"), "salu"))
    for r in range(16, 24):
        a(valu("v_cndmask_b32", V(M + r), vNEG, V(M + r), "vcc"))
    qk(0, [A(240, 4), A(244, 4)])
    finish(1)
    softmax_pv(0, A(248, 4))
    return its, (lambda: (its.clear(), finish(0), list(its))[2])


def chunk(slot):
    if slot < 16:
        return ("f", slot)
    if slot < 24:
        return ("o", slot - 16)
    return ("f", slot - 8)


PHMASK = [0x000F, 0x00F0, 0xFF00]
PHSTART = [0, 16, 24]
PHEND = [16, 24, 36]


vFP, vFD = V(216), V(218, 2)
vPW = [V(213), V(214)]
vPAe = V(215)
vPFD = V(217)


def poll():
    return buf_load(vFD, vFP, SRD_WS, 0, 0, " sc1")


NR = 17


def bblock(p, typ):
    x0 = [("x", i * 2048) for i in range(4)]
    x1 = [("x", 8192 + i * 2048) for i in range(4)]
    x2 = [("x", 16384 + i * 2048) for i in range(4)]
    top = [("t", 0)]
    wr = [("w", i * 2048) for i in range(6)]
    if typ == "h0":
        early = top + x0 + x1 + x2
        if p < 30:
            return early[p % 13]
        return wr[p - 30]
    early = top + x0 + wr
    if p < 28:
        return early[p % 11]
    return (x1 + x2)[p - 28]


def b_dma(i, typ, need=()):
    kind, ks = chunk(i)
    reg, off = bblock(i, typ)
    base = {"x": sXB, "t": sTOPB, "w": sWRB}[reg]
    if kind == "o":
        row, vo, srd = 28 * (ks >> 1) + 16 * (ks & 1), vBo, SRD_WO
    else:
        row, vo, srd = 16 * ks, vBd, SRD_WD
    its = [dma_item(base, off + h * 1024, vo, srd, (row + 8 * h) * 896, f"B{i}", Opt.ldb) for h in range(2)]
    its[0][0].need = tuple(need)
    return its


vT = {(r, c): V(232 + k) for k, (r, c) in enumerate((r, c) for r in "xtw" for c in range(2))}
vA, vRW, vRR, vO, vG0, vG1 = V(225), V(226), V(227), V(228), V(229), V(231)
vGAD = V(238)
BF = 136


def breg(i):
    return ("a", 8 * i) if i < NR else ("v", BF + (i & 1) * 8)


def b_reads(i, typ):
    reg, off = bblock(i, typ)
    f, o = breg(i)
    its = []
    for c in range(2):
        its.append(ds_read(64, (f, o + 4 * c, 2), vT[(reg, c)], off, tr=True, need=(f"B{i}",)))
        its.append(ds_read(64, (f, o + 4 * c + 2, 2), vT[(reg, c)], off + 1024, tr=True, need=(f"B{i}",)))
    for x in its:
        x.tag = f"R{i}"
    return its


def p2_setup():
    t = [V(243), V(213), V(214), V(215), V(255), V(212)]
    its = []
    e = its.append
    hf, r4, gi, ng = t[0], t[1], t[2], t[3]
    e(valu("v_lshrrev_b32", hf, 5, vLANE))
    e(valu("v_bfe_u32", r4, vLANE, 2, 2))
    e(valu("v_bfe_u32", gi, vLANE, 4, 1))
    e(valu("v_and_b32", t[4], 3, vLANE))
    e(valu("v_lshl_add_u32", gi, gi, 2, t[4]))
    e(valu("v_and_b32", t[4], 1, gi))
    e(valu("v_lshrrev_b32", ng, 1, gi))
    e(valu("v_lshl_add_u32", ng, t[4], 2, ng))
    e(valu("v_lshl_add_u32", t[4], hf, 2, r4))
    e(valu("v_lshlrev_b32", t[4], 7, t[4]))
    e(valu("v_lshl_add_u32", t[4], ng, 3, t[4]))
    e(valu("v_lshrrev_b32", t[5], 1, r4))
    e(valu("v_lshl_add_u32", t[2], t[5], 6, t[4]))
    e(valu("v_xor_b32", t[5], 1, t[5]))
    e(valu("v_lshl_add_u32", t[3], t[5], 6, t[4]))
    for r, sb in (("x", sXB), ("t", sTOPB), ("w", sWRB)):
        e(valu("v_add_u32", vT[(r, 0)], sb, t[2]))
        e(valu("v_add_u32", vT[(r, 1)], sb, t[3]))
    e([salu("s_lshl_b32", sPP, sRB, 2), salu("s_add_u32", sPP, sPP, sCQ)])
    e([salu("s_mul_i32", sT1, sPP, 144), salu("s_mul_i32", sT2, sW, 36), salu("s_add_u32", sT1, sT1, sT2),
       salu("s_lshl_b32", sT1, sT1, 11), valu("v_add_u32", vA, sT1, vL16)])
    e([salu("s_lshl_b32", sT1, sW, 12), valu("v_add_u32", vRW, sT1, vL16)])
    e([salu("s_lshl_b32", sT1, sW, 14), valu("v_add_u32", vRR, sT1, vL16)])
    e(valu("v_and_b32", t[4], 31, vLANE))
    e([salu("s_lshl_b32", sT1, sPP, 2), salu("s_add_u32", sT1, sT1, sW), salu("s_lshl_b32", sT1, sT1, 11),
       salu("s_add_u32", sT1, sT1, G_OFF + 128), valu("v_lshl_add_u32", vGAD, t[4], 2, sT1)])
    e([salu("s_lshl_b32", sT1, sPP, 6), salu("s_lshr_b32", sT2, sW, 1), salu("s_lshl_b32", sT2, sT2, 5),
       salu("s_add_u32", sT1, sT1, sT2), valu("v_add_u32", t[4], sT1, t[4])])
    e(valu("v_mul_u32_u24", t[4], 896, t[4]))
    e(valu("v_lshl_add_u32", t[4], hf, 5, t[4]))
    e([salu("s_lshl_b32", sT1, sJC, 7), salu("s_and_b32", sT2, sW, 1), salu("s_lshl_b32", sT2, sT2, 6),
       salu("s_add_u32", sT1, sT1, sT2), valu("v_add_u32", vO, sT1, t[4])])
    e(salu("s_mov_b32", sSPIN, 0))
    return its


def gen_early(E, typ):
    head = typ != "glu"
    Opt.n1 = 3 if head else 4
    n1, n2 = Opt.n1, (0 if typ == "h0" else 2)
    setup_early(E, typ)
    if head:
        E.emit(srd_items(SRD_QKV, P_WQKV, 448 * 2688))
    b = SRD_GU[1]
    gu = [scmp("s_cmp_lt_u32", sW, 2), salu("s_cselect_b32", S(b), S(P_WG), S(P_WU)),
          salu("s_cselect_b32", S(b + 1), S(P_WG + 1), S(P_WU + 1)), salu("s_mov_b32", S(b + 2), 448 * 3584),
          salu("s_mov_b32", S(b + 3), 0x20000)]
    if not head:
        E.emit(gu)
    for it in load_group(0, typ, nox=True):
        E.emit(it)
    if head:
        E.emit(srd_items(SRD_GW, P_GW, 896))
        E.emit(dma_item(None, GW_BASE, vL16, SRD_GW, 0, "L0"))
        E.emit(gu)
    stamp(E, 3, 1)
    E.emit(srd_items(SRD_WO, P_WO, 448 * 896))
    for kb in range(1, 7):
        E.emit(salu("s_add_u32", sKX[kb], sKX[kb - 1], 128))
        E.emit(scmp("s_cmp_eq_u32", sKX[kb], 896))
        E.emit(salu("s_cselect_b32", sKX[kb], 0, sKX[kb]))
    E.emit(srd_items(SRD_WS, P_WS, WS_BYTES))
    E.emit(salu("s_lshl_b32", sT0, sRB, 7))
    E.emit(salu("s_add_u32", sT0, sT0, GEN_OFF))
    E.emit(valu("v_mov_b32", vGA, sT0))
    E.emit(buf_load(vTAG, vGA, SRD_WS, 0, 0, " sc1", tag="L0"))
    g1 = load_group(1, typ)
    for it in g1[:Opt.l1pre]:
        E.emit(it)
    stamp(E, 4, 1)
    for it in setup_late(typ):
        E.emit(it)
    stamp(E, 1)
    stamp(E, 6, 1)
    E.wait_tags("L0")
    E.emit(barrier())
    stamp(E, 2)
    stamp(E, 7, 1)
    for it in reads1(0, typ):
        E.emit(it)


def gen_p1(E, typ):
    head = typ != "glu"
    Opt.n1 = 3 if head else 4
    n1, n2 = Opt.n1, (0 if typ == "h0" else 2)
    fill = deque(setup_fill(typ))
    pend = deque(load_group(1, typ)[Opt.l1pre:] + load_group(2, typ))
    HWK, HWV, HXF = V(192, 4), V(196, 4), A(248, 4)
    for s in range(28):
        kb, e = divmod(s, 4)
        slot = kb % 3
        buf = s & 1
        ms = []
        for n in range(n1):
            for t in range(2):
                c = 0 if s == 0 else acc1(n, t)
                if head and n == 2:
                    ms.append(mfma(acc1(n, t), xfrag(s, t), wf1(buf, n), c))
                else:
                    ms.append(mfma(acc1(n, t), wf1(buf, n), xfrag(s, t), c))
        must = []
        pre = None
        hold = 0
        if head and e == 2:
            ms.append(mfma(V(96, 16), HWK, HXF, 0 if kb == 0 else V(96, 16)))
            ms.append(mfma(V(112, 16), HXF, HWV, 0 if kb == 0 else V(112, 16)))
        nxt = reads1(s + 1, typ) if s < 27 else (reads2(0, 0) if n2 else [])
        if e == 3:
            tagn = f"L{kb + 1}" if kb < 6 else "W2a"
            hold = 2

            def pre_fn(tagn=tagn):
                E._wait(None, 0)
                E.wait_tags(tagn)
                E.emit(barrier())
            pre = [pre_fn]
            if kb + 3 <= 6:
                pend.extend(load_group(kb + 3, typ))
            elif kb == 4 and n2:
                pend.extend(load_group2([0, 1, 2, 3], "W2a", typ))
            elif kb == 5 and n2:
                pend.extend(load_group2([4, 5, 6], "W2b", typ))
        must += nxt
        if head and e == 0:
            must.append(ds_read(128, HXF, vHXR, slot * 4096))
            for n, f in ((1, HWK), (2, HWV)):
                o = slot * WR_SLOT_H + n * 64
                must.append(ds_read(64, V(f[1], 2), vWH, o, tr=True))
                must.append(ds_read(64, V(f[1] + 2, 2), vWH, o + 768, tr=True))
        if s == 19:
            assert len(fill) <= (24 if typ == "h0" else 0), len(fill)
        if s == Opt.pfw and s:
            assert len(fill) <= (56 if head else 0), len(fill)
        if Opt.pfw > 0 and s >= Opt.pfw and (s - Opt.pfw) % Opt.pfstep == 0 and (s - Opt.pfw) // Opt.pfstep < 5:
            k = (s - Opt.pfw) // Opt.pfstep
            if k < 4:
                must.append(buf_load(vPFD, vPW[0], SRD_WD, 0, 0, Opt.ldpf) if k == 0 else
                            [salu("s_mov_b32", sSO2, k * 3200), buf_load(vPFD, vPW[0], SRD_WD, sSO2, 0, Opt.ldpf)])
            else:
                must.append(buf_load(vPFD, vPW[1], SRD_WO, 0, 0, Opt.ldpf))
        steps_left = 4 if e == 3 else 3 - e
        ndma = math.ceil(len(pend) / steps_left)
        dm = [pend.popleft() for _ in range(ndma)]
        weave(E, ms, must, fill, hold=hold, pre=pre, dmas=dm, must_per_gap=Opt.rpg)
    assert not pend and not fill
    stamp(E, 3)
    if head:
        its, tail = head_epi(typ)
        fill.extend(its)
        fill.extend(tail())
    else:
        for n in range(4):
            for t in range(2):
                fill.extend(glu_epi(acc1(n, t), (n * 2 + t) * 1024, "e1"))
    fill.append(lambda: st.__setitem__("done", st["q"]))
    fill.extend(p2_setup())
    st = {"q": 0, "done": None}
    if n2 == 0:
        while fill:
            put(E, fill.popleft())
        stamp(E, 4)
        for p in range(Opt.h0b):
            E.emit(b_dma(p, typ))
        its = flag_set(0, ("e1",))
        its[1] = set_exec(3)
        E.emit(its)
        for p in range(Opt.h0b, 13):
            E.emit(b_dma(p, typ))
        for it in b_reads(0, typ):
            E.emit(it)
        for p in range(NR):
            if p + 1 < NR:
                for it in b_reads(p + 1, typ):
                    E.emit(it)
            E.emit(b_dma(p + 13, typ, need=(f"R{p}",)))
            if p == NR - 4:
                E.emit(poll())
        stamp(E, 5)
        stamp(E, 1, 2)
        return 30
    nb = 0
    flagged = False
    wr_ok = not head
    for q in range(56):
        st["q"] = q
        n, s = divmod(q, 28)
        ms = [mfma(acc2(n, t), wf2(s & 1, 0), xfrag(s, t), 0 if s == 0 else acc2(n, t)) for t in range(2)]
        must = reads2(*divmod(q + 1, 28)) if q < 55 else []
        hold, pre = 0, None
        dm = []
        if q == 15 or q == 28 + 15:
            hold = 1

            def pre_fn(q=q):
                E._wait(None, 0)
                if q == 15:
                    E.wait_tags("W2b")
                E.emit(barrier())
            pre = [pre_fn]
        if q == 28:
            for t in range(2):
                fill.extend(glu_epi(acc2(0, t), (sP2O, t * 1024), "e2"))
        done = st["done"]
        if done is not None:
            if head and not wr_ok and q >= done + 2 and hold == 0:
                hold = 1

                def pre_fn2():
                    E._wait(None, 0)
                    E.emit(barrier())
                pre = [pre_fn2]
                wr_ok = True
            elif n == 0 or nb < 11:
                lim = 11 if wr_ok else 5
                if nb < lim and (q - done) % Opt.bsp == 0:
                    dm.extend(b_dma(nb, typ))
                    nb += 1
            if not flagged and q >= done + Opt.f1d:
                dm.append(flag_set(0, ("e1",)))
                flagged = True
        if n == 1 and nb >= 11:
            p = st.setdefault("park", 0)
            if p < NR and p < s and (p < 11 or q >= st.get(f"iss{p}", 0) + Opt.plat):
                must += b_reads(p, typ)
                st["pend"] = p
                st["park"] = p + 1
            if st.get("pend2") is not None:
                pp = st["pend2"]
                if pp + 11 < 28:
                    dm.extend(b_dma(pp + 11, typ, need=(f"R{pp}",)))
                    st[f"iss{pp + 11}"] = q
                    nb = pp + 12
                st["pend2"] = None
            st["pend2"] = st.pop("pend", None)
            if q > 28 + 15 and st.setdefault("x1", 28) < 32 and q % 2 == 0:
                dm.extend(b_dma(st["x1"], typ))
                st["x1"] += 1
        bud = (Opt.budget2h if head else Opt.budget2) if done is None else Opt.budget
        weave(E, ms, must, fill, hold=hold, pre=pre, budget=bud, dmas=dm)
    stamp(E, 4)
    while fill:
        put(E, fill.popleft())
    assert flagged
    epi = [glu_epi(acc2(1, t), (sP2O, (2 + t) * 1024), "e2") for t in range(2)]
    for k in range(max(len(x) for x in epi)):
        if k == Opt.poll0:
            E.emit(poll())
        for ep in epi:
            if k < len(ep):
                E.emit(ep[k])
    stamp(E, 5)
    stamp(E, 1, 2)
    return dict(park=st.get("park", 0), nb=nb, x1=st.get("x1", 28), pend2=st.get("pend2"))


def diag_store(E, nst):
    if Opt.dbgclk:
        lab = f"L_dbg{len(E.out)}"
        E.raw(f"""    s_memtime s[90:91]
    s_memrealtime s[92:93]
    s_waitcnt lgkmcnt(0)
    s_cmp_lt_u32 s2, 8
    s_cbranch_scc0 {lab}
    s_cmp_eq_u32 s60, 0
    s_cbranch_scc0 {lab}
    s_mov_b32 s28, s22
    s_mov_b32 s29, s23
    s_mov_b32 s30, 256
    s_mov_b32 s31, 0x20000
    s_sub_u32 s90, s90, s86
    s_sub_u32 s92, s92, s88
    s_lshl_b32 s64, s2, 3
    v_mov_b32 v1, s64
    v_mov_b32 v2, s90
    v_mov_b32 v3, s92
    s_mov_b64 exec, 1
    s_nop 4
    buffer_store_dwordx2 v[2:3], v1, s[28:31], 0 offen
{lab}:""")
        return
    if not Opt.diag:
        return
    E.emit(I("s_waitcnt lgkmcnt(0)", kind="wait"))
    E.lg = []
    E.emit(salu("s_lshl_b32", sT0, sWG, 2))
    E.emit(salu("s_add_u32", sT0, sT0, sW))
    E.emit(salu("s_lshl_b32", sT0, sT0, 6))
    E.emit(salu("s_add_u32", sT0, sT0, DIAG_OFF))
    E.emit(valu("v_mov_b32", V(1), sT0))
    for i in range(nst):
        E.emit(valu("v_mov_b32", V(2), S(sDIAG + 2 * i)))
        E.emit(buf_store(V(2), V(1), SRD_WS, 0, 4 * i))
        E.nop(2)


def gen_p2(E, typ, bst):
    head = typ != "glu"
    ACCH, ACCO = 0, 64
    t = [V(208 + i) for i in range(4)]
    fl = Opt.ld2
    D = Opt.D
    RA = (256 - 8 * NR) // 8
    lab = typ

    def publish_last():
        return flag_set(1, ("e2",))

    if not head:
        E.emit(scmp("s_cmp_eq_u32", sJ, 3))
        E.emit(branch("s_cbranch_scc0", "L_p2_go"))
        sv = (list(E.vm), list(E.lg), list(E.hist))
        E.emit(publish_last())
        diag_store(E, 8)
        E.emit(I("s_endpgm", kind="branch"))
        E.label("L_p2_go")
        E.vm, E.lg, E.hist = sv

    def check(ph):
        mask = PHMASK[ph]
        E.emit(valu("v_cmp_eq_u64", "vcc", vTAG, vFD))
        E.emit(I(f"s_and_b32 {rs(sT5)}, vcc_lo, 0x{mask:x}", regset("vcc"), regset(sT5), "salu"))
        E.emit(scmp("s_cmp_eq_u32", sT5, mask))
        E.emit(branch("s_cbranch_scc1", f"L_fl_ok_{lab}_{ph}"))
        E.label(f"L_fl_loop_{lab}_{ph}")
        E.raw("    s_sleep 2")
        E.raw(f"    buffer_load_dwordx2 {rs(vFD)}, {rs(vFP)}, {rs(SRD_WS)}, 0 offen sc1")
        E.raw("    s_waitcnt vmcnt(0)")
        E.raw(f"    v_cmp_eq_u64 vcc, {rs(vTAG)}, {rs(vFD)}")
        E.raw(f"    s_add_u32 {rs(sSPIN)}, {rs(sSPIN)}, 1")
        E.raw(f"    s_cmp_gt_u32 {rs(sSPIN)}, {Opt.spin}")
        E.raw(f"    s_cbranch_scc1 L_fl_ok_{lab}_{ph}")
        E.raw(f"    s_and_b32 {rs(sT5)}, vcc_lo, 0x{mask:x}")
        E.raw(f"    s_cmp_eq_u32 {rs(sT5)}, 0x{mask:x}")
        E.raw(f"    s_cbranch_scc0 L_fl_loop_{lab}_{ph}")
        E.label(f"L_fl_ok_{lab}_{ph}")

    def areg(i):
        return A(8 * NR + (i % RA) * 8, 8)

    def a_loads(i):
        f, r, _ = areg(i)
        so = (i * 2048) & ~4095
        io = (i * 2048) & 4095
        its = []
        if so:
            its.append(salu("s_mov_b32", sSO2, so))
        sof = sSO2 if so else 0
        its.append(buf_load((f, r, 4), vA, SRD_WS, sof, io, fl))
        its.append(buf_load((f, r + 4, 4), vA, SRD_WS, sof, io + 1024, fl))
        return its

    published = [typ == "h0"]
    nxt = {"a": 0}

    def phase(ph):
        if ph == 0:
            stamp(E, 2, 2)
        check(ph)
        stamp(E, 3 + ph, 2)
        if ph == 1:
            E.emit(buf_load(vG0, vGAD, SRD_WS, 0, 0, " sc1"))
            E.emit(buf_load(vG1, vGAD, SRD_WS, 0, 256, " sc1"))

    def issue_a(upto):
        while nxt["a"] < min(upto, 36):
            i = nxt["a"]
            if i in PHSTART:
                phase(PHSTART.index(i))
            E.emit(a_loads(i))
            nxt["a"] += 1
            if i + Opt.pollahead in PHSTART[1:]:
                E.emit(poll())
            if not published[0] and i >= Opt.pubat:
                E.emit(publish_last())
                published[0] = True

    issue_a(Opt.afirst)
    if typ == "h0":
        E.emit(barrier())
        for p in range(30, 36):
            E.emit(b_dma(p, typ))
    else:
        park, nb, x1 = bst["park"], bst["nb"], bst["x1"]
        if bst["pend2"] is not None and bst["pend2"] + 11 < 28:
            E.emit(b_dma(bst["pend2"] + 11, typ, need=(f"R{bst['pend2']}",)))
            nb = bst["pend2"] + 12
        while nb < 11:
            E.emit(b_dma(nb, typ))
            nb += 1
        for p in range(park, NR):
            for it in b_reads(p, typ):
                E.emit(it)
            if p + 11 < 28:
                E.emit(b_dma(p + 11, typ, need=(f"R{p}",)))
        E.emit(barrier())
        for p in range(x1, 36):
            E.emit(b_dma(p, typ))
    assert D < RA
    issue_a(D)
    stamp(E, 6)
    seen = set()
    gsc = deque([valu("v_sub_f32", t[0], 1.0, vG0), valu("v_sub_f32", t[1], 1.0, vG1)])
    for tt in range(2):
        for r in range(32):
            gsc.append(valu("v_mul_f32", V(ACCO + tt * 32 + r), V(ACCO + tt * 32 + r), vG0 if tt == 0 else vG1))
    for i in range(36):
        f, r, _ = areg(i)
        bf, o = breg(i)
        if i in (20, 30):
            stamp(E, {20: 6, 30: 7}[i], 2)
        base = ACCO if chunk(i)[0] == "o" else ACCH
        k = 0
        for tt in range(2):
            for c in range(2):
                d = V(base + (tt * 2 + c) * 16, 16)
                first = (base, tt, c) not in seen
                seen.add((base, tt, c))
                E.emit(mfma(d, (bf, o + 4 * c, 4), (f, r + 4 * tt, 4), 0 if first else d))
                if k == 0 and NR <= i + 1 < 36:
                    for it in b_reads(i + 1, typ):
                        E.emit(it)
                if k >= 2 and i >= 25:
                    for _ in range(4):
                        if gsc:
                            E.emit(gsc.popleft())
                if k == 1:
                    issue_a(i + D + 1)
                k += 1
    assert published[0]
    stamp(E, 7)
    while gsc:
        E.emit(gsc.popleft())
    E.emit(barrier())
    sv = (list(E.vm), list(E.lg), list(E.hist))
    for w in range(4):
        E.vm, E.lg, E.hist = list(sv[0]), list(sv[1]), list(sv[2])
        if w:
            E.label(f"L_red_{lab}_{w}")
        if w < 3:
            E.emit(scmp("s_cmp_eq_u32", sW, w))
            E.emit(branch("s_cbranch_scc0", f"L_red_{lab}_{w + 1}"))
        for q in [(w + 1) % 4, (w + 2) % 4, (w + 3) % 4, w]:
            for r in range(16):
                E.emit(valu("v_fmac_f32", V(ACCO + q * 16 + r), V(ACCH + q * 16 + r), t[q >> 1]))
            if q != w:
                for k in range(4):
                    E.emit(ds_write(128, vRW, V(ACCO + q * 16 + 4 * k, 4), q * 16384 + k * 1024, tag="red"))
        E.emit(barrier(need=("red",)))
        srcs = [x for x in range(4) if x != w]
        for n_, src in enumerate(srcs):
            for k in range(4):
                E.emit(ds_read(128, V(ACCH + n_ * 16 + 4 * k, 4), vRR, src * 4096 + k * 1024))
        own = ACCO + w * 16
        for n_ in range(3):
            for r in range(16):
                E.emit(valu("v_add_f32", V(own + r), V(own + r), V(ACCH + n_ * 16 + r)))
        for it in pack_inplace(own, own, 8):
            E.emit(it)
        E.emit(buf_store(V(own, 4), vO, SRD_OUT, 0, 0, Opt.sto))
        E.emit(buf_store(V(own + 4, 4), vO, SRD_OUT, 0, 16, Opt.sto))
        if w == 0 and not head:
            E.emit(salu("s_or_b32", sT1, sCQ, sJ))
            E.emit(scmp("s_cmp_eq_u32", sT1, 0))
            E.emit(branch("s_cbranch_scc0", f"L_fin_{lab}"))
            E.emit([set_exec(1), buf_store(vTAG, vGA, SRD_WS, 0, 0, " sc1"), set_exec(-1)])
        if w < 3:
            E.emit(branch("s_branch", f"L_fin_{lab}"))
    E.label(f"L_fin_{lab}")
    if Opt.diag and Opt.sset == 0:
        E.emit(I(f"s_memtime s[{sDIAG + 2}:{sDIAG + 3}]", (), (), "smem"))


KD = """.section .rodata,"a"
.p2align 6
.amdhsa_kernel {name}
  .amdhsa_next_free_vgpr 512
  .amdhsa_next_free_sgpr 102
  .amdhsa_accum_offset 256
  .amdhsa_group_segment_fixed_size 0
  .amdhsa_kernarg_size 88
  .amdhsa_user_sgpr_count 2
  .amdhsa_user_sgpr_kernarg_segment_ptr 1
  .amdhsa_system_sgpr_workgroup_id_x 1
.end_amdhsa_kernel
"""


def header(launches):
    h = open(f"cdna_kernels/{NAME}.s.ref").read().split("\n")
    out = []
    for l in h:
        if l.startswith("; @launch") or l.startswith("; Override") or l.startswith("; grid=ceil"):
            continue
        if not l.startswith(";"):
            break
        out.append(l)
    out += launches
    out.append('.amdgcn_target "amdgcn-amd-amdhsa--gfx950"')
    out.append(".text")
    return "\n".join(out) + "\n"


def gen():
    kn = NAME + "_kernel"
    txt = header([f"; @launch grid=(256,1,1) block=(256,1,1) lds={LDS_BYTES}"])
    E = Emitter()
    common_prologue(E)
    E.emit(scmp("s_cmp_lt_u32", sJ, 4))
    E.emit(branch("s_cbranch_scc1", "L_early_glu"))
    st = (list(E.vm), list(E.lg), list(E.hist))
    gen_early(E, "h0")
    E.emit(I(f"s_bitcmp1_b32 {rs(sT3)}, {rs(sHD)}", regset(sT3, sHD), (), "salu"))
    E.emit(branch("s_cbranch_scc1", "L_h2"))
    E.emit(branch("s_branch", "L_h0"))
    st_h = (list(E.vm), list(E.lg), list(E.hist))
    E.label("L_early_glu")
    E.vm, E.lg, E.hist = list(st[0]), list(st[1]), list(st[2])
    gen_early(E, "glu")
    st_g = (list(E.vm), list(E.lg), list(E.hist))
    for typ in ("glu", "h2", "h0"):
        if typ != "glu":
            E.label(f"L_{typ}")
        sv = st_g if typ == "glu" else st_h
        E.vm, E.lg, E.hist = list(sv[0]), list(sv[1]), list(sv[2])
        npre = gen_p1(E, typ)
        gen_p2(E, typ, npre)
        diag_store(E, 8)
        if typ != "h0":
            E.emit(I("s_endpgm", kind="branch"))
    E.label("L_end")
    E.emit(I("s_endpgm", kind="branch"))
    E.label("L_codeend")
    txt += f".globl {kn}\n.p2align 8\n.type {kn},@function\n{kn}:\n" + E.text()
    txt += ".fill 64, 4, 0xBF800000\n"
    txt += KD.format(name=kn)
    sys.stderr.write(f"nops: {E.nops}\n")
    return txt


if __name__ == "__main__":
    ap = argparse.ArgumentParser()
    ap.add_argument("--diag", action="store_true")
    ap.add_argument("--sset", type=int, default=0)
    ap.add_argument("--budget", type=int, default=5)
    ap.add_argument("--norot", action="store_true")
    ap.add_argument("--rpg", type=int, default=2)
    ap.add_argument("--ld1", default="")
    ap.add_argument("--st1", default="sc1")
    ap.add_argument("--ld2", default="sc1")
    ap.add_argument("--ldb", default="")
    ap.add_argument("--npre", type=int, default=99)
    ap.add_argument("--D", type=int, default=8)
    ap.add_argument("--epoll", type=int, default=24)
    ap.add_argument("--bfirst", type=int, default=4)
    ap.add_argument("--pollahead", type=int, default=4)
    ap.add_argument("--pubat", type=int, default=6)
    ap.add_argument("--poll0", type=int, default=8)
    ap.add_argument("--pfw", type=int, default=12)
    ap.add_argument("--pfstep", type=int, default=3)
    ap.add_argument("--c1", type=int, default=0)
    ap.add_argument("--c2", type=int, default=16)
    ap.add_argument("--astep", type=int, default=2)
    ap.add_argument("--h0b", type=int, default=3)
    ap.add_argument("--kpf", type=int, default=0)
    ap.add_argument("--bsp", type=int, default=2)
    ap.add_argument("--l1pre", type=int, default=7)
    ap.add_argument("--plat", type=int, default=8)
    ap.add_argument("--afirst", type=int, default=4)
    ap.add_argument("--sto", default="")
    ap.add_argument("--dbgclk", action="store_true")
    ap.add_argument("--ldk", default="")
    ap.add_argument("--bstep", type=int, default=1)
    ap.add_argument("--f1d", type=int, default=16)
    ap.add_argument("--f1dh", type=int, default=12)
    ap.add_argument("--budget2h", type=int, default=12)
    ap.add_argument("--noa", action="store_true")
    ap.add_argument("--fakeh", action="store_true")
    ap.add_argument("--nob", action="store_true")
    ap.add_argument("--pfa", type=int, default=0)
    ap.add_argument("--lead", type=int, default=4)
    ap.add_argument("--budget2", type=int, default=12)
    ap.add_argument("--ldpf", default="")
    ap.add_argument("--f1u", type=int, default=7)
    ap.add_argument("--spin", type=int, default=20000)
    ap.add_argument("-o", default=f"cdna_kernels/{NAME}.s")
    args = ap.parse_args()
    for k, v in vars(args).items():
        setattr(Opt, k, v)
    Opt.rot = not args.norot
    fx = lambda x: (" " + x.replace("+", " ")) if x else ""
    Opt.ld1, Opt.st1, Opt.ld2, Opt.ldb = fx(args.ld1), fx(args.st1), fx(args.ld2), fx(args.ldb)
    Opt.ldpf = fx(args.ldpf)
    Opt.ldk = fx(args.ldk)
    Opt.sto = fx(args.sto)
    for p in range(768):
        assert (p * 43691) >> 19 == p // 12
    open(args.o, "w").write(gen())
```

```python
import sys, math, argparse
from collections import deque
from emit import *

NAME = "gated_mix__sliding_local_dilated__glu_gated_glu__prompt"

A2_OFF = 0x0
G_OFF = 0xC00000
FLAG_OFF = 0xD00000
GEN_OFF = FLAG_OFF + 0x4000
DIAG_OFF = 0xE00000
WS_BYTES = 0x1000000

XW = 24576
WR_BASE = 98304
WR_SLOT_H = 12544
WR_SLOT_G = 16384
HX_BASE = WR_BASE + 3 * WR_SLOT_H
GW_BASE = HX_BASE + 3 * 4096
TOP_BASE = 149504
HP_BASE = WR_BASE
HS_BASE = WR_BASE + 4 * 6144
assert HS_BASE + 5 * 3072 <= GW_BASE
LDS_BYTES = 163840

LOG2E = 1.4426950408889634
CSC = (28 ** -0.5) * LOG2E
NEGBIG = -1.0e30

sWG = S(2)
P_X, P_WQKV, P_WO, P_BX, P_WG, P_WU, P_WD, P_GW, P_OUT, P_DBG, P_WS = [4 + 2 * i for i in range(11)]
SRD_X, SRD_QKV, SRD_GU, SRD_WO, SRD_GW, SRD_OUT, SRD_WS, SRD_DBG = [S(28 + 4 * i, 4) for i in range(8)]
SRD_WD = SRD_DBG
sW, sRB, sCQ, sJ = S(60), S(61), S(62), S(63)
sT0, sT1, sT2, sT3, sT4, sT5 = [S(64 + i) for i in range(6)]
sXB = S(70)
sWD = S(71)
sW2D = S(72)
sHXD = S(73)
sHD = S(74)
sU = S(77)
sSO = S(75)
sSO2 = S(76)
sC = S(83)
sGMASK = S(78, 2)
sLOMASK = S(80, 2)
sFIRST = S(0, 2)
sPC = S(84, 2)
sP2O = S(27)
sTOPB = S(26)
sWRB = S(3)
sSPIN = S(84)
sJC = S(85)
sDIAG = 86
sKX = [S(4 + i) for i in range(7)]

vL16 = V(224)
vXe, vXo = V(225), V(226)
vW = [V(227), V(228), V(229)]
vW2 = V(230)
vHX = V(231)
vXR = [V(232 + i) for i in range(4)]
vWR = V(236)
vWH = V(237)
vHXR = V(238)
vW2R = [[V(239), V(240)], [V(241), V(242)]]
vGW = V(243)
vWR4 = [V(236), V(237), V(238), V(243)]
vFL = V(244)
vBo, vBd = V(245), V(223)
vST = V(246)
vLANE = V(247)
vNEG = V(248)
vHP, vHPK, vHPV, vHSK, vHSV, vHSI = [V(249 + i) for i in range(6)]
vGWs = V(255)
vGA = V(222)
vTAG = V(220, 2)
TMP = 200


def pieces(i):
    if i < 4:
        return i * XW + 8192
    return (i - 4) * XW + 16384


class Opt:
    pass


def stamp(E, idx, sset=0):
    if Opt.diag and (sset == Opt.sset or sset < 0):
        E.emit(I(f"s_memtime s[{sDIAG + 2 * idx}:{sDIAG + 2 * idx + 1}]", (), (), "smem"))


def item_cost(it):
    if callable(it):
        return 0
    if isinstance(it, I):
        return it.cost
    return sum(x.cost for x in it)


def put(E, it):
    if callable(it):
        it()
    else:
        E.emit(it)


def weave(E, mfmas, must, fill, budget=None, hold=0, pre=None, dmas=(), must_per_gap=None):
    budget = budget or Opt.budget
    must = deque(must)
    dmas = list(dmas)
    n = len(mfmas)
    first = max(hold - 1, 0)
    slots = {}
    if dmas:
        ng = n - first
        for k, d in enumerate(dmas):
            g = first + min(ng - 1, int((k + 0.5) * ng / len(dmas)))
            slots.setdefault(g, []).append(d)
    for g, m in enumerate(mfmas):
        E.emit(m)
        if g + 1 == hold and pre is not None:
            for it in pre:
                put(E, it)
        b = budget
        if g + 1 >= hold:
            gaps_left = n - g
            tot = sum(item_cost(x) for x in must)
            quota = max(must_per_gap or budget, math.ceil(tot / gaps_left))
            while must and quota > 0:
                it = must.popleft()
                put(E, it)
                quota -= item_cost(it)
                b -= item_cost(it)
            for it in slots.get(g, ()):
                put(E, it)
                b -= item_cost(it)
        while fill and b >= item_cost(fill[0]) and b > 0:
            it = fill.popleft()
            put(E, it)
            b -= item_cost(it)
    while must:
        put(E, must.popleft())


def srd_items(srd, ptr, nbytes):
    b = srd[1]
    return [salu("s_mov_b32", S(b), S(ptr)), salu("s_mov_b32", S(b + 1), S(ptr + 1)),
            salu("s_mov_b32", S(b + 2), nbytes), salu("s_mov_b32", S(b + 3), 0x20000)]


def set_exec(val):
    if isinstance(val, int):
        return I(f"s_mov_b64 exec, {val}", (), regset("exec"), "salu")
    return I(f"s_mov_b64 exec, {rs(val)}", regset(val), regset("exec"), "salu")


def common_prologue(E):
    E.emit(scmp("s_cmp_ge_u32", sWG, 256))
    E.emit(branch("s_cbranch_scc1", "L_end"))
    stamp(E, 0, -1)
    if Opt.dbgclk:
        E.raw("    s_memtime s[86:87]\n    s_memrealtime s[88:89]")
    E.emit(I("s_load_dwordx16 s[4:19], s[0:1], 0x0", kind="smem"))
    E.emit(I("s_load_dwordx4 s[20:23], s[0:1], 0x40", kind="smem"))
    E.emit(I("s_load_dwordx2 s[24:25], s[0:1], 0x50", kind="smem"))
    E.emit(I("s_getpc_b64 s[84:85]", (), regset(sPC), "salu"))
    E.label("L_pc")
    E.emit(valu("v_and_b32", vLANE, 63, V(0)))
    E.emit(valu("v_lshrrev_b32", V(1), 6, V(0)))
    E.emit(salu("s_lshr_b32", sT0, sWG, 3))
    E.emit(readfirstlane(sW, V(1)))
    E.emit(salu("s_and_b32", sT1, sT0, 3))
    E.emit(valu("v_lshlrev_b32", V(2), 2, V(0)))
    E.emit(valu("v_add_u32", V(2), sT1, V(2)))
    E.emit(valu("v_lshlrev_b32", V(2), 7, V(2)))
    E.emit(valu("v_cmp_gt_u32", "vcc", "L_codeend-L_pc", V(2)))
    E.emit(I("s_and_saveexec_b64 s[66:67], vcc", regset("vcc"), regset(S(66, 2), "exec"), "salu"))
    E.emit(branch("s_cbranch_execz", "L_nopf"))
    E.emit(I("global_load_dword v3, v2, s[84:85]", regset(V(2), sPC), regset(V(3)), "vm_ld"))
    E.label("L_nopf")
    E.emit(set_exec(-1))
    E.vm = []
    E.emit(valu("v_lshlrev_b32", vL16, 4, vLANE))
    E.emit(salu("s_and_b32", sT1, sWG, 1))
    E.emit(salu("s_lshl_b32", sT1, sT1, 2))
    E.emit(salu("s_lshr_b32", sT2, sT0, 3))
    E.emit(salu("s_add_u32", sRB, sT1, sT2))
    E.emit(salu("s_and_b32", sT1, sWG, 7))
    E.emit(salu("s_lshr_b32", sCQ, sT1, 1))
    E.emit(salu("s_and_b32", sJ, sT0, 7))
    t = [V(TMP + i) for i in range(8)]
    r8, c8, ch = t[0], t[1], t[2]
    E.emit(valu("v_lshrrev_b32", r8, 3, vLANE))
    E.emit(valu("v_and_b32", c8, 7, vLANE))
    E.emit(valu("v_lshrrev_b32", ch, 1, r8))
    E.emit(valu("v_xor_b32", ch, ch, c8))
    E.emit(salu("s_lshl_b32", sT0, sRB, 8))
    E.emit(salu("s_lshl_b32", sT1, sW, 6))
    E.emit(salu("s_add_u32", sT0, sT0, sT1))
    E.emit(valu("v_add_u32", t[3], sT0, r8))
    E.emit(valu("v_mul_u32_u24", t[3], 896, t[3]))
    E.emit(valu("v_lshl_add_u32", vXe, ch, 4, t[3]))
    E.emit(valu("v_xor_b32", t[4], 4, ch))
    E.emit(valu("v_lshl_add_u32", vXo, t[4], 4, t[3]))
    E.emit(valu("v_add_u32", vXo, 8 * 896, vXo))
    E.emit(salu("s_mul_i32", sXB, sW, XW))
    if Opt.rot:
        E.emit(salu("s_and_b32", sT5, sRB, 3))
        E.emit(salu("s_lshl_b32", sT5, sT5, 1))
        E.emit(salu("s_add_u32", sT5, sT5, sJ))
        E.emit(scmp("s_cmp_ge_u32", sT5, 7))
        E.emit(salu("s_cselect_b32", sT1, 7, 0))
        E.emit(salu("s_sub_u32", sT5, sT5, sT1))
    else:
        E.emit(salu("s_mov_b32", sT5, 0))
    E.emit(salu("s_movk_i32", sT3, 0x55A3))
    E.emit(salu("s_lshl_b32", sHD, sCQ, 2))
    E.emit(salu("s_add_u32", sHD, sHD, sJ))
    E.emit(salu("s_sub_u32", sHD, sHD, 4))
    E.emit(I("s_waitcnt lgkmcnt(0)", kind="wait"))
    stamp(E, 1, 1)
    E.emit(srd_items(SRD_X, P_X, 2048 * 896))
    E.emit(salu("s_lshl_b32", sKX[0], sT5, 7))
    for it in x_group(0):
        E.emit(it)
    stamp(E, 2, 1)


def setup_early(E, typ):
    t = [V(TMP + i) for i in range(12)]
    r8, c8, ch = t[0], t[1], t[2]
    head = typ != "glu"
    E.emit(salu("s_mul_i32", sT4, sCQ, 896))
    if head:
        E.emit(salu("s_mul_i32", sT0, sW, 192))
        E.emit(salu("s_mul_i32", sT1, sHD, 56))
        for q in range(3):
            p, row, cx = t[5], t[6], t[7]
            E.emit(valu("v_add_u32", p, sT0, vLANE))
            if q:
                E.emit(valu("v_add_u32", p, 64 * q, p))
            E.emit(valu("v_mul_u32_u24", row, 43691, p))
            E.emit(valu("v_lshrrev_b32", row, 19, row))
            E.emit(valu("v_mul_u32_u24", cx, 12, row))
            E.emit(valu("v_sub_u32", cx, p, cx))
            E.emit(valu("v_mul_u32_u24", row, 2688, row))
            E.emit(valu("v_lshrrev_b32", p, 2, cx))
            E.emit(valu("v_mul_u32_u24", p, 896, p))
            E.emit(valu("v_add_u32", row, row, p))
            E.emit(valu("v_and_b32", cx, 3, cx))
            E.emit(valu("v_lshl_add_u32", row, cx, 4, row))
            E.emit(valu("v_add_u32", vW[q], sT1, row))
        E.emit(salu("s_mul_i32", sWD, sW, 3072))
        E.emit(salu("s_add_u32", sWD, sWD, WR_BASE))
        E.emit(salu("s_lshl_b32", sT0, sRB, 8))
        E.emit(salu("s_lshl_b32", sT1, sW, 3))
        E.emit(salu("s_add_u32", sT0, sT0, sT1))
        E.emit(salu("s_sub_u32", sT0, sT0, 32))
        E.emit(valu("v_add_u32", t[5], sT0, r8))
        E.emit(salu("s_movk_i32", sT2, 896))
        E.emit(valu("v_mul_lo_u32", t[5], t[5], sT2))
        E.emit(salu("s_and_b32", sT1, sW, 1))
        E.emit(salu("s_lshl_b32", sT1, sT1, 2))
        E.emit(valu("v_xor_b32", t[6], sT1, ch))
        E.emit(valu("v_lshl_add_u32", vHX, t[6], 4, t[5]))
        E.emit(salu("s_lshl_b32", sHXD, sW, 10))
        E.emit(salu("s_add_u32", sHXD, sHXD, HX_BASE))
        E.emit(salu("s_lshr_b32", sT1, 0x4482, sHD))
        E.emit(salu("s_and_b32", sU, sT1, 1))
        E.emit(salu("s_lshl_b32", sT1, sU, 6))
        E.emit(salu("s_add_u32", sT4, sT4, sT1))
        E.emit(salu("s_add_u32", sT4, sT4, 768))
    else:
        E.emit(salu("s_lshl_b32", sT1, sJ, 7))
        E.emit(salu("s_add_u32", sT1, sT4, sT1))
        E.emit(salu("s_and_b32", sT0, sW, 1))
        E.emit(salu("s_lshl_b32", sT0, sT0, 5))
        E.emit(valu("v_add_u32", t[5], sT0, r8))
        E.emit(valu("v_mul_u32_u24", t[5], 3584, t[5]))
        E.emit(valu("v_bfe_u32", t[6], vLANE, 4, 1))
        E.emit(valu("v_lshlrev_b32", t[6], 1, t[6]))
        E.emit(valu("v_xor_b32", t[6], t[6], c8))
        E.emit(salu("s_and_b32", sT0, sW, 2))
        E.emit(salu("s_lshl_b32", sT0, sT0, 1))
        E.emit(valu("v_xor_b32", t[6], sT0, t[6]))
        E.emit(valu("v_lshl_add_u32", t[5], t[6], 4, t[5]))
        E.emit(valu("v_add_u32", vW[0], sT1, t[5]))
        E.emit(salu("s_lshl_b32", sWD, sW, 12))
        E.emit(salu("s_add_u32", sWD, sWD, WR_BASE))
        E.emit(salu("s_lshl_b32", sT1, sJ, 6))
        E.emit(salu("s_add_u32", sT4, sT4, sT1))
        E.emit(salu("s_add_u32", sT4, sT4, 512))


SRD_PF = SRD_GW
vPF = V(212)
sPFS = S(82)
sPP = S(82)


def setup_kpf(E, typ):
    head = typ != "glu"
    t = [V(TMP + 8 + i) for i in range(4)]
    E.emit(salu("s_lshl_b32", sT0, sRB, 8))
    E.emit(salu("s_lshl_b32", sT1, sJ, 5))
    E.emit(salu("s_add_u32", sT0, sT0, sT1))
    E.emit(valu("v_and_b32", t[0], 31, vLANE))
    E.emit(valu("v_add_u32", t[0], sT0, t[0]))
    E.emit(valu("v_mul_u32_u24", t[0], 896, t[0]))
    pitch = 2688 if head else 3584
    E.emit(salu("s_and_b32", sT0, sRB, 3))
    E.emit(salu("s_lshl_b32", sT0, sT0, 4))
    E.emit(valu("v_bfe_u32", t[1], vLANE, 1, 4))
    E.emit(valu("v_add_u32", t[1], sT0, t[1]))
    E.emit(valu("v_mul_u32_u24", t[1], pitch, t[1]))
    E.emit(valu("v_and_b32", t[2], 1, vLANE))
    if head:
        E.emit(valu("v_mul_u32_u24", t[2], 60, t[2]))
        E.emit(salu("s_mul_i32", sT1, sHD, 56))
        E.emit(salu("s_mul_i32", sT0, sW, 896))
        E.emit(salu("s_add_u32", sT1, sT1, sT0))
        E.emit(salu("s_sub_u32", sT1, sT1, 896))
        E.emit(valu("v_add_u32", t[1], t[1], t[2]))
        E.emit(valu("v_add_u32", t[1], sT1, t[1]))
    else:
        E.emit(salu("s_mul_i32", sT1, sCQ, 896))
        E.emit(salu("s_lshl_b32", sT0, sJ, 7))
        E.emit(salu("s_add_u32", sT1, sT1, sT0))
        E.emit(salu("s_sub_u32", sT0, sT4, sT1))
        E.emit(valu("v_mul_lo_u32", t[2], t[2], sT0))
        E.emit(valu("v_add_u32", t[1], t[1], t[2]))
        E.emit(valu("v_add_u32", t[1], sT1, t[1]))
    E.emit(scmp("s_cmp_eq_u32", sW, 0))
    E.emit(I("s_cselect_b64 vcc, -1, 0", (), regset("vcc"), "salu"))
    E.emit(valu("v_cndmask_b32", vPF, t[1], t[0], "vcc"))
    E.emit(salu("s_mov_b32", sPFS, 64 * pitch))
    E.emit(salu("s_cselect_b32", sPFS, 128, sPFS))


def kpf(k):
    if k == 0:
        return [buf_load(vPFD, vPF, SRD_KPF, 0, 0, Opt.ldk)]
    return [salu("s_mul_i32", sSO, sPFS, k), buf_load(vPFD, vPF, SRD_KPF, sSO, 0, Opt.ldk)]


SRD_KPF = SRD_OUT


def setup_late(typ):
    head = typ != "glu"
    t = [V(TMP + i) for i in range(12)]
    r8, c8 = t[0], t[1]
    items = []
    e = items.append
    m, hf, sw, base = t[5], t[6], t[7], t[8]
    e(valu("v_and_b32", m, 31, vLANE))
    e(valu("v_lshrrev_b32", hf, 5, vLANE))
    e(valu("v_bfe_u32", sw, m, 1, 3))
    e(valu("v_lshlrev_b32", base, 7, m))
    e(valu("v_xor_b32", sw, sw, hf))
    for ee in range(4):
        e(valu("v_xor_b32", t[9], 2 * ee, sw))
        e(valu("v_lshl_add_u32", t[9], t[9], 4, base))
        e(valu("v_add_u32", vXR[ee], sXB, t[9]))
    if head:
        e(salu("s_lshl_b32", sT0, sW, 1))
        e(valu("v_xor_b32", t[9], sT0, sw))
        e(valu("v_lshl_add_u32", t[9], t[9], 4, base))
        e(valu("v_add_u32", vHXR, HX_BASE, t[9]))
    grp, r4, c4, krow = t[5], t[7], t[8], t[9]
    e(valu("v_bfe_u32", grp, vLANE, 4, 1))
    e(valu("v_bfe_u32", r4, vLANE, 2, 2))
    e(valu("v_and_b32", c4, 3, vLANE))
    e(valu("v_lshl_add_u32", krow, hf, 3, r4))
    if head:
        e(valu("v_mul_u32_u24", t[10], 192, krow))
        e(valu("v_lshl_add_u32", t[10], grp, 5, t[10]))
        e(valu("v_lshl_add_u32", t[10], c4, 3, t[10]))
        e(valu("v_add_u32", vWR, WR_BASE, t[10]))
        e(salu("s_mul_i32", sT0, sW, 3072))
        e(valu("v_add_u32", vWH, sT0, vWR))
        e(valu("v_lshlrev_b32", t[10], 4, hf))
        e(valu("v_add_u32", vGW, GW_BASE, t[10]))
        e(salu("s_mov_b32", S(sGMASK[1]), 1 << 28))
        e(salu("s_mov_b32", S(sGMASK[1] + 1), 1 << 28))
    else:
        e(valu("v_lshlrev_b32", t[10], 7, krow))
        e(valu("v_lshl_add_u32", t[10], grp, 13, t[10]))
        e(valu("v_lshl_add_u32", t[10], c4, 3, t[10]))
        e(valu("v_add_u32", t[10], WR_BASE, t[10]))
        e(valu("v_lshrrev_b32", t[11], 1, r4))
        e(valu("v_lshl_add_u32", t[11], grp, 1, t[11]))
        for n in range(4):
            e(valu("v_xor_b32", t[3], n, t[11]))
            e(valu("v_lshl_add_u32", vWR4[n], t[3], 5, t[10]))
    e(valu("v_lshlrev_b32", t[10], 6, krow))
    e(valu("v_lshl_add_u32", t[10], c4, 3, t[10]))
    e(valu("v_lshl_add_u32", t[10], grp, 12, t[10]))
    e(valu("v_lshl_add_u32", vW2R[0][0], grp, 5, t[10]))
    e(valu("v_xor_b32", t[11], 1, grp))
    e(valu("v_lshl_add_u32", vW2R[1][0], t[11], 5, t[10]))
    e(valu("v_add_u32", vW2R[0][1], 2 * XW, vW2R[0][0]))
    e(valu("v_add_u32", vW2R[1][1], 2 * XW, vW2R[1][0]))
    return items


def setup_fill(typ):
    head = typ != "glu"
    t = [V(TMP + i) for i in range(12)]
    r8, c8 = t[0], t[1]
    items = []
    e = items.append
    items += srd_items(SRD_WD, P_WD, 1792 * 896)
    e(salu("s_lshr_b32", sT0, sWG, 3))
    e(salu("s_and_b32", sT1, sWG, 7))
    e(salu("s_lshl_b32", sT1, sT1, 2))
    e(salu("s_add_u32", sT0, sT0, sT1))
    e(salu("s_and_b32", sT0, sT0, 31))
    e(salu("s_lshl_b32", sT0, sT0, 2))
    e(salu("s_add_u32", sT0, sT0, sW))
    e(valu("v_min_u32", t[6], 24, vLANE))
    e(valu("v_lshlrev_b32", t[6], 7, t[6]))
    e(salu("s_mul_i32", sT1, sT0, 98 * 128))
    e(valu("v_add_u32", vPW[0], sT1, t[6]))
    e(salu("s_mul_i32", sT1, sT0, 25 * 128))
    e(valu("v_add_u32", vPW[1], sT1, t[6]))
    e(salu("s_and_b32", sT0, sW, 1))
    e(salu("s_lshl_b32", sT0, sT0, 5))
    e(salu("s_and_b32", sT1, sW, 2))
    e(valu("v_lshrrev_b32", t[5], 2, vLANE))
    e(valu("v_add_u32", t[5], sT0, t[5]))
    e(valu("v_mul_u32_u24", t[5], 3584, t[5]))
    e(valu("v_and_b32", t[6], 3, vLANE))
    e(valu("v_xor_b32", t[6], sT1, t[6]))
    e(valu("v_lshl_add_u32", t[5], t[6], 4, t[5]))
    e(valu("v_add_u32", vW2, sT4, t[5]))
    e(salu("s_lshl_b32", sW2D, sW, 11))
    if not head:
        e(salu("s_lshl_b32", sP2O, sJ, 12))
        e(salu("s_sub_u32", sP2O, 24 * 2048, sP2O))
    else:
        e(salu("s_sub_u32", sP2O, sU, sJ))
        e(salu("s_lshl_b32", sP2O, sP2O, 12))
        e(salu("s_add_u32", sP2O, sP2O, 24 * 2048))
    e(salu("s_lshl_b32", sT0, sRB, 2))
    e(salu("s_add_u32", sT0, sT0, sW))
    e(salu("s_mul_i32", sT0, sT0, 144))
    e(salu("s_mul_i32", sT1, sCQ, 36))
    e(salu("s_add_u32", sT0, sT0, sT1))
    if head:
        e(salu("s_lshl_b32", sT1, sJ, 1))
        e(salu("s_add_u32", sT0, sT0, 8))
    else:
        e(salu("s_lshl_b32", sT1, sJ, 2))
    e(salu("s_add_u32", sT0, sT0, sT1))
    e(salu("s_lshl_b32", sT0, sT0, 11))
    e(valu("v_add_u32", vST, sT0, vL16))
    e(salu("s_lshl_b32", sT0, sRB, 2))
    e(salu("s_add_u32", sT0, sT0, sW))
    e(salu("s_lshl_b32", sT0, sT0, 2))
    e(salu("s_add_u32", sT0, sT0, sCQ))
    e(salu("s_lshl_b32", sT0, sT0, 4))
    e(salu("s_add_u32", sT0, sT0, sJ))
    e(salu("s_lshl_b32", sT0, sT0, 3))
    e(salu("s_add_u32", sT0, sT0, FLAG_OFF))
    e(valu("v_and_b32", t[5], 1, vLANE))
    e(valu("v_lshlrev_b32", t[5], 6, t[5]))
    e(valu("v_add_u32", vFL, sT0, t[5]))
    e([salu("s_mov_b32", sT0, 1664525), valu("v_mul_lo_u32", V(vTAG[1]), V(vTAG[1]), sT0)])
    e(valu("v_add_u32", V(vTAG[1]), 1013904223, V(vTAG[1])))
    e([salu("s_mov_b32", sT0, 22695477), valu("v_mul_lo_u32", V(vTAG[1] + 1), V(vTAG[1] + 1), sT0)])
    e(valu("v_add_u32", V(vTAG[1] + 1), 1, V(vTAG[1] + 1)))
    e([scmp("s_cmp_gt_u32", sJ, 3), salu("s_cselect_b32", sT0, 1, 0), salu("s_sub_u32", sJC, sJ, sT0)])
    e(valu("v_bfe_u32", t[5], vLANE, 4, 1))
    e(valu("v_lshlrev_b32", t[5], 2, t[5]))
    e(valu("v_xor_b32", t[5], t[5], c8))
    e(valu("v_mul_u32_u24", t[6], 896, r8))
    e(valu("v_lshl_add_u32", t[6], t[5], 4, t[6]))
    e(salu("s_lshl_b32", sT0, sJC, 7))
    e(salu("s_mul_i32", sT1, sW, 112 * 896))
    e(salu("s_add_u32", sT1, sT1, sT0))
    e(valu("v_add_u32", vBo, sT1, t[6]))
    e(salu("s_mul_i32", sT1, sW, 448 * 896))
    e(salu("s_add_u32", sT1, sT1, sT0))
    e(valu("v_add_u32", vBd, sT1, t[6]))
    e(salu("s_lshl_b32", sT0, sRB, 2))
    e(salu("s_add_u32", sT0, sT0, sCQ))
    e(salu("s_lshl_b32", sT0, sT0, 2))
    e(salu("s_add_u32", sT0, sT0, sW))
    e(salu("s_lshl_b32", sT0, sT0, 7))
    e(salu("s_add_u32", sT0, sT0, FLAG_OFF))
    e(valu("v_and_b32", t[5], 15, vLANE))
    e(valu("v_lshlrev_b32", t[5], 3, t[5]))
    e(valu("v_add_u32", vFP, sT0, t[5]))
    e(salu("s_lshl_b32", sT0, sRB, 2))
    e(salu("s_add_u32", sT0, sT0, sCQ))
    e(salu("s_mul_i32", sT0, sT0, 144))
    e(salu("s_mul_i32", sT1, sW, 36))
    e(salu("s_add_u32", sT0, sT0, sT1))
    e(salu("s_lshl_b32", sT0, sT0, 11))
    e(salu("s_mul_i32", sT1, sJC, 37))
    e(valu("v_min_u32", t[5], 36, vLANE))
    e(valu("v_add_u32", t[5], sT1, t[5]))
    e(valu("v_min_u32", t[5], 255, t[5]))
    e(valu("v_lshlrev_b32", t[5], 7, t[5]))
    e(valu("v_add_u32", vPAe, sT0, t[5]))
    e(salu("s_mul_i32", sTOPB, sW, 3584))
    e(salu("s_add_u32", sTOPB, sTOPB, TOP_BASE))
    e(salu("s_mul_i32", sWRB, sW, 12288))
    e(salu("s_add_u32", sWRB, sWRB, WR_BASE))
    items += srd_items(SRD_OUT, P_OUT, 2048 * 896)
    if head:
        e(valu("v_mov_b32", vNEG, NEGBIG))
        e(salu("s_mov_b32", sC, CSC))
        e(salu("s_mov_b32", S(sLOMASK[1]), -1))
        e(salu("s_mov_b32", S(sLOMASK[1] + 1), 0))
        e(salu("s_or_b32", sT0, sRB, sW))
        e([scmp("s_cmp_eq_u32", sT0, 0), salu("s_cselect_b32", S(sFIRST[1]), 0, -1),
           salu("s_cselect_b32", S(sFIRST[1] + 1), 0, -1)])
        e(salu("s_mul_i32", sT0, sW, 6144))
        e(salu("s_add_u32", sT0, sT0, HP_BASE))
        e(valu("v_add_u32", vHP, sT0, vL16))
        e(salu("s_lshl_b32", sT0, sW, 10))
        e(salu("s_add_u32", sT0, sT0, HP_BASE))
        e(valu("v_add_u32", vHPK, sT0, vL16))
        e(salu("s_lshr_b32", sT0, sW, 1))
        e(salu("s_lshl_b32", sT0, sT0, 10))
        e(salu("s_and_b32", sT1, sW, 1))
        e(salu("s_lshl_b32", sT1, sT1, 3))
        e(salu("s_add_u32", sT0, sT0, sT1))
        e(salu("s_add_u32", sT1, sT0, HP_BASE + 4096))
        e(valu("v_add_u32", vHPV, sT1, vL16))
        e(salu("s_add_u32", sT1, sT0, HS_BASE))
        e(valu("v_add_u32", vHSK, sT1, vL16))
        e(salu("s_lshl_b32", sT1, sW, 2))
        e(salu("s_add_u32", sT1, sT1, HS_BASE + 2048))
        e(valu("v_add_u32", vHSV, sT1, vL16))
        e(salu("s_mul_i32", sT1, sW, 3072))
        e(salu("s_add_u32", sT1, sT1, HS_BASE))
        e(valu("v_add_u32", vHSI, sT1, vL16))
        if typ == "h0":
            items += mask_items(128)
    return items


def mask_items(M):
    its = []
    for r in range(24):
        if r < 16:
            fn = lambda l, r=r: ((l & 31) - ((r & 3) + 8 * (r >> 2) + 4 * (l >> 5))) in range(0, 16, 2)
        else:
            fn = lambda l, r=r - 8: ((l & 31) - ((r & 3) + 8 * (r >> 2) + 4 * (l >> 5)) + 32) in range(0, 16, 2)
        mk = lane_mask(fn) ^ ((1 << 64) - 1)
        its.append([I(f"s_mov_b32 vcc_lo, 0x{mk & 0xffffffff:x}", (), regset("vcc"), "salu"),
                    I(f"s_mov_b32 vcc_hi, 0x{mk >> 32:x}", (), regset("vcc"), "salu"),
                    valu("v_cndmask_b32", V(M + r), 0, vNEG, "vcc")])
    return its


def dma_item(m0_base, m0_off, voff, srd, soff, tag, fl=None):
    fl = Opt.ld1 if fl is None else fl
    it = [salu("s_add_u32", "m0", m0_base, m0_off) if m0_base is not None else salu("s_mov_b32", "m0", m0_off)]
    if isinstance(soff, tuple):
        sreg, mul, add = soff
        if mul != 1:
            it.append(salu("s_mul_i32", sSO, sreg, mul))
            if add:
                it.append(salu("s_add_u32", sSO, sSO, add))
            it.append(dma(voff, srd, sSO, tag, fl))
        elif add:
            it.append(salu("s_add_u32", sSO, sreg, add))
            it.append(dma(voff, srd, sSO, tag, fl))
        else:
            it.append(dma(voff, srd, sreg, tag, fl))
    elif soff:
        it.append(salu("s_mov_b32", sSO, soff))
        it.append(dma(voff, srd, sSO, tag, fl))
    else:
        it.append(dma(voff, srd, 0, tag, fl))
    return it


def x_group(kb):
    slot = kb % 3
    return [dma_item(sXB, slot * 8192 + i * 1024, vXo if i & 1 else vXe, SRD_X, (sKX[kb], 1, (i >> 1) * 14336), f"L{kb}") for i in range(8)]


def load_group(kb, typ, nox=False):
    head = typ != "glu"
    slot = kb % 3
    tag = f"L{kb}"
    xs = [] if nox else x_group(kb)
    if head:
        ws = [dma_item(sWD, slot * WR_SLOT_H + q * 1024, vW[q], SRD_QKV, (sKX[kb], 1344, 0), tag) for q in range(3)]
        ws.append(dma_item(sHXD, slot * 4096, vHX, SRD_X, (sKX[kb], 1, 0), tag))
    else:
        ws = [dma_item(sWD, slot * WR_SLOT_G + q * 1024, vW[0], SRD_GU, (sKX[kb], 1792, q * 8 * 3584), tag) for q in range(4)]
    its = []
    for q in range(4):
        its += [ws[q]] + xs[2 * q:2 * q + 2]
    return its


def load_group2(kbs, tag, typ):
    its = []
    for kb2 in kbs:
        for q in range(2):
            its.append(dma_item(sW2D, pieces(kb2) + q * 1024, vW2, SRD_GU, (sKX[kb2], 1792, 16 * q * 3584), tag))
    return its


def xfrag(s, t):
    return A((s * 2 + t) * 4, 4)


def wf1(buf, n):
    return A(224 + buf * (12 if Opt.n1 == 3 else 16) + n * 4, 4)


def wf2(buf, n):
    return A(224 + buf * 4, 4)


def acc1(n, t):
    return V((n * 2 + t) * 16, 16)


def acc2(n, t):
    return V(128 + (n * 2 + t) * 16, 16)


def reads1(s, typ):
    head = typ != "glu"
    kb, e = divmod(s, 4)
    slot = kb % 3
    buf = s & 1
    its = []

    def wr(n):
        f = wf1(buf, n)
        if not head:
            o = slot * WR_SLOT_G + e * 2048
            return [ds_read(64, A(f[1], 2), vWR4[n], o, tr=True), ds_read(64, A(f[1] + 2, 2), vWR4[n], o + 512, tr=True)]
        o = slot * WR_SLOT_H + e * 3072 + n * 64
        r = [ds_read(64, A(f[1], 2), vWR, o, tr=True), ds_read(64, A(f[1] + 2, 2), vWR, o + 768, tr=True)]
        if n == 0:
            r.append([set_exec(sGMASK), ds_read(128, f, vGWs, e * 32), set_exec(-1)])
        return r
    if head and e == 0:
        its.append(valu("v_add_u32", vGWs, sKX[kb], vGW))
    its.append(ds_read(128, xfrag(s, 0), vXR[e], slot * 8192))
    its += wr(0)
    its.append(ds_read(128, xfrag(s, 1), vXR[e], slot * 8192 + 4096))
    for n in range(1, Opt.n1):
        its += wr(n)
    return its


def reads2(n, s):
    kb2, e = divmod(s, 4)
    base = pieces(kb2)
    hi = base >= 2 * XW
    if hi:
        base -= 2 * XW
    f = wf2(s & 1, 0)
    o = base + e * 1024
    return [ds_read(64, A(f[1], 2), vW2R[n][hi], o, tr=True), ds_read(64, A(f[1] + 2, 2), vW2R[n][hi], o + 256, tr=True)]


def glu_epi(acc, koff, tag):
    b = acc[1]
    its = []
    for e in range(8):
        its.append(valu("v_mul_f32", V(b + e), -LOG2E, V(b + e)))
    for e in range(8):
        its.append(valu("v_exp_f32", V(b + e), V(b + e)))
    for e in range(8):
        its.append(valu("v_add_f32", V(b + e), 1.0, V(b + e)))
    for e in range(8):
        its.append(valu("v_rcp_f32", V(b + e), V(b + e)))
    for e in range(8):
        its.append(valu("v_mul_f32", V(b + e), V(b + e), V(b + 8 + e)))
    for e in range(4):
        its.append(valu("v_cvt_pk_bf16_f32", V(b + 8 + e), V(b + 2 * e), V(b + 2 * e + 1)))
    its.append(store_frag(V(b + 8, 4), koff, tag))
    return its


def store_frag(src, koff, tag):
    fl = Opt.st1
    if isinstance(koff, tuple):
        return buf_store(src, vST, SRD_WS, koff[0], koff[1], fl, tag)
    if koff < 4096:
        return buf_store(src, vST, SRD_WS, 0, koff, fl, tag)
    return [salu("s_mov_b32", sSO2, koff & ~4095), buf_store(src, vST, SRD_WS, sSO2, koff & 4095, fl, tag)]


def flag_set(p, need):
    st = buf_store(vTAG, vFL, SRD_WS, 0, 0, " sc1", None, need=need)
    w = I("s_nop 0", kind="nop", need=need)
    return [w, set_exec(1 << p), st, set_exec(-1)]


def lane_mask(fn):
    m = 0
    for l in range(64):
        if fn(l):
            m |= 1 << l
    return m


def pack_inplace(dst, src, n):
    return [valu("v_cvt_pk_bf16_f32", V(dst + i), V(src + 2 * i), V(src + 2 * i + 1)) for i in range(n)]


def dsw(width, addr, src, off, tag):
    i = ds_write(width, addr, src, off, tag=tag)
    i.cost = {128: 3, 64: 2, 32: 1}[width]
    return i


def head_epi(typ, mark_wr=None):
    its = []
    a = its.append
    Q0, Q1, K0, K1, V0, V1 = 0, 16, 32, 48, 64, 80
    HK, HV = 96, 112
    M = 128 if typ == "h0" else 96
    tg = [V(192), V(193)]
    mx, mx2, sm, sm2, nb, rinv, rz = [V(120 + i) for i in range(7)]
    a(valu("v_mov_b32", tg[0], V(Q0 + 12)))
    a(valu("v_mov_b32", tg[1], V(Q1 + 12)))
    pk = pack_inplace(K0, K0, 8) + pack_inplace(K0 + 8, K1, 8) + pack_inplace(V0, V0, 8) + pack_inplace(V0 + 8, V1, 8)
    wr = [dsw(128, vHP, V(HK + 4 * q, 4), q * 1024, "hp") for q in range(4)]
    wr += [dsw(128, vHP, V(HV + 8 + 4 * q, 4), (4 + q) * 1024, "hp") for q in range(2)]
    for k, x in enumerate(pk):
        a(x)
        if k % 5 == 4 and wr:
            a(wr.pop(0))
    its.extend(wr)
    qp_ = pack_inplace(Q0, Q0, 8) + pack_inplace(Q0 + 8, Q1, 8)
    wr = [dsw(128, vHSI, V(K0 + 8, 4), 3072, "hp"), dsw(128, vHSI, V(K0 + 12, 4), 3072 + 1024, "hp"),
          dsw(128, vHSI, V(V0 + 12, 4), 3072 + 2048, "hp")]
    for k, x in enumerate(qp_):
        if k % 5 == 0 and wr:
            a(wr.pop(0))
        a(x)
    for t in range(2):
        for r in (6, 7):
            a(valu("v_cndmask_b32", V(Q0 + 8 * t + r), 0, V(Q0 + 8 * t + r), sLOMASK))
    a(barrier(need=("hp",)))
    T, TV = K1, TMP - 16
    for p in range(4):
        a(ds_read(128, V(T + 4 * p, 4), vHPK, p * 6144))
        a(ds_read(64, V(TV + 16 + 2 * p, 2), vHPV, p * 6144))
    if typ != "h0":
        its.extend(mask_items(M))
    Sd, Sp, O = V1, Q1, K1

    def qk(t, kprev):
        kp = [V(K0 + 8 * t, 4), V(K0 + 8 * t + 4, 4)]
        qp = [V(Q0 + 8 * t, 4), V(Q0 + 8 * t + 4, 4)]
        a(mfma(V(Sd, 16), kp[0], qp[0], V(M, 16)))
        a(mfma(V(Sp, 16), kprev[0], qp[0], V(M + 8, 16)))
        a(mfma(V(Sd, 16), kp[1], qp[1], V(Sd, 16)))
        a(mfma(V(Sp, 16), kprev[1], qp[1], V(Sp, 16)))

    def softmax_pv(t, vprev):
        vt = [V(V0 + 8 * t, 4), V(V0 + 8 * t + 4, 4)]
        vals = [V(Sd + r) for r in range(16)] + [V(Sp + r) for r in range(8, 16)]
        a(valu("v_max3_f32", mx, vals[0], vals[1], vals[2]))
        a(valu("v_max3_f32", mx2, vals[3], vals[4], vals[5]))
        rest = vals[6:]
        k = 0
        while rest:
            tgt = mx if k % 2 == 0 else mx2
            a(valu("v_max3_f32", tgt, tgt, rest[0], rest[1]))
            rest = rest[2:]
            k += 1
        a(valu("v_max_f32", mx, mx, mx2))
        a(valu("v_mov_b32", mx2, mx))
        g = tg[t]
        a(valu("v_mul_f32", g, -LOG2E, g))
        a(valu("v_exp_f32", g, g))
        a(permswap(mx, mx2))
        a(valu("v_max_f32", mx, mx, mx2))
        a(valu("v_mul_f32", nb, -CSC, mx))
        for v_ in vals:
            a(valu("v_fma_f32", v_, v_, sC, nb))
        for v_ in vals:
            a(valu("v_exp_f32", v_, v_))
        a(valu("v_add_f32", g, 1.0, g))
        a(valu("v_add_f32", sm, vals[0], vals[1]))
        a(valu("v_add_f32", sm2, vals[2], vals[3]))
        for k, v_ in enumerate(vals[4:]):
            tgt = sm if k % 2 == 0 else sm2
            a(valu("v_add_f32", tgt, tgt, v_))
        its.extend(pack_inplace(Sd, Sd, 8))
        its.extend(pack_inplace(Sp + 8, Sp + 8, 4))
        a(valu("v_add_f32", sm, sm, sm2))
        a(valu("v_mov_b32", sm2, sm))
        a(mfma(V(O, 16), vt[0], V(Sd, 4), 0))
        a(mfma(V(O, 16), vt[1], V(Sd + 4, 4), V(O, 16)))
        a(mfma(V(O, 16), vprev, V(Sp + 8, 4), V(O, 16)))
        a(permswap(sm, sm2))
        a(valu("v_add_f32", sm, sm, sm2))
        a(valu("v_rcp_f32", rinv, sm))
        a(valu("v_rcp_f32", g, g))
        a(valu("v_cndmask_b32", rz, 0, rinv, sLOMASK))
        a(buf_store(g, vHP, SRD_WS, 0, t * 256, Opt.st1, "e1"))

    def finish(t):
        for r in range(16):
            a(valu("v_mul_f32", V(O + r), V(O + r), rz if r >= 12 else rinv))
        its.extend(pack_inplace(O, O, 8))
        a(store_frag(V(O, 4), t * 1024, "e1"))
        a(store_frag(V(O + 4, 4), 2048 + t * 1024, "e1"))

    qk(1, [V(K0, 4), V(K0 + 4, 4)])
    for i in range(4):
        a(valu("v_add_f32", V(T + i), V(T + i), V(T + 4 + i)))
        a(valu("v_add_f32", V(T + 8 + i), V(T + 8 + i), V(T + 12 + i)))
    for i in range(2):
        a(valu("v_add_f32", V(TV + 16 + i), V(TV + 16 + i), V(TV + 18 + i)))
        a(valu("v_add_f32", V(TV + 20 + i), V(TV + 20 + i), V(TV + 22 + i)))
    for i in range(4):
        a(valu("v_add_f32", V(T + i), V(T + i), V(T + 8 + i)))
    for i in range(2):
        a(valu("v_add_f32", V(TV + 16 + i), V(TV + 16 + i), V(TV + 20 + i)))
    a(valu("v_cvt_pk_bf16_f32", V(T + 0), V(T + 0), V(T + 1)))
    a(valu("v_cvt_pk_bf16_f32", V(T + 1), V(T + 2), V(T + 3)))
    a(valu("v_cvt_pk_bf16_f32", V(TV + 16), V(TV + 16), V(TV + 17)))
    a(dsw(64, vHSK, V(T, 2), 0, "hs"))
    a(dsw(32, vHSV, V(TV + 16), 0, "hs"))
    a([salu("s_lshl_b32", sT0, sRB, 2), salu("s_add_u32", sT0, sT0, sW), salu("s_lshl_b32", sT0, sT0, 2),
       salu("s_add_u32", sT0, sT0, sCQ)])
    a([salu("s_lshl_b32", sT0, sT0, 2), salu("s_add_u32", sT0, sT0, sJ), salu("s_lshl_b32", sT0, sT0, 9),
       salu("s_add_u32", sT0, sT0, G_OFF - 4 * 512)])
    a(valu("v_lshlrev_b32", vHP, 2, vLANE))
    a(valu("v_add_u32", vHP, sT0, vHP))
    softmax_pv(1, V(V0 + 4, 4))
    a(barrier(need=("hs",)))
    a(ds_read(128, A(240, 4), vHSI, 0))
    a(ds_read(128, A(244, 4), vHSI, 1024))
    x_ = ds_read(128, A(248, 4), vHSI, 2048)
    x_.tag = "hsr"
    a(x_)
    a(I("s_mov_b64 vcc, s[0:1]", regset(sFIRST), regset("vcc"), "salu"))
    for r in range(16, 24):
        a(valu("v_cndmask_b32", V(M + r), vNEG, V(M + r), "vcc"))
    qk(0, [A(240, 4), A(244, 4)])
    if typ == "h2":
        a(barrier(need=("hsr",)))
        a(mark_wr)
    finish(1)
    softmax_pv(0, A(248, 4))
    return its, (lambda: (its.clear(), finish(0), list(its))[2])


def chunk(slot):
    if slot < 16:
        return ("f", slot)
    if slot < 24:
        return ("o", slot - 16)
    return ("f", slot - 8)


PHMASK = [0x000F, 0x00F0, 0xFF00]
PHSTART = [0, 16, 24]
PHEND = [16, 24, 36]


vFP, vFD = V(216), V(218, 2)
vPW = [V(213), V(214)]
vPAe = V(215)
vPFD = V(217)


def poll():
    return buf_load(vFD, vFP, SRD_WS, 0, 0, " sc1")


NR = 17
NV = 8


def bblock(p, typ):
    x0 = [("x", i * 2048) for i in range(4)]
    x1 = [("x", 8192 + i * 2048) for i in range(4)]
    x2 = [("x", 16384 + i * 2048) for i in range(4)]
    top = [("t", 0)]
    wr = [("w", i * 2048) for i in range(6)]
    if typ == "h0":
        early = top + x0 + x1 + x2
        if p < 30:
            return early[p % 13]
        return wr[p - 30]
    early = top + x0 + wr
    if p < 28:
        return early[p % 11]
    return (x1 + x2)[p - 28]


def b_dma(i, typ, need=()):
    kind, ks = chunk(i)
    reg, off = bblock(i, typ)
    base = {"x": sXB, "t": sTOPB, "w": sWRB}[reg]
    if kind == "o":
        row, vo, srd = 28 * (ks >> 1) + 16 * (ks & 1), vBo, SRD_WO
    else:
        row, vo, srd = 16 * ks, vBd, SRD_WD
    its = [dma_item(base, off + h * 1024, vo, srd, (row + 8 * h) * 896, f"B{i}", Opt.ldb) for h in range(2)]
    its[0][0].need = tuple(need)
    return its


vT = {(r, c): V(232 + k) for k, (r, c) in enumerate((r, c) for r in "xtw" for c in range(2))}
vA, vRW, vRR, vO, vG0, vG1 = V(225), V(226), V(227), V(228), V(229), V(231)
vGAD = V(238)
vPA = [V(194), V(195), V(196)]
BF = 136


def breg(i):
    if i < NV:
        return ("v", 64 + 8 * i)
    return ("a", 8 * (i - NV)) if i < NR else ("v", BF + (i & 1) * 8)


def b_reads(i, typ):
    reg, off = bblock(i, typ)
    f, o = breg(i)
    its = []
    for c in range(2):
        its.append(ds_read(64, (f, o + 4 * c, 2), vT[(reg, c)], off, tr=True, need=(f"B{i}",)))
        its.append(ds_read(64, (f, o + 4 * c + 2, 2), vT[(reg, c)], off + 1024, tr=True, need=(f"B{i}",)))
    for x in its:
        x.tag = f"R{i}"
    return its


def p2_setup():
    t = [V(243), V(213), V(214), V(215), V(255), V(212)]
    its = []
    e = its.append
    hf, r4, gi, ng = t[0], t[1], t[2], t[3]
    e(valu("v_lshrrev_b32", hf, 5, vLANE))
    e(valu("v_bfe_u32", r4, vLANE, 2, 2))
    e(valu("v_bfe_u32", gi, vLANE, 4, 1))
    e(valu("v_and_b32", t[4], 3, vLANE))
    e(valu("v_lshl_add_u32", gi, gi, 2, t[4]))
    e(valu("v_and_b32", t[4], 1, gi))
    e(valu("v_lshrrev_b32", ng, 1, gi))
    e(valu("v_lshl_add_u32", ng, t[4], 2, ng))
    e(valu("v_lshl_add_u32", t[4], hf, 2, r4))
    e(valu("v_lshlrev_b32", t[4], 7, t[4]))
    e(valu("v_lshl_add_u32", t[4], ng, 3, t[4]))
    e(valu("v_lshrrev_b32", t[5], 1, r4))
    e(valu("v_lshl_add_u32", t[2], t[5], 6, t[4]))
    e(valu("v_xor_b32", t[5], 1, t[5]))
    e(valu("v_lshl_add_u32", t[3], t[5], 6, t[4]))
    for r, sb in (("x", sXB), ("t", sTOPB), ("w", sWRB)):
        e(valu("v_add_u32", vT[(r, 0)], sb, t[2]))
        e(valu("v_add_u32", vT[(r, 1)], sb, t[3]))
    e([salu("s_lshl_b32", sPP, sRB, 2), salu("s_add_u32", sPP, sPP, sCQ)])
    e([salu("s_mul_i32", sT1, sPP, 144), salu("s_mul_i32", sT2, sW, 36), salu("s_add_u32", sT1, sT1, sT2),
       salu("s_lshl_b32", sT1, sT1, 11), valu("v_add_u32", vA, sT1, vL16)])
    e(salu("s_mov_b32", sT4, sT1))
    for ph in range(3):
        nl = (PHEND[ph] - PHSTART[ph]) * 16
        per = -(-nl // 7)
        e(valu("v_min_u32", t[4], per - 1, vLANE))
        e([salu("s_mul_i32", sT2, sJC, per), valu("v_add_u32", t[4], sT2, t[4])])
        e(valu("v_min_u32", t[4], nl - 1, t[4]))
        e(valu("v_lshlrev_b32", t[4], 7, t[4]))
        e([salu("s_add_u32", sT2, sT4, PHSTART[ph] * 2048), valu("v_add_u32", vPA[ph], sT2, t[4])])
    e([salu("s_lshl_b32", sT1, sW, 12), valu("v_add_u32", vRW, sT1, vL16)])
    e([salu("s_lshl_b32", sT1, sW, 14), valu("v_add_u32", vRR, sT1, vL16)])
    e(valu("v_and_b32", t[4], 31, vLANE))
    e([salu("s_lshl_b32", sT1, sPP, 2), salu("s_add_u32", sT1, sT1, sW), salu("s_lshl_b32", sT1, sT1, 11),
       salu("s_add_u32", sT1, sT1, G_OFF + 128), valu("v_lshl_add_u32", vGAD, t[4], 2, sT1)])
    e([salu("s_lshl_b32", sT1, sPP, 6), salu("s_lshr_b32", sT2, sW, 1), salu("s_lshl_b32", sT2, sT2, 5),
       salu("s_add_u32", sT1, sT1, sT2), valu("v_add_u32", t[4], sT1, t[4])])
    e(valu("v_mul_u32_u24", t[4], 896, t[4]))
    e(valu("v_lshl_add_u32", t[4], hf, 5, t[4]))
    e([salu("s_lshl_b32", sT1, sJC, 7), salu("s_and_b32", sT2, sW, 1), salu("s_lshl_b32", sT2, sT2, 6),
       salu("s_add_u32", sT1, sT1, sT2), valu("v_add_u32", vO, sT1, t[4])])
    e(salu("s_mov_b32", sSPIN, 0))
    return its


def gen_early(E, typ):
    head = typ != "glu"
    Opt.n1 = 3 if head else 4
    n1, n2 = Opt.n1, (0 if typ == "h0" else 2)
    setup_early(E, typ)
    if head:
        E.emit(srd_items(SRD_QKV, P_WQKV, 448 * 2688))
    b = SRD_GU[1]
    gu = [scmp("s_cmp_lt_u32", sW, 2), salu("s_cselect_b32", S(b), S(P_WG), S(P_WU)),
          salu("s_cselect_b32", S(b + 1), S(P_WG + 1), S(P_WU + 1)), salu("s_mov_b32", S(b + 2), 448 * 3584),
          salu("s_mov_b32", S(b + 3), 0x20000)]
    if not head:
        E.emit(gu)
    for it in load_group(0, typ, nox=True):
        E.emit(it)
    if head:
        E.emit(srd_items(SRD_GW, P_GW, 896))
        E.emit(dma_item(None, GW_BASE, vL16, SRD_GW, 0, "L0"))
        E.emit(gu)
    stamp(E, 3, 1)
    E.emit(srd_items(SRD_WO, P_WO, 448 * 896))
    for kb in range(1, 7):
        E.emit(salu("s_add_u32", sKX[kb], sKX[kb - 1], 128))
        E.emit(scmp("s_cmp_eq_u32", sKX[kb], 896))
        E.emit(salu("s_cselect_b32", sKX[kb], 0, sKX[kb]))
    E.emit(srd_items(SRD_WS, P_WS, WS_BYTES))
    E.emit(salu("s_lshl_b32", sT0, sRB, 7))
    E.emit(salu("s_add_u32", sT0, sT0, GEN_OFF))
    E.emit(valu("v_mov_b32", vGA, sT0))
    E.emit(buf_load(vTAG, vGA, SRD_WS, 0, 0, " sc1", tag="L0"))
    g1 = load_group(1, typ)
    for it in g1[:Opt.l1pre]:
        E.emit(it)
    stamp(E, 4, 1)
    for it in setup_late(typ):
        E.emit(it)
    stamp(E, 1)
    stamp(E, 6, 1)
    E.wait_tags("L0")
    E.emit(barrier())
    stamp(E, 2)
    stamp(E, 7, 1)
    for it in reads1(0, typ):
        E.emit(it)


def gen_p1(E, typ):
    head = typ != "glu"
    Opt.n1 = 3 if head else 4
    n1, n2 = Opt.n1, (0 if typ == "h0" else 2)
    fill = deque(setup_fill(typ))
    nfill0 = len(fill)
    pend = deque(load_group(1, typ)[Opt.l1pre:] + load_group(2, typ))
    HWK, HWV, HXF = V(192, 4), V(196, 4), A(248, 4)
    for s in range(28):
        kb, e = divmod(s, 4)
        slot = kb % 3
        buf = s & 1
        ms = []
        for n in range(n1):
            for t in range(2):
                c = 0 if s == 0 else acc1(n, t)
                if head and n == 2:
                    ms.append(mfma(acc1(n, t), xfrag(s, t), wf1(buf, n), c))
                else:
                    ms.append(mfma(acc1(n, t), wf1(buf, n), xfrag(s, t), c))
        must = []
        pre = None
        hold = 0
        if head and e == 2:
            ms.append(mfma(V(96, 16), HWK, HXF, 0 if kb == 0 else V(96, 16)))
            ms.append(mfma(V(112, 16), HXF, HWV, 0 if kb == 0 else V(112, 16)))
        nxt = reads1(s + 1, typ) if s < 27 else (reads2(0, 0) if n2 else [])
        if e == 3:
            tagn = f"L{kb + 1}" if kb < 6 else "W2a"
            hold = 2

            def pre_fn(tagn=tagn):
                E._wait(None, 0)
                E.wait_tags(tagn)
                E.emit(barrier())
            pre = [pre_fn]
            if kb + 3 <= 6:
                pend.extend(load_group(kb + 3, typ))
            elif kb == 4 and n2:
                pend.extend(load_group2([0, 1, 2, 3], "W2a", typ))
            elif kb == 5 and n2:
                pend.extend(load_group2([4, 5, 6], "W2b", typ))
        must += nxt
        if head and e == 0:
            must.append(ds_read(128, HXF, vHXR, slot * 4096))
            for n, f in ((1, HWK), (2, HWV)):
                o = slot * WR_SLOT_H + n * 64
                must.append(ds_read(64, V(f[1], 2), vWH, o, tr=True))
                must.append(ds_read(64, V(f[1] + 2, 2), vWH, o + 768, tr=True))
        if s == 19:
            assert len(fill) <= (24 if typ == "h0" else 0), len(fill)
        if s == Opt.pfw and s:
            assert len(fill) <= nfill0 - 20
        if Opt.pfw > 0 and s >= Opt.pfw and (s - Opt.pfw) % Opt.pfstep == 0 and (s - Opt.pfw) // Opt.pfstep < 5:
            k = (s - Opt.pfw) // Opt.pfstep
            if k < 4:
                must.append(buf_load(vPFD, vPW[0], SRD_WD, 0, 0, Opt.ldpf) if k == 0 else
                            [salu("s_mov_b32", sSO2, k * 3200), buf_load(vPFD, vPW[0], SRD_WD, sSO2, 0, Opt.ldpf)])
            else:
                must.append(buf_load(vPFD, vPW[1], SRD_WO, 0, 0, Opt.ldpf))
        steps_left = 4 if e == 3 else 3 - e
        ndma = math.ceil(len(pend) / steps_left)
        dm = [pend.popleft() for _ in range(ndma)]
        weave(E, ms, must, fill, hold=hold, pre=pre, dmas=dm, must_per_gap=Opt.rpg)
    assert not pend and not fill
    stamp(E, 3)
    st = {"q": 0, "done": None, "vfree": 0, "wr": not head}
    if head:
        its, tail = head_epi(typ, lambda: st.__setitem__("wr", True))
        fill.extend(its)
        fill.extend(p2_setup())
        fill.extend(tail())
        fill.append(lambda: st.__setitem__("vfree", NV))
    else:
        fill.extend(p2_setup())
        for n in (2, 3, 0, 1):
            for t in range(2):
                fill.extend(glu_epi(acc1(n, t), (n * 2 + t) * 1024, "e1"))
                if n >= 2:
                    fill.append(lambda: st.__setitem__("vfree", st["vfree"] + 2))
    fill.append(lambda: st.__setitem__("done", st["q"]))
    if n2 == 0:
        k = nb = 0
        while fill:
            put(E, fill.popleft())
            k += 1
            if k % Opt.h0sp == 0 and nb < 13 - Opt.h0b:
                E.emit(b_dma(nb, typ))
                nb += 1
        stamp(E, 4)
        for p in range(nb, min(13, nb + Opt.h0b)):
            E.emit(b_dma(p, typ))
        nb = min(13, nb + Opt.h0b)
        its = flag_set(0, ("e1",))
        its[1] = set_exec(3)
        E.emit(its)
        for p in range(nb, 13):
            E.emit(b_dma(p, typ))
        for it in b_reads(0, typ):
            E.emit(it)
        for p in range(NR):
            if p + 1 < NR:
                for it in b_reads(p + 1, typ):
                    E.emit(it)
            E.emit(b_dma(p + 13, typ, need=(f"R{p}",)))
            if p == NR - 8:
                E.emit(poll())
            if p == NR - 4 and not Opt.late0:
                check(E, typ, 0)
        stamp(E, 5)
        stamp(E, 1, 2)
        return 30
    nb = 0
    flagged = False
    iss = {}
    park = 0
    pend2 = None
    x1 = 28
    for q in range(56):
        st["q"] = q
        n, s = divmod(q, 28)
        ms = [mfma(acc2(n, t), wf2(s & 1, 0), xfrag(s, t), 0 if s == 0 else acc2(n, t)) for t in range(2)]
        must = reads2(*divmod(q + 1, 28)) if q < 55 else []
        hold, pre = 0, None
        dm = []
        if q == 15 or q == 28 + 15:
            hold = 1

            def pre_fn(q=q):
                E._wait(None, 0)
                if q == 15:
                    E.wait_tags("W2b")
                E.emit(barrier())
            pre = [pre_fn]
        if q == 28:
            for t in range(2):
                fill.extend(glu_epi(acc2(0, t), (sP2O, t * 1024), "e2"))
        done = st["done"]
        if done is not None and not flagged and q >= done + Opt.f1d:
            dm.append(flag_set(0, ("e1",)))
            flagged = True
        if q >= Opt.b0 and q % Opt.bsp == 0:
            if pend2 is not None:
                if pend2 + 11 < 28:
                    dm.extend(b_dma(pend2 + 11, typ, need=(f"R{pend2}",)))
                    iss[pend2 + 11] = q
                    nb = pend2 + 12
                pend2 = None
            elif nb < (11 if st["wr"] else 5):
                dm.extend(b_dma(nb, typ))
                iss[nb] = q
                nb += 1
            elif q > 28 + 15 and x1 < 32:
                dm.extend(b_dma(x1, typ))
                x1 += 1
            p = park
            ok = (p < st["vfree"]) if p < NV else (n == 1 and p - NV < s)
            if p < NR and ok and p in iss and q >= iss[p] + Opt.plat and (p + 11 >= 28 or nb >= p + 11):
                must += b_reads(p, typ)
                pend2 = p
                park += 1
        if q == Opt.epoll and not Opt.late0:
            dm.append(poll())
        bud = (Opt.budget2h if head else Opt.budget2) if done is None else Opt.budget
        weave(E, ms, must, fill, hold=hold, pre=pre, budget=bud, dmas=dm)
    st["park"], st["x1"], st["pend2"] = park, x1, pend2
    stamp(E, 4)
    while fill:
        put(E, fill.popleft())
    assert flagged
    if not Opt.late0:
        check(E, typ, 0)
    epi = [glu_epi(acc2(1, t), (sP2O, (2 + t) * 1024), "e2") for t in range(2)]
    for k in range(max(len(x) for x in epi)):
        if k == Opt.poll0 and Opt.late0:
            E.emit(poll())
        for ep in epi:
            if k < len(ep):
                E.emit(ep[k])
    stamp(E, 5)
    stamp(E, 1, 2)
    return dict(park=st.get("park", 0), nb=nb, x1=st.get("x1", 28), pend2=st.get("pend2"))


def diag_store(E, nst):
    if Opt.dbgclk:
        lab = f"L_dbg{len(E.out)}"
        E.raw(f"""    s_memtime s[90:91]
    s_memrealtime s[92:93]
    s_waitcnt lgkmcnt(0)
    s_cmp_lt_u32 s2, 8
    s_cbranch_scc0 {lab}
    s_cmp_eq_u32 s60, 0
    s_cbranch_scc0 {lab}
    s_mov_b32 s28, s22
    s_mov_b32 s29, s23
    s_mov_b32 s30, 256
    s_mov_b32 s31, 0x20000
    s_sub_u32 s90, s90, s86
    s_sub_u32 s92, s92, s88
    s_lshl_b32 s64, s2, 3
    v_mov_b32 v1, s64
    v_mov_b32 v2, s90
    v_mov_b32 v3, s92
    s_mov_b64 exec, 1
    s_nop 4
    buffer_store_dwordx2 v[2:3], v1, s[28:31], 0 offen
{lab}:""")
        return
    if not Opt.diag:
        return
    E.emit(I("s_waitcnt lgkmcnt(0)", kind="wait"))
    E.lg = []
    E.emit(salu("s_lshl_b32", sT0, sWG, 2))
    E.emit(salu("s_add_u32", sT0, sT0, sW))
    E.emit(salu("s_lshl_b32", sT0, sT0, 6))
    E.emit(salu("s_add_u32", sT0, sT0, DIAG_OFF))
    E.emit(valu("v_mov_b32", V(1), sT0))
    for i in range(nst):
        E.emit(valu("v_mov_b32", V(2), S(sDIAG + 2 * i)))
        E.emit(buf_store(V(2), V(1), SRD_WS, 0, 4 * i))
        E.nop(2)


def check(E, lab, ph):
    mask = PHMASK[ph]
    E.emit(valu("v_cmp_eq_u64", "vcc", vTAG, vFD))
    E.emit(I(f"s_and_b32 {rs(sT5)}, vcc_lo, 0x{mask:x}", regset("vcc"), regset(sT5), "salu"))
    E.emit(scmp("s_cmp_eq_u32", sT5, mask))
    E.emit(branch("s_cbranch_scc1", f"L_fl_ok_{lab}_{ph}"))
    E.label(f"L_fl_loop_{lab}_{ph}")
    E.raw("    s_sleep 2")
    E.raw(f"    buffer_load_dwordx2 {rs(vFD)}, {rs(vFP)}, {rs(SRD_WS)}, 0 offen sc1")
    E.raw("    s_waitcnt vmcnt(0)")
    E.raw(f"    v_cmp_eq_u64 vcc, {rs(vTAG)}, {rs(vFD)}")
    E.raw(f"    s_add_u32 {rs(sSPIN)}, {rs(sSPIN)}, 1")
    E.raw(f"    s_cmp_gt_u32 {rs(sSPIN)}, {Opt.spin}")
    E.raw(f"    s_cbranch_scc1 L_fl_ok_{lab}_{ph}")
    E.raw(f"    s_and_b32 {rs(sT5)}, vcc_lo, 0x{mask:x}")
    E.raw(f"    s_cmp_eq_u32 {rs(sT5)}, 0x{mask:x}")
    E.raw(f"    s_cbranch_scc0 L_fl_loop_{lab}_{ph}")
    E.label(f"L_fl_ok_{lab}_{ph}")

    if Opt.pfa:
        E.emit(buf_load(vPFD, vPA[ph], SRD_WS, 0, 0, " sc1"))


def gen_p2(E, typ, bst):
    head = typ != "glu"
    ACCH, ACCO = 0, 64
    t = [V(208 + i) for i in range(4)]
    fl = Opt.ld2
    D = Opt.D
    RA = (256 - 8 * (NR - NV)) // 8
    lab = typ

    def publish_last():
        return flag_set(1, ("e2",))

    if not head:
        E.emit(scmp("s_cmp_eq_u32", sJ, 3))
        E.emit(branch("s_cbranch_scc0", "L_p2_go"))
        sv = (list(E.vm), list(E.lg), list(E.hist))
        E.emit(publish_last())
        diag_store(E, 8)
        E.emit(I("s_endpgm", kind="branch"))
        E.label("L_p2_go")
        E.vm, E.lg, E.hist = sv

    def areg(i):
        return A(8 * (NR - NV) + (i % RA) * 8, 8)

    def a_loads(i):
        f, r, _ = areg(i)
        so = (i * 2048) & ~4095
        io = (i * 2048) & 4095
        its = []
        if so:
            its.append(salu("s_mov_b32", sSO2, so))
        sof = sSO2 if so else 0
        its.append(buf_load((f, r, 4), vA, SRD_WS, sof, io, fl))
        its.append(buf_load((f, r + 4, 4), vA, SRD_WS, sof, io + 1024, fl))
        return its

    published = [typ == "h0"]
    nxt = {"a": 0}

    def phase(ph):
        check(E, lab, ph)
        stamp(E, 3 + ph, 2)
        if ph == 1:
            E.emit(buf_load(vG0, vGAD, SRD_WS, 0, 0, " sc1"))
            E.emit(buf_load(vG1, vGAD, SRD_WS, 0, 256, " sc1"))

    chk = [0, PHSTART[1] - Opt.lead1, PHSTART[2] - Opt.lead2]

    def issue_a(upto):
        while nxt["a"] < min(upto, 36):
            i = nxt["a"]
            if i in chk[1:]:
                phase(chk.index(i))
            E.emit(a_loads(i))
            nxt["a"] += 1
            if i + Opt.pollahead in chk[1:]:
                E.emit(poll())
            if not published[0] and i >= Opt.pubat:
                E.emit(publish_last())
                published[0] = True

    stamp(E, 2, 2)
    if Opt.late0:
        check(E, lab, 0)
    stamp(E, 3, 2)
    issue_a(Opt.afirst)
    if typ == "h0":
        E.emit(barrier())
        for p in range(30, 36):
            E.emit(b_dma(p, typ))
    else:
        park, nb, x1 = bst["park"], bst["nb"], bst["x1"]
        if bst["pend2"] is not None and bst["pend2"] + 11 < 28:
            E.emit(b_dma(bst["pend2"] + 11, typ, need=(f"R{bst['pend2']}",)))
            nb = bst["pend2"] + 12
        while nb < 11:
            E.emit(b_dma(nb, typ))
            nb += 1
        for p in range(park, NR):
            for it in b_reads(p, typ):
                E.emit(it)
            if p + 11 < 28:
                E.emit(b_dma(p + 11, typ, need=(f"R{p}",)))
        E.emit(barrier())
        for p in range(x1, 36):
            E.emit(b_dma(p, typ))
    assert D < RA
    issue_a(D)
    stamp(E, 6)
    seen = set()
    gsc = deque([valu("v_sub_f32", t[0], 1.0, vG0), valu("v_sub_f32", t[1], 1.0, vG1)])
    for tt in range(2):
        for r in range(32):
            gsc.append(valu("v_mul_f32", V(ACCO + tt * 32 + r), V(ACCO + tt * 32 + r), vG0 if tt == 0 else vG1))
    for i in range(36):
        f, r, _ = areg(i)
        bf, o = breg(i)
        if i in (20, 30):
            stamp(E, {20: 6, 30: 7}[i], 2)
        base = ACCO if chunk(i)[0] == "o" else ACCH
        k = 0
        for tt in range(2):
            for c in range(2):
                d = V(base + (tt * 2 + c) * 16, 16)
                first = (base, tt, c) not in seen
                seen.add((base, tt, c))
                E.emit(mfma(d, (bf, o + 4 * c, 4), (f, r + 4 * tt, 4), 0 if first else d))
                if k == 0 and NR <= i + 1 < 36:
                    for it in b_reads(i + 1, typ):
                        E.emit(it)
                if k >= 2 and i >= 25:
                    for _ in range(4):
                        if gsc:
                            E.emit(gsc.popleft())
                if k == 1:
                    issue_a(i + D + 1)
                k += 1
    assert published[0]
    stamp(E, 7)
    while gsc:
        E.emit(gsc.popleft())
    E.emit(barrier())
    sv = (list(E.vm), list(E.lg), list(E.hist))
    for w in range(4):
        E.vm, E.lg, E.hist = list(sv[0]), list(sv[1]), list(sv[2])
        if w:
            E.label(f"L_red_{lab}_{w}")
        if w < 3:
            E.emit(scmp("s_cmp_eq_u32", sW, w))
            E.emit(branch("s_cbranch_scc0", f"L_red_{lab}_{w + 1}"))
        for q in [(w + 1) % 4, (w + 2) % 4, (w + 3) % 4, w]:
            for r in range(16):
                E.emit(valu("v_fmac_f32", V(ACCO + q * 16 + r), V(ACCH + q * 16 + r), t[q >> 1]))
            if q != w:
                for k in range(4):
                    E.emit(ds_write(128, vRW, V(ACCO + q * 16 + 4 * k, 4), q * 16384 + k * 1024, tag="red"))
        E.emit(barrier(need=("red",)))
        srcs = [x for x in range(4) if x != w]
        for n_, src in enumerate(srcs):
            for k in range(4):
                E.emit(ds_read(128, V(ACCH + n_ * 16 + 4 * k, 4), vRR, src * 4096 + k * 1024))
        own = ACCO + w * 16
        for n_ in range(3):
            for r in range(16):
                E.emit(valu("v_add_f32", V(own + r), V(own + r), V(ACCH + n_ * 16 + r)))
        for it in pack_inplace(own, own, 8):
            E.emit(it)
        E.emit(buf_store(V(own, 4), vO, SRD_OUT, 0, 0, Opt.sto))
        E.emit(buf_store(V(own + 4, 4), vO, SRD_OUT, 0, 16, Opt.sto))
        if w == 0 and not head:
            E.emit(salu("s_or_b32", sT1, sCQ, sJ))
            E.emit(scmp("s_cmp_eq_u32", sT1, 0))
            E.emit(branch("s_cbranch_scc0", f"L_fin_{lab}"))
            E.emit([set_exec(1), buf_store(vTAG, vGA, SRD_WS, 0, 0, " sc1"), set_exec(-1)])
        if w < 3:
            E.emit(branch("s_branch", f"L_fin_{lab}"))
    E.label(f"L_fin_{lab}")
    if Opt.diag and Opt.sset == 0:
        E.emit(I(f"s_memtime s[{sDIAG + 2}:{sDIAG + 3}]", (), (), "smem"))


KD = """.section .rodata,"a"
.p2align 6
.amdhsa_kernel {name}
  .amdhsa_next_free_vgpr 512
  .amdhsa_next_free_sgpr 102
  .amdhsa_accum_offset 256
  .amdhsa_group_segment_fixed_size 0
  .amdhsa_kernarg_size 88
  .amdhsa_user_sgpr_count 2
  .amdhsa_user_sgpr_kernarg_segment_ptr 1
  .amdhsa_system_sgpr_workgroup_id_x 1
.end_amdhsa_kernel
"""


def header(launches):
    h = open(f"cdna_kernels/{NAME}.s.ref").read().split("\n")
    out = []
    for l in h:
        if l.startswith("; @launch") or l.startswith("; Override") or l.startswith("; grid=ceil"):
            continue
        if not l.startswith(";"):
            break
        out.append(l)
    out += launches
    out.append('.amdgcn_target "amdgcn-amd-amdhsa--gfx950"')
    out.append(".text")
    return "\n".join(out) + "\n"


def gen():
    kn = NAME + "_kernel"
    txt = header([f"; @launch grid=(256,1,1) block=(256,1,1) lds={LDS_BYTES}"])
    E = Emitter()
    common_prologue(E)
    E.emit(scmp("s_cmp_lt_u32", sJ, 4))
    E.emit(branch("s_cbranch_scc1", "L_early_glu"))
    st = (list(E.vm), list(E.lg), list(E.hist))
    gen_early(E, "h0")
    E.emit(I(f"s_bitcmp1_b32 {rs(sT3)}, {rs(sHD)}", regset(sT3, sHD), (), "salu"))
    E.emit(branch("s_cbranch_scc1", "L_h2"))
    E.emit(branch("s_branch", "L_h0"))
    st_h = (list(E.vm), list(E.lg), list(E.hist))
    E.label("L_early_glu")
    E.vm, E.lg, E.hist = list(st[0]), list(st[1]), list(st[2])
    gen_early(E, "glu")
    st_g = (list(E.vm), list(E.lg), list(E.hist))
    for typ in ("glu", "h2", "h0"):
        if typ != "glu":
            E.label(f"L_{typ}")
        sv = st_g if typ == "glu" else st_h
        E.vm, E.lg, E.hist = list(sv[0]), list(sv[1]), list(sv[2])
        npre = gen_p1(E, typ)
        gen_p2(E, typ, npre)
        diag_store(E, 8)
        if typ != "h0":
            E.emit(I("s_endpgm", kind="branch"))
    E.label("L_end")
    E.emit(I("s_endpgm", kind="branch"))
    E.label("L_codeend")
    txt += f".globl {kn}\n.p2align 8\n.type {kn},@function\n{kn}:\n" + E.text()
    txt += ".fill 64, 4, 0xBF800000\n"
    txt += KD.format(name=kn)
    sys.stderr.write(f"nops: {E.nops}\n")
    return txt


if __name__ == "__main__":
    ap = argparse.ArgumentParser()
    ap.add_argument("--diag", action="store_true")
    ap.add_argument("--sset", type=int, default=0)
    ap.add_argument("--budget", type=int, default=5)
    ap.add_argument("--norot", action="store_true")
    ap.add_argument("--rpg", type=int, default=2)
    ap.add_argument("--ld1", default="")
    ap.add_argument("--st1", default="sc1")
    ap.add_argument("--ld2", default="sc1")
    ap.add_argument("--ldb", default="")
    ap.add_argument("--npre", type=int, default=99)
    ap.add_argument("--D", type=int, default=8)
    ap.add_argument("--epoll", type=int, default=50)
    ap.add_argument("--late0", type=int, default=1)
    ap.add_argument("--lead1", type=int, default=0)
    ap.add_argument("--lead2", type=int, default=0)
    ap.add_argument("--bfirst", type=int, default=4)
    ap.add_argument("--pollahead", type=int, default=4)
    ap.add_argument("--pubat", type=int, default=6)
    ap.add_argument("--poll0", type=int, default=8)
    ap.add_argument("--pfw", type=int, default=7)
    ap.add_argument("--pfstep", type=int, default=4)
    ap.add_argument("--c1", type=int, default=0)
    ap.add_argument("--c2", type=int, default=16)
    ap.add_argument("--astep", type=int, default=2)
    ap.add_argument("--h0b", type=int, default=3)
    ap.add_argument("--kpf", type=int, default=0)
    ap.add_argument("--bsp", type=int, default=1)
    ap.add_argument("--b0", type=int, default=4)
    ap.add_argument("--h0sp", type=int, default=40)
    ap.add_argument("--l1pre", type=int, default=7)
    ap.add_argument("--plat", type=int, default=8)
    ap.add_argument("--afirst", type=int, default=4)
    ap.add_argument("--sto", default="")
    ap.add_argument("--dbgclk", action="store_true")
    ap.add_argument("--ldk", default="")
    ap.add_argument("--bstep", type=int, default=1)
    ap.add_argument("--f1d", type=int, default=16)
    ap.add_argument("--f1dh", type=int, default=12)
    ap.add_argument("--budget2h", type=int, default=16)
    ap.add_argument("--noa", action="store_true")
    ap.add_argument("--fakeh", action="store_true")
    ap.add_argument("--nob", action="store_true")
    ap.add_argument("--pfa", type=int, default=0)
    ap.add_argument("--lead", type=int, default=4)
    ap.add_argument("--budget2", type=int, default=18)
    ap.add_argument("--ldpf", default="")
    ap.add_argument("--f1u", type=int, default=7)
    ap.add_argument("--spin", type=int, default=20000)
    ap.add_argument("-o", default=f"cdna_kernels/{NAME}.s")
    args = ap.parse_args()
    for k, v in vars(args).items():
        setattr(Opt, k, v)
    Opt.rot = not args.norot
    fx = lambda x: (" " + x.replace("+", " ")) if x else ""
    Opt.ld1, Opt.st1, Opt.ld2, Opt.ldb = fx(args.ld1), fx(args.st1), fx(args.ld2), fx(args.ldb)
    Opt.ldpf = fx(args.ldpf)
    Opt.ldk = fx(args.ldk)
    Opt.sto = fx(args.sto)
    for p in range(768):
        assert (p * 43691) >> 19 == p // 12
    open(args.o, "w").write(gen())
```

```python
import sys, math, argparse
from collections import deque
from emit import *

NAME = "gated_mix__sliding_local_dilated__glu_gated_glu__prompt"

A2_OFF = 0x0
G_OFF = 0xC00000
FLAG_OFF = 0xD00000
GEN_OFF = FLAG_OFF + 0x4000
DIAG_OFF = 0xE00000
WS_BYTES = 0x1000000

XW = 24576
WR_BASE = 98304
WR_SLOT_H = 12544
WR_SLOT_G = 16384
HX_BASE = WR_BASE + 3 * WR_SLOT_H
GW_BASE = HX_BASE + 3 * 4096
TOP_BASE = 149504
HP_BASE = WR_BASE
HS_BASE = WR_BASE + 4 * 6144
assert HS_BASE + 5 * 3072 <= GW_BASE
LDS_BYTES = 163840

LOG2E = 1.4426950408889634
CSC = (28 ** -0.5) * LOG2E
NEGBIG = -1.0e30

sWG = S(2)
P_X, P_WQKV, P_WO, P_BX, P_WG, P_WU, P_WD, P_GW, P_OUT, P_DBG, P_WS = [4 + 2 * i for i in range(11)]
SRD_X, SRD_QKV, SRD_GU, SRD_WO, SRD_GW, SRD_OUT, SRD_WS, SRD_DBG = [S(28 + 4 * i, 4) for i in range(8)]
SRD_WD = SRD_DBG
sW, sRB, sCQ, sJ = S(60), S(61), S(62), S(63)
sT0, sT1, sT2, sT3, sT4, sT5 = [S(64 + i) for i in range(6)]
sXB = S(70)
sWD = S(71)
sW2D = S(72)
sHXD = S(73)
sHD = S(74)
sU = S(77)
sSO = S(75)
sSO2 = S(76)
sC = S(83)
sGMASK = S(78, 2)
sLOMASK = S(80, 2)
sFIRST = S(0, 2)
sPC = S(84, 2)
sP2O = S(27)
sTOPB = S(26)
sWRB = S(3)
sSPIN = S(84)
sJC = S(85)
sDIAG = 86
sKX = [S(4 + i) for i in range(7)]

vL16 = V(224)
vXe, vXo = V(225), V(226)
vW = [V(227), V(228), V(229)]
vW2 = V(230)
vHX = V(231)
vXR = [V(232 + i) for i in range(4)]
vWR = V(236)
vWH = V(237)
vHXR = V(238)
vW2R = [[V(239), V(240)], [V(241), V(242)]]
vGW = V(243)
vWR4 = [V(236), V(237), V(238), V(243)]
vFL = V(244)
vBo, vBd = V(245), V(223)
vST = V(246)
vLANE = V(247)
vNEG = V(248)
vHP, vHPK, vHPV, vHSK, vHSV, vHSI = [V(249 + i) for i in range(6)]
vGWs = V(255)
vGA = V(222)
vTAG = V(220, 2)
TMP = 200


def pieces(i):
    if i < 4:
        return i * XW + 8192
    return (i - 4) * XW + 16384


class Opt:
    pass


def stamp(E, idx, sset=0):
    if Opt.diag and (sset == Opt.sset or sset < 0):
        E.emit(I(f"s_memtime s[{sDIAG + 2 * idx}:{sDIAG + 2 * idx + 1}]", (), (), "smem"))


def item_cost(it):
    if callable(it):
        return 0
    if isinstance(it, I):
        return it.cost
    return sum(x.cost for x in it)


def put(E, it):
    if callable(it):
        it()
    else:
        E.emit(it)


def weave(E, mfmas, must, fill, budget=None, hold=0, pre=None, dmas=(), must_per_gap=None):
    budget = budget or Opt.budget
    must = deque(must)
    dmas = list(dmas)
    n = len(mfmas)
    first = max(hold - 1, 0)
    slots = {}
    if dmas:
        ng = n - first
        for k, d in enumerate(dmas):
            g = first + min(ng - 1, int((k + 0.5) * ng / len(dmas)))
            slots.setdefault(g, []).append(d)
    for g, m in enumerate(mfmas):
        E.emit(m)
        if g + 1 == hold and pre is not None:
            for it in pre:
                put(E, it)
        b = budget
        if g + 1 >= hold:
            gaps_left = n - g
            tot = sum(item_cost(x) for x in must)
            quota = max(must_per_gap or budget, math.ceil(tot / gaps_left))
            while must and quota > 0:
                it = must.popleft()
                put(E, it)
                quota -= item_cost(it)
                b -= item_cost(it)
            for it in slots.get(g, ()):
                put(E, it)
                b -= item_cost(it)
        while fill and b >= item_cost(fill[0]) and b > 0:
            it = fill.popleft()
            put(E, it)
            b -= item_cost(it)
    while must:
        put(E, must.popleft())


def srd_items(srd, ptr, nbytes):
    b = srd[1]
    return [salu("s_mov_b32", S(b), S(ptr)), salu("s_mov_b32", S(b + 1), S(ptr + 1)),
            salu("s_mov_b32", S(b + 2), nbytes), salu("s_mov_b32", S(b + 3), 0x20000)]


def set_exec(val):
    if isinstance(val, int):
        return I(f"s_mov_b64 exec, {val}", (), regset("exec"), "salu")
    return I(f"s_mov_b64 exec, {rs(val)}", regset(val), regset("exec"), "salu")


def common_prologue(E):
    E.emit(scmp("s_cmp_ge_u32", sWG, 256))
    E.emit(branch("s_cbranch_scc1", "L_end"))
    stamp(E, 0, -1)
    if Opt.diag and Opt.sset == 3:
        E.raw("    s_memrealtime s[88:89]")
    if Opt.dbgclk:
        E.raw("    s_memtime s[86:87]\n    s_memrealtime s[88:89]")
    E.emit(I("s_load_dwordx16 s[4:19], s[0:1], 0x0", kind="smem"))
    E.emit(I("s_load_dwordx4 s[20:23], s[0:1], 0x40", kind="smem"))
    E.emit(I("s_load_dwordx2 s[24:25], s[0:1], 0x50", kind="smem"))
    E.emit(I("s_getpc_b64 s[84:85]", (), regset(sPC), "salu"))
    E.label("L_pc")
    E.emit(valu("v_and_b32", vLANE, 63, V(0)))
    E.emit(valu("v_lshrrev_b32", V(1), 6, V(0)))
    E.emit(salu("s_lshr_b32", sT0, sWG, 3))
    E.emit(readfirstlane(sW, V(1)))
    E.emit(salu("s_and_b32", sT1, sT0, 3))
    E.emit(valu("v_lshlrev_b32", V(2), 2, V(0)))
    E.emit(valu("v_add_u32", V(2), sT1, V(2)))
    E.emit(valu("v_lshlrev_b32", V(2), 7, V(2)))
    E.emit(valu("v_cmp_gt_u32", "vcc", "L_codeend-L_pc", V(2)))
    E.emit(I("s_and_saveexec_b64 s[66:67], vcc", regset("vcc"), regset(S(66, 2), "exec"), "salu"))
    E.emit(branch("s_cbranch_execz", "L_nopf"))
    E.emit(I("global_load_dword v3, v2, s[84:85]", regset(V(2), sPC), regset(V(3)), "vm_ld"))
    E.label("L_nopf")
    E.emit(set_exec(-1))
    E.vm = []
    E.emit(valu("v_lshlrev_b32", vL16, 4, vLANE))
    E.emit(salu("s_and_b32", sT1, sWG, 1))
    E.emit(salu("s_lshl_b32", sT1, sT1, 2))
    E.emit(salu("s_lshr_b32", sT2, sT0, 3))
    E.emit(salu("s_add_u32", sRB, sT1, sT2))
    E.emit(salu("s_and_b32", sT1, sWG, 7))
    E.emit(salu("s_lshr_b32", sCQ, sT1, 1))
    E.emit(salu("s_and_b32", sJ, sT0, 7))
    t = [V(TMP + i) for i in range(8)]
    r8, c8, ch = t[0], t[1], t[2]
    E.emit(valu("v_lshrrev_b32", r8, 3, vLANE))
    E.emit(valu("v_and_b32", c8, 7, vLANE))
    E.emit(valu("v_lshrrev_b32", ch, 1, r8))
    E.emit(valu("v_xor_b32", ch, ch, c8))
    E.emit(salu("s_lshl_b32", sT0, sRB, 8))
    E.emit(salu("s_lshl_b32", sT1, sW, 6))
    E.emit(salu("s_add_u32", sT0, sT0, sT1))
    E.emit(valu("v_add_u32", t[3], sT0, r8))
    E.emit(valu("v_mul_u32_u24", t[3], 896, t[3]))
    E.emit(valu("v_lshl_add_u32", vXe, ch, 4, t[3]))
    E.emit(valu("v_xor_b32", t[4], 4, ch))
    E.emit(valu("v_lshl_add_u32", vXo, t[4], 4, t[3]))
    E.emit(valu("v_add_u32", vXo, 8 * 896, vXo))
    E.emit(salu("s_mul_i32", sXB, sW, XW))
    if Opt.rot and Opt.rotm == 7:
        E.emit(salu("s_and_b32", sT5, sRB, 3))
        E.emit(salu("s_lshl_b32", sT5, sT5, 1))
        E.emit(salu("s_add_u32", sT5, sT5, sJ))
        E.emit(scmp("s_cmp_ge_u32", sT5, 7))
        E.emit(salu("s_cselect_b32", sT1, 7, 0))
        E.emit(salu("s_sub_u32", sT5, sT5, sT1))
    elif Opt.rot:
        E.emit(salu("s_add_u32", sT5, sRB, sJ))
        E.emit(salu("s_and_b32", sT5, sT5, Opt.rotm - 1))
        E.emit(salu("s_mul_i32", sT5, sT5, Opt.rots))
    else:
        E.emit(salu("s_mov_b32", sT5, 0))
    E.emit(salu("s_movk_i32", sT3, 0x55A3))
    E.emit(salu("s_lshl_b32", sHD, sCQ, 2))
    E.emit(salu("s_add_u32", sHD, sHD, sJ))
    E.emit(salu("s_sub_u32", sHD, sHD, 4))
    E.emit(I("s_waitcnt lgkmcnt(0)", kind="wait"))
    stamp(E, 1, 1)
    E.emit(srd_items(SRD_X, P_X, 2048 * 896))
    E.emit(salu("s_lshl_b32", sKX[0], sT5, 7))
    for it in x_group(0):
        E.emit(it)
    stamp(E, 2, 1)


def setup_early(E, typ):
    t = [V(TMP + i) for i in range(12)]
    r8, c8, ch = t[0], t[1], t[2]
    head = typ != "glu"
    E.emit(salu("s_mul_i32", sT4, sCQ, 896))
    if head:
        E.emit(salu("s_mul_i32", sT0, sW, 192))
        E.emit(salu("s_mul_i32", sT1, sHD, 56))
        for q in range(3):
            p, row, cx = t[5], t[6], t[7]
            E.emit(valu("v_add_u32", p, sT0, vLANE))
            if q:
                E.emit(valu("v_add_u32", p, 64 * q, p))
            E.emit(valu("v_mul_u32_u24", row, 43691, p))
            E.emit(valu("v_lshrrev_b32", row, 19, row))
            E.emit(valu("v_mul_u32_u24", cx, 12, row))
            E.emit(valu("v_sub_u32", cx, p, cx))
            E.emit(valu("v_mul_u32_u24", row, 2688, row))
            E.emit(valu("v_lshrrev_b32", p, 2, cx))
            E.emit(valu("v_mul_u32_u24", p, 896, p))
            E.emit(valu("v_add_u32", row, row, p))
            E.emit(valu("v_and_b32", cx, 3, cx))
            E.emit(valu("v_lshl_add_u32", row, cx, 4, row))
            E.emit(valu("v_add_u32", vW[q], sT1, row))
        E.emit(salu("s_mul_i32", sWD, sW, 3072))
        E.emit(salu("s_add_u32", sWD, sWD, WR_BASE))
        E.emit(salu("s_lshl_b32", sT0, sRB, 8))
        E.emit(salu("s_lshl_b32", sT1, sW, 3))
        E.emit(salu("s_add_u32", sT0, sT0, sT1))
        E.emit(salu("s_sub_u32", sT0, sT0, 32))
        E.emit(valu("v_add_u32", t[5], sT0, r8))
        E.emit(salu("s_movk_i32", sT2, 896))
        E.emit(valu("v_mul_lo_u32", t[5], t[5], sT2))
        E.emit(salu("s_and_b32", sT1, sW, 1))
        E.emit(salu("s_lshl_b32", sT1, sT1, 2))
        E.emit(valu("v_xor_b32", t[6], sT1, ch))
        E.emit(valu("v_lshl_add_u32", vHX, t[6], 4, t[5]))
        E.emit(salu("s_lshl_b32", sHXD, sW, 10))
        E.emit(salu("s_add_u32", sHXD, sHXD, HX_BASE))
        E.emit(salu("s_lshr_b32", sT1, 0x4482, sHD))
        E.emit(salu("s_and_b32", sU, sT1, 1))
        E.emit(salu("s_lshl_b32", sT1, sU, 6))
        E.emit(salu("s_add_u32", sT4, sT4, sT1))
        E.emit(salu("s_add_u32", sT4, sT4, 768))
    else:
        E.emit(salu("s_lshl_b32", sT1, sJ, 7))
        E.emit(salu("s_add_u32", sT1, sT4, sT1))
        E.emit(salu("s_and_b32", sT0, sW, 1))
        E.emit(salu("s_lshl_b32", sT0, sT0, 5))
        E.emit(valu("v_add_u32", t[5], sT0, r8))
        E.emit(valu("v_mul_u32_u24", t[5], 3584, t[5]))
        E.emit(valu("v_bfe_u32", t[6], vLANE, 4, 1))
        E.emit(valu("v_lshlrev_b32", t[6], 1, t[6]))
        E.emit(valu("v_xor_b32", t[6], t[6], c8))
        E.emit(salu("s_and_b32", sT0, sW, 2))
        E.emit(salu("s_lshl_b32", sT0, sT0, 1))
        E.emit(valu("v_xor_b32", t[6], sT0, t[6]))
        E.emit(valu("v_lshl_add_u32", t[5], t[6], 4, t[5]))
        E.emit(valu("v_add_u32", vW[0], sT1, t[5]))
        E.emit(salu("s_lshl_b32", sWD, sW, 12))
        E.emit(salu("s_add_u32", sWD, sWD, WR_BASE))
        E.emit(salu("s_lshl_b32", sT1, sJ, 6))
        E.emit(salu("s_add_u32", sT4, sT4, sT1))
        E.emit(salu("s_add_u32", sT4, sT4, 512))


SRD_PF = SRD_GW
vPF = V(212)
sPFS = S(82)
sPP = S(82)


def setup_kpf(E, typ):
    head = typ != "glu"
    t = [V(TMP + 8 + i) for i in range(4)]
    E.emit(salu("s_lshl_b32", sT0, sRB, 8))
    E.emit(salu("s_lshl_b32", sT1, sJ, 5))
    E.emit(salu("s_add_u32", sT0, sT0, sT1))
    E.emit(valu("v_and_b32", t[0], 31, vLANE))
    E.emit(valu("v_add_u32", t[0], sT0, t[0]))
    E.emit(valu("v_mul_u32_u24", t[0], 896, t[0]))
    pitch = 2688 if head else 3584
    E.emit(salu("s_and_b32", sT0, sRB, 3))
    E.emit(salu("s_lshl_b32", sT0, sT0, 4))
    E.emit(valu("v_bfe_u32", t[1], vLANE, 1, 4))
    E.emit(valu("v_add_u32", t[1], sT0, t[1]))
    E.emit(valu("v_mul_u32_u24", t[1], pitch, t[1]))
    E.emit(valu("v_and_b32", t[2], 1, vLANE))
    if head:
        E.emit(valu("v_mul_u32_u24", t[2], 60, t[2]))
        E.emit(salu("s_mul_i32", sT1, sHD, 56))
        E.emit(salu("s_mul_i32", sT0, sW, 896))
        E.emit(salu("s_add_u32", sT1, sT1, sT0))
        E.emit(salu("s_sub_u32", sT1, sT1, 896))
        E.emit(valu("v_add_u32", t[1], t[1], t[2]))
        E.emit(valu("v_add_u32", t[1], sT1, t[1]))
    else:
        E.emit(salu("s_mul_i32", sT1, sCQ, 896))
        E.emit(salu("s_lshl_b32", sT0, sJ, 7))
        E.emit(salu("s_add_u32", sT1, sT1, sT0))
        E.emit(salu("s_sub_u32", sT0, sT4, sT1))
        E.emit(valu("v_mul_lo_u32", t[2], t[2], sT0))
        E.emit(valu("v_add_u32", t[1], t[1], t[2]))
        E.emit(valu("v_add_u32", t[1], sT1, t[1]))
    E.emit(scmp("s_cmp_eq_u32", sW, 0))
    E.emit(I("s_cselect_b64 vcc, -1, 0", (), regset("vcc"), "salu"))
    E.emit(valu("v_cndmask_b32", vPF, t[1], t[0], "vcc"))
    E.emit(salu("s_mov_b32", sPFS, 64 * pitch))
    E.emit(salu("s_cselect_b32", sPFS, 128, sPFS))


def kpf(k):
    if k == 0:
        return [buf_load(vPFD, vPF, SRD_KPF, 0, 0, Opt.ldk)]
    return [salu("s_mul_i32", sSO, sPFS, k), buf_load(vPFD, vPF, SRD_KPF, sSO, 0, Opt.ldk)]


SRD_KPF = SRD_OUT


def setup_late(typ):
    head = typ != "glu"
    t = [V(TMP + i) for i in range(12)]
    r8, c8 = t[0], t[1]
    items = []
    e = items.append
    m, hf, sw, base = t[5], t[6], t[7], t[8]
    e(valu("v_and_b32", m, 31, vLANE))
    e(valu("v_lshrrev_b32", hf, 5, vLANE))
    e(valu("v_bfe_u32", sw, m, 1, 3))
    e(valu("v_lshlrev_b32", base, 7, m))
    e(valu("v_xor_b32", sw, sw, hf))
    for ee in range(4):
        e(valu("v_xor_b32", t[9], 2 * ee, sw))
        e(valu("v_lshl_add_u32", t[9], t[9], 4, base))
        e(valu("v_add_u32", vXR[ee], sXB, t[9]))
    if head:
        e(salu("s_lshl_b32", sT0, sW, 1))
        e(valu("v_xor_b32", t[9], sT0, sw))
        e(valu("v_lshl_add_u32", t[9], t[9], 4, base))
        e(valu("v_add_u32", vHXR, HX_BASE, t[9]))
    grp, r4, c4, krow = t[5], t[7], t[8], t[9]
    e(valu("v_bfe_u32", grp, vLANE, 4, 1))
    e(valu("v_bfe_u32", r4, vLANE, 2, 2))
    e(valu("v_and_b32", c4, 3, vLANE))
    e(valu("v_lshl_add_u32", krow, hf, 3, r4))
    if head:
        e(valu("v_mul_u32_u24", t[10], 192, krow))
        e(valu("v_lshl_add_u32", t[10], grp, 5, t[10]))
        e(valu("v_lshl_add_u32", t[10], c4, 3, t[10]))
        e(valu("v_add_u32", vWR, WR_BASE, t[10]))
        e(salu("s_mul_i32", sT0, sW, 3072))
        e(valu("v_add_u32", vWH, sT0, vWR))
        e(valu("v_lshlrev_b32", t[10], 4, hf))
        e(valu("v_add_u32", vGW, GW_BASE, t[10]))
        e(salu("s_mov_b32", S(sGMASK[1]), 1 << 28))
        e(salu("s_mov_b32", S(sGMASK[1] + 1), 1 << 28))
    else:
        e(valu("v_lshlrev_b32", t[10], 7, krow))
        e(valu("v_lshl_add_u32", t[10], grp, 13, t[10]))
        e(valu("v_lshl_add_u32", t[10], c4, 3, t[10]))
        e(valu("v_add_u32", t[10], WR_BASE, t[10]))
        e(valu("v_lshrrev_b32", t[11], 1, r4))
        e(valu("v_lshl_add_u32", t[11], grp, 1, t[11]))
        for n in range(4):
            e(valu("v_xor_b32", t[3], n, t[11]))
            e(valu("v_lshl_add_u32", vWR4[n], t[3], 5, t[10]))
    e(valu("v_lshlrev_b32", t[10], 6, krow))
    e(valu("v_lshl_add_u32", t[10], c4, 3, t[10]))
    e(valu("v_lshl_add_u32", t[10], grp, 12, t[10]))
    e(valu("v_lshl_add_u32", vW2R[0][0], grp, 5, t[10]))
    e(valu("v_xor_b32", t[11], 1, grp))
    e(valu("v_lshl_add_u32", vW2R[1][0], t[11], 5, t[10]))
    e(valu("v_add_u32", vW2R[0][1], 2 * XW, vW2R[0][0]))
    e(valu("v_add_u32", vW2R[1][1], 2 * XW, vW2R[1][0]))
    return items


def setup_fill(typ):
    head = typ != "glu"
    t = [V(TMP + i) for i in range(12)]
    r8, c8 = t[0], t[1]
    items = []
    e = items.append
    items += srd_items(SRD_WD, P_WD, 1792 * 896)
    e(salu("s_lshr_b32", sT0, sWG, 3))
    e(salu("s_and_b32", sT1, sWG, 7))
    e(salu("s_lshl_b32", sT1, sT1, 2))
    e(salu("s_add_u32", sT0, sT0, sT1))
    e(salu("s_and_b32", sT0, sT0, 31))
    e(salu("s_lshl_b32", sT0, sT0, 2))
    e(salu("s_add_u32", sT0, sT0, sW))
    e(valu("v_min_u32", t[6], 24, vLANE))
    e(valu("v_lshlrev_b32", t[6], 7, t[6]))
    e(salu("s_mul_i32", sT1, sT0, 98 * 128))
    e(valu("v_add_u32", vPW[0], sT1, t[6]))
    e(salu("s_mul_i32", sT1, sT0, 25 * 128))
    e(valu("v_add_u32", vPW[1], sT1, t[6]))
    e(salu("s_and_b32", sT0, sW, 1))
    e(salu("s_lshl_b32", sT0, sT0, 5))
    e(salu("s_and_b32", sT1, sW, 2))
    e(valu("v_lshrrev_b32", t[5], 2, vLANE))
    e(valu("v_add_u32", t[5], sT0, t[5]))
    e(valu("v_mul_u32_u24", t[5], 3584, t[5]))
    e(valu("v_and_b32", t[6], 3, vLANE))
    e(valu("v_xor_b32", t[6], sT1, t[6]))
    e(valu("v_lshl_add_u32", t[5], t[6], 4, t[5]))
    e(valu("v_add_u32", vW2, sT4, t[5]))
    e(salu("s_lshl_b32", sW2D, sW, 11))
    if not head:
        e(salu("s_lshl_b32", sP2O, sJ, 12))
        e(salu("s_sub_u32", sP2O, 24 * 2048, sP2O))
    else:
        e(salu("s_sub_u32", sP2O, sU, sJ))
        e(salu("s_lshl_b32", sP2O, sP2O, 12))
        e(salu("s_add_u32", sP2O, sP2O, 24 * 2048))
    e(salu("s_lshl_b32", sT0, sRB, 2))
    e(salu("s_add_u32", sT0, sT0, sW))
    e(salu("s_mul_i32", sT0, sT0, 144))
    e(salu("s_mul_i32", sT1, sCQ, 36))
    e(salu("s_add_u32", sT0, sT0, sT1))
    if head:
        e(salu("s_lshl_b32", sT1, sJ, 1))
        e(salu("s_add_u32", sT0, sT0, 8))
    else:
        e(salu("s_lshl_b32", sT1, sJ, 2))
    e(salu("s_add_u32", sT0, sT0, sT1))
    e(salu("s_lshl_b32", sT0, sT0, 11))
    e(valu("v_add_u32", vST, sT0, vL16))
    e(salu("s_lshl_b32", sT0, sRB, 2))
    e(salu("s_add_u32", sT0, sT0, sW))
    e(salu("s_lshl_b32", sT0, sT0, 2))
    e(salu("s_add_u32", sT0, sT0, sCQ))
    e(salu("s_lshl_b32", sT0, sT0, 4))
    e(salu("s_add_u32", sT0, sT0, sJ))
    e(salu("s_lshl_b32", sT0, sT0, 3))
    e(salu("s_add_u32", sT0, sT0, FLAG_OFF))
    e(valu("v_and_b32", t[5], 1, vLANE))
    e(valu("v_lshlrev_b32", t[5], 6, t[5]))
    e(valu("v_add_u32", vFL, sT0, t[5]))
    e([salu("s_mov_b32", sT0, 1664525), valu("v_mul_lo_u32", V(vTAG[1]), V(vTAG[1]), sT0)])
    e(valu("v_add_u32", V(vTAG[1]), 1013904223, V(vTAG[1])))
    e([salu("s_mov_b32", sT0, 22695477), valu("v_mul_lo_u32", V(vTAG[1] + 1), V(vTAG[1] + 1), sT0)])
    e(valu("v_add_u32", V(vTAG[1] + 1), 1, V(vTAG[1] + 1)))
    e([scmp("s_cmp_gt_u32", sJ, 3), salu("s_cselect_b32", sT0, 1, 0), salu("s_sub_u32", sJC, sJ, sT0)])
    e(valu("v_bfe_u32", t[5], vLANE, 4, 1))
    e(valu("v_lshlrev_b32", t[5], 2, t[5]))
    e(valu("v_xor_b32", t[5], t[5], c8))
    e(valu("v_mul_u32_u24", t[6], 896, r8))
    e(valu("v_lshl_add_u32", t[6], t[5], 4, t[6]))
    e(salu("s_lshl_b32", sT0, sJC, 7))
    e(salu("s_mul_i32", sT1, sW, 112 * 896))
    e(salu("s_add_u32", sT1, sT1, sT0))
    e(valu("v_add_u32", vBo, sT1, t[6]))
    e(salu("s_mul_i32", sT1, sW, 448 * 896))
    e(salu("s_add_u32", sT1, sT1, sT0))
    e(valu("v_add_u32", vBd, sT1, t[6]))
    e(salu("s_lshl_b32", sT0, sRB, 2))
    e(salu("s_add_u32", sT0, sT0, sCQ))
    e(salu("s_lshl_b32", sT0, sT0, 2))
    e(salu("s_add_u32", sT0, sT0, sW))
    e(salu("s_lshl_b32", sT0, sT0, 7))
    e(salu("s_add_u32", sT0, sT0, FLAG_OFF))
    e(valu("v_and_b32", t[5], 15, vLANE))
    e(valu("v_lshlrev_b32", t[5], 3, t[5]))
    e(valu("v_add_u32", vFP, sT0, t[5]))
    e(salu("s_lshl_b32", sT0, sRB, 2))
    e(salu("s_add_u32", sT0, sT0, sCQ))
    e(salu("s_mul_i32", sT0, sT0, 144))
    e(salu("s_mul_i32", sT1, sW, 36))
    e(salu("s_add_u32", sT0, sT0, sT1))
    e(salu("s_lshl_b32", sT0, sT0, 11))
    e(salu("s_mul_i32", sT1, sJC, 37))
    e(valu("v_min_u32", t[5], 36, vLANE))
    e(valu("v_add_u32", t[5], sT1, t[5]))
    e(valu("v_min_u32", t[5], 255, t[5]))
    e(valu("v_lshlrev_b32", t[5], 7, t[5]))
    e(valu("v_add_u32", vPAe, sT0, t[5]))
    e(salu("s_mul_i32", sTOPB, sW, 3584))
    e(salu("s_add_u32", sTOPB, sTOPB, TOP_BASE))
    e(salu("s_mul_i32", sWRB, sW, 12288))
    e(salu("s_add_u32", sWRB, sWRB, WR_BASE))
    items += srd_items(SRD_OUT, P_OUT, 2048 * 896)
    if head:
        e(valu("v_mov_b32", vNEG, NEGBIG))
        e(salu("s_mov_b32", sC, CSC))
        e(salu("s_mov_b32", S(sLOMASK[1]), -1))
        e(salu("s_mov_b32", S(sLOMASK[1] + 1), 0))
        e(salu("s_or_b32", sT0, sRB, sW))
        e([scmp("s_cmp_eq_u32", sT0, 0), salu("s_cselect_b32", S(sFIRST[1]), 0, -1),
           salu("s_cselect_b32", S(sFIRST[1] + 1), 0, -1)])
        e(salu("s_mul_i32", sT0, sW, 6144))
        e(salu("s_add_u32", sT0, sT0, HP_BASE))
        e(valu("v_add_u32", vHP, sT0, vL16))
        e(salu("s_lshl_b32", sT0, sW, 10))
        e(salu("s_add_u32", sT0, sT0, HP_BASE))
        e(valu("v_add_u32", vHPK, sT0, vL16))
        e(salu("s_lshr_b32", sT0, sW, 1))
        e(salu("s_lshl_b32", sT0, sT0, 10))
        e(salu("s_and_b32", sT1, sW, 1))
        e(salu("s_lshl_b32", sT1, sT1, 3))
        e(salu("s_add_u32", sT0, sT0, sT1))
        e(salu("s_add_u32", sT1, sT0, HP_BASE + 4096))
        e(valu("v_add_u32", vHPV, sT1, vL16))
        e(salu("s_add_u32", sT1, sT0, HS_BASE))
        e(valu("v_add_u32", vHSK, sT1, vL16))
        e(salu("s_lshl_b32", sT1, sW, 2))
        e(salu("s_add_u32", sT1, sT1, HS_BASE + 2048))
        e(valu("v_add_u32", vHSV, sT1, vL16))
        e(salu("s_mul_i32", sT1, sW, 3072))
        e(salu("s_add_u32", sT1, sT1, HS_BASE))
        e(valu("v_add_u32", vHSI, sT1, vL16))
        if typ == "h0":
            items += mask_items(128)
    return items


def mask_items(M):
    its = []
    for r in range(24):
        if r < 16:
            fn = lambda l, r=r: ((l & 31) - ((r & 3) + 8 * (r >> 2) + 4 * (l >> 5))) in range(0, 16, 2)
        else:
            fn = lambda l, r=r - 8: ((l & 31) - ((r & 3) + 8 * (r >> 2) + 4 * (l >> 5)) + 32) in range(0, 16, 2)
        mk = lane_mask(fn) ^ ((1 << 64) - 1)
        its.append([I(f"s_mov_b32 vcc_lo, 0x{mk & 0xffffffff:x}", (), regset("vcc"), "salu"),
                    I(f"s_mov_b32 vcc_hi, 0x{mk >> 32:x}", (), regset("vcc"), "salu"),
                    valu("v_cndmask_b32", V(M + r), 0, vNEG, "vcc")])
    return its


def dma_item(m0_base, m0_off, voff, srd, soff, tag, fl=None):
    fl = Opt.ld1 if fl is None else fl
    it = [salu("s_add_u32", "m0", m0_base, m0_off) if m0_base is not None else salu("s_mov_b32", "m0", m0_off)]
    if isinstance(soff, tuple):
        sreg, mul, add = soff
        if mul != 1:
            it.append(salu("s_mul_i32", sSO, sreg, mul))
            if add:
                it.append(salu("s_add_u32", sSO, sSO, add))
            it.append(dma(voff, srd, sSO, tag, fl))
        elif add:
            it.append(salu("s_add_u32", sSO, sreg, add))
            it.append(dma(voff, srd, sSO, tag, fl))
        else:
            it.append(dma(voff, srd, sreg, tag, fl))
    elif soff:
        it.append(salu("s_mov_b32", sSO, soff))
        it.append(dma(voff, srd, sSO, tag, fl))
    else:
        it.append(dma(voff, srd, 0, tag, fl))
    return it


def x_group(kb):
    slot = kb % 3
    return [dma_item(sXB, slot * 8192 + i * 1024, vXo if i & 1 else vXe, SRD_X, (sKX[kb], 1, (i >> 1) * 14336), f"L{kb}") for i in range(8)]


def load_group(kb, typ, nox=False):
    head = typ != "glu"
    slot = kb % 3
    tag = f"L{kb}"
    xs = [] if nox else x_group(kb)
    if head:
        ws = [dma_item(sWD, slot * WR_SLOT_H + q * 1024, vW[q], SRD_QKV, (sKX[kb], 1344, 0), tag) for q in range(3)]
        ws.append(dma_item(sHXD, slot * 4096, vHX, SRD_X, (sKX[kb], 1, 0), tag))
    else:
        ws = [dma_item(sWD, slot * WR_SLOT_G + q * 1024, vW[0], SRD_GU, (sKX[kb], 1792, q * 8 * 3584), tag) for q in range(4)]
    its = []
    for q in range(4):
        its += [ws[q]] + xs[2 * q:2 * q + 2]
    return its


def load_group2(kbs, tag, typ):
    its = []
    for kb2 in kbs:
        for q in range(2):
            its.append(dma_item(sW2D, pieces(kb2) + q * 1024, vW2, SRD_GU, (sKX[kb2], 1792, 16 * q * 3584), tag))
    return its


def xfrag(s, t):
    return A((s * 2 + t) * 4, 4)


def wf1(buf, n):
    return A(224 + buf * (12 if Opt.n1 == 3 else 16) + n * 4, 4)


def wf2(buf, n):
    return A(224 + buf * 4, 4)


def acc1(n, t):
    return V((n * 2 + t) * 16, 16)


def acc2(n, t):
    return V(128 + (n * 2 + t) * 16, 16)


def reads1(s, typ):
    head = typ != "glu"
    kb, e = divmod(s, 4)
    slot = kb % 3
    buf = s & 1
    its = []

    def wr(n):
        f = wf1(buf, n)
        if not head:
            o = slot * WR_SLOT_G + e * 2048
            return [ds_read(64, A(f[1], 2), vWR4[n], o, tr=True), ds_read(64, A(f[1] + 2, 2), vWR4[n], o + 512, tr=True)]
        o = slot * WR_SLOT_H + e * 3072 + n * 64
        r = [ds_read(64, A(f[1], 2), vWR, o, tr=True), ds_read(64, A(f[1] + 2, 2), vWR, o + 768, tr=True)]
        if n == 0:
            r.append([set_exec(sGMASK), ds_read(128, f, vGWs, e * 32), set_exec(-1)])
        return r
    if head and e == 0:
        its.append(valu("v_add_u32", vGWs, sKX[kb], vGW))
    its.append(ds_read(128, xfrag(s, 0), vXR[e], slot * 8192))
    its += wr(0)
    its.append(ds_read(128, xfrag(s, 1), vXR[e], slot * 8192 + 4096))
    for n in range(1, Opt.n1):
        its += wr(n)
    return its


def reads2(n, s):
    kb2, e = divmod(s, 4)
    base = pieces(kb2)
    hi = base >= 2 * XW
    if hi:
        base -= 2 * XW
    f = wf2(s & 1, 0)
    o = base + e * 1024
    return [ds_read(64, A(f[1], 2), vW2R[n][hi], o, tr=True), ds_read(64, A(f[1] + 2, 2), vW2R[n][hi], o + 256, tr=True)]


def glu_epi(acc, koff, tag):
    b = acc[1]
    its = []
    for e in range(8):
        its.append(valu("v_mul_f32", V(b + e), -LOG2E, V(b + e)))
    for e in range(8):
        its.append(valu("v_exp_f32", V(b + e), V(b + e)))
    for e in range(8):
        its.append(valu("v_add_f32", V(b + e), 1.0, V(b + e)))
    for e in range(8):
        its.append(valu("v_rcp_f32", V(b + e), V(b + e)))
    for e in range(8):
        its.append(valu("v_mul_f32", V(b + e), V(b + e), V(b + 8 + e)))
    for e in range(4):
        its.append(valu("v_cvt_pk_bf16_f32", V(b + 8 + e), V(b + 2 * e), V(b + 2 * e + 1)))
    its.append(store_frag(V(b + 8, 4), koff, tag))
    return its


def store_frag(src, koff, tag):
    fl = Opt.st1
    if isinstance(koff, tuple):
        return buf_store(src, vST, SRD_WS, koff[0], koff[1], fl, tag)
    if koff < 4096:
        return buf_store(src, vST, SRD_WS, 0, koff, fl, tag)
    return [salu("s_mov_b32", sSO2, koff & ~4095), buf_store(src, vST, SRD_WS, sSO2, koff & 4095, fl, tag)]


def flag_set(p, need):
    st = buf_store(vTAG, vFL, SRD_WS, 0, 0, " sc1", None, need=need)
    w = I("s_nop 0", kind="nop", need=need)
    return [w, set_exec(1 << p), st, set_exec(-1)]


def lane_mask(fn):
    m = 0
    for l in range(64):
        if fn(l):
            m |= 1 << l
    return m


def pack_inplace(dst, src, n):
    return [valu("v_cvt_pk_bf16_f32", V(dst + i), V(src + 2 * i), V(src + 2 * i + 1)) for i in range(n)]


def dsw(width, addr, src, off, tag):
    i = ds_write(width, addr, src, off, tag=tag)
    i.cost = {128: 3, 64: 2, 32: 1}[width]
    return i


def head_epi(typ, mark_wr=None):
    its = []
    a = its.append
    Q0, Q1, K0, K1, V0, V1 = 0, 16, 32, 48, 64, 80
    HK, HV = 96, 112
    M = 128 if typ == "h0" else 96
    tg = [V(192), V(193)]
    mx, mx2, sm, sm2, nb, rinv, rz = [V(120 + i) for i in range(7)]
    a(valu("v_mov_b32", tg[0], V(Q0 + 12)))
    a(valu("v_mov_b32", tg[1], V(Q1 + 12)))
    pk = pack_inplace(K0, K0, 8) + pack_inplace(K0 + 8, K1, 8) + pack_inplace(V0, V0, 8) + pack_inplace(V0 + 8, V1, 8)
    wr = [dsw(128, vHP, V(HK + 4 * q, 4), q * 1024, "hp") for q in range(4)]
    wr += [dsw(128, vHP, V(HV + 8 + 4 * q, 4), (4 + q) * 1024, "hp") for q in range(2)]
    for k, x in enumerate(pk):
        a(x)
        if k % 5 == 4 and wr:
            a(wr.pop(0))
    its.extend(wr)
    qp_ = pack_inplace(Q0, Q0, 8) + pack_inplace(Q0 + 8, Q1, 8)
    wr = [dsw(128, vHSI, V(K0 + 8, 4), 3072, "hp"), dsw(128, vHSI, V(K0 + 12, 4), 3072 + 1024, "hp"),
          dsw(128, vHSI, V(V0 + 12, 4), 3072 + 2048, "hp")]
    for k, x in enumerate(qp_):
        if k % 5 == 0 and wr:
            a(wr.pop(0))
        a(x)
    for t in range(2):
        for r in (6, 7):
            a(valu("v_cndmask_b32", V(Q0 + 8 * t + r), 0, V(Q0 + 8 * t + r), sLOMASK))
    a(barrier(need=("hp",)))
    T, TV = K1, TMP - 16
    for p in range(4):
        a(ds_read(128, V(T + 4 * p, 4), vHPK, p * 6144))
        a(ds_read(64, V(TV + 16 + 2 * p, 2), vHPV, p * 6144))
    if typ != "h0":
        its.extend(mask_items(M))
    Sd, Sp, O = V1, Q1, K1

    def qk(t, kprev):
        kp = [V(K0 + 8 * t, 4), V(K0 + 8 * t + 4, 4)]
        qp = [V(Q0 + 8 * t, 4), V(Q0 + 8 * t + 4, 4)]
        a(mfma(V(Sd, 16), kp[0], qp[0], V(M, 16)))
        a(mfma(V(Sp, 16), kprev[0], qp[0], V(M + 8, 16)))
        a(mfma(V(Sd, 16), kp[1], qp[1], V(Sd, 16)))
        a(mfma(V(Sp, 16), kprev[1], qp[1], V(Sp, 16)))

    def softmax_pv(t, vprev):
        vt = [V(V0 + 8 * t, 4), V(V0 + 8 * t + 4, 4)]
        vals = [V(Sd + r) for r in range(16)] + [V(Sp + r) for r in range(8, 16)]
        a(valu("v_max3_f32", mx, vals[0], vals[1], vals[2]))
        a(valu("v_max3_f32", mx2, vals[3], vals[4], vals[5]))
        rest = vals[6:]
        k = 0
        while rest:
            tgt = mx if k % 2 == 0 else mx2
            a(valu("v_max3_f32", tgt, tgt, rest[0], rest[1]))
            rest = rest[2:]
            k += 1
        a(valu("v_max_f32", mx, mx, mx2))
        a(valu("v_mov_b32", mx2, mx))
        g = tg[t]
        a(valu("v_mul_f32", g, -LOG2E, g))
        a(valu("v_exp_f32", g, g))
        a(permswap(mx, mx2))
        a(valu("v_max_f32", mx, mx, mx2))
        a(valu("v_mul_f32", nb, -CSC, mx))
        for v_ in vals:
            a(valu("v_fma_f32", v_, v_, sC, nb))
        for v_ in vals:
            a(valu("v_exp_f32", v_, v_))
        a(valu("v_add_f32", g, 1.0, g))
        a(valu("v_add_f32", sm, vals[0], vals[1]))
        a(valu("v_add_f32", sm2, vals[2], vals[3]))
        for k, v_ in enumerate(vals[4:]):
            tgt = sm if k % 2 == 0 else sm2
            a(valu("v_add_f32", tgt, tgt, v_))
        its.extend(pack_inplace(Sd, Sd, 8))
        its.extend(pack_inplace(Sp + 8, Sp + 8, 4))
        a(valu("v_add_f32", sm, sm, sm2))
        a(valu("v_mov_b32", sm2, sm))
        a(mfma(V(O, 16), vt[0], V(Sd, 4), 0))
        a(mfma(V(O, 16), vt[1], V(Sd + 4, 4), V(O, 16)))
        a(mfma(V(O, 16), vprev, V(Sp + 8, 4), V(O, 16)))
        a(permswap(sm, sm2))
        a(valu("v_add_f32", sm, sm, sm2))
        a(valu("v_rcp_f32", rinv, sm))
        a(valu("v_rcp_f32", g, g))
        a(valu("v_cndmask_b32", rz, 0, rinv, sLOMASK))
        a(buf_store(g, vHP, SRD_WS, 0, t * 256, Opt.st1, "e1"))

    def finish(t):
        for r in range(16):
            a(valu("v_mul_f32", V(O + r), V(O + r), rz if r >= 12 else rinv))
        its.extend(pack_inplace(O, O, 8))
        a(store_frag(V(O, 4), t * 1024, "e1"))
        a(store_frag(V(O + 4, 4), 2048 + t * 1024, "e1"))

    qk(1, [V(K0, 4), V(K0 + 4, 4)])
    for i in range(4):
        a(valu("v_add_f32", V(T + i), V(T + i), V(T + 4 + i)))
        a(valu("v_add_f32", V(T + 8 + i), V(T + 8 + i), V(T + 12 + i)))
    for i in range(2):
        a(valu("v_add_f32", V(TV + 16 + i), V(TV + 16 + i), V(TV + 18 + i)))
        a(valu("v_add_f32", V(TV + 20 + i), V(TV + 20 + i), V(TV + 22 + i)))
    for i in range(4):
        a(valu("v_add_f32", V(T + i), V(T + i), V(T + 8 + i)))
    for i in range(2):
        a(valu("v_add_f32", V(TV + 16 + i), V(TV + 16 + i), V(TV + 20 + i)))
    a(valu("v_cvt_pk_bf16_f32", V(T + 0), V(T + 0), V(T + 1)))
    a(valu("v_cvt_pk_bf16_f32", V(T + 1), V(T + 2), V(T + 3)))
    a(valu("v_cvt_pk_bf16_f32", V(TV + 16), V(TV + 16), V(TV + 17)))
    a(dsw(64, vHSK, V(T, 2), 0, "hs"))
    a(dsw(32, vHSV, V(TV + 16), 0, "hs"))
    a([salu("s_lshl_b32", sT0, sRB, 2), salu("s_add_u32", sT0, sT0, sW), salu("s_lshl_b32", sT0, sT0, 2),
       salu("s_add_u32", sT0, sT0, sCQ)])
    a([salu("s_lshl_b32", sT0, sT0, 2), salu("s_add_u32", sT0, sT0, sJ), salu("s_lshl_b32", sT0, sT0, 9),
       salu("s_add_u32", sT0, sT0, G_OFF - 4 * 512)])
    a(valu("v_lshlrev_b32", vHP, 2, vLANE))
    a(valu("v_add_u32", vHP, sT0, vHP))
    softmax_pv(1, V(V0 + 4, 4))
    a(barrier(need=("hs",)))
    a(ds_read(128, A(240, 4), vHSI, 0))
    a(ds_read(128, A(244, 4), vHSI, 1024))
    x_ = ds_read(128, A(248, 4), vHSI, 2048)
    x_.tag = "hsr"
    a(x_)
    a(I("s_mov_b64 vcc, s[0:1]", regset(sFIRST), regset("vcc"), "salu"))
    for r in range(16, 24):
        a(valu("v_cndmask_b32", V(M + r), vNEG, V(M + r), "vcc"))
    qk(0, [A(240, 4), A(244, 4)])
    if typ == "h2":
        a(barrier(need=("hsr",)))
        a(mark_wr)
    finish(1)
    softmax_pv(0, A(248, 4))
    return its, (lambda: (its.clear(), finish(0), list(its))[2])


def chunk(slot):
    if slot < 16:
        return ("f", slot)
    if slot < 24:
        return ("o", slot - 16)
    return ("f", slot - 8)


PHMASK = [0x000F, 0x00F0, 0xFF00]
PHSTART = [0, 16, 24]
PHEND = [16, 24, 36]


vFP, vFD = V(216), V(218, 2)
vPW = [V(213), V(214)]
vPAe = V(215)
vPFD = V(217)


def poll():
    return buf_load(vFD, vFP, SRD_WS, 0, 0, " sc1")


NR = 17
NV = 8


def bblock(p, typ):
    x0 = [("x", i * 2048) for i in range(4)]
    x1 = [("x", 8192 + i * 2048) for i in range(4)]
    x2 = [("x", 16384 + i * 2048) for i in range(4)]
    top = [("t", 0)]
    wr = [("w", i * 2048) for i in range(6)]
    if typ == "h0":
        early = top + x0 + x1 + x2
        if p < 30:
            return early[p % 13]
        return wr[p - 30]
    early = top + x0 + wr
    if p < 28:
        return early[p % 11]
    return (x1 + x2)[p - 28]


def b_dma(i, typ, need=()):
    kind, ks = chunk(i)
    reg, off = bblock(i, typ)
    base = {"x": sXB, "t": sTOPB, "w": sWRB}[reg]
    if kind == "o":
        row, vo, srd = 28 * (ks >> 1) + 16 * (ks & 1), vBo, SRD_WO
    else:
        row, vo, srd = 16 * ks, vBd, SRD_WD
    its = [dma_item(base, off + h * 1024, vo, srd, (row + 8 * h) * 896, f"B{i}", Opt.ldb) for h in range(2)]
    its[0][0].need = tuple(need)
    return its


vT = {(r, c): V(232 + k) for k, (r, c) in enumerate((r, c) for r in "xtw" for c in range(2))}
vA, vRW, vRR, vO, vG0, vG1 = V(225), V(226), V(227), V(228), V(229), V(231)
vGAD = V(238)
vPA = [V(194), V(195), V(196)]
BF = 136


def breg(i):
    if i < NV:
        return ("v", 64 + 8 * i)
    return ("a", 8 * (i - NV)) if i < NR else ("v", BF + (i & 1) * 8)


def b_reads(i, typ):
    reg, off = bblock(i, typ)
    f, o = breg(i)
    its = []
    for c in range(2):
        its.append(ds_read(64, (f, o + 4 * c, 2), vT[(reg, c)], off, tr=True, need=(f"B{i}",)))
        its.append(ds_read(64, (f, o + 4 * c + 2, 2), vT[(reg, c)], off + 1024, tr=True, need=(f"B{i}",)))
    for x in its:
        x.tag = f"R{i}"
    return its


def p2_setup():
    t = [V(243), V(213), V(214), V(215), V(255), V(212)]
    its = []
    e = its.append
    hf, r4, gi, ng = t[0], t[1], t[2], t[3]
    e(valu("v_lshrrev_b32", hf, 5, vLANE))
    e(valu("v_bfe_u32", r4, vLANE, 2, 2))
    e(valu("v_bfe_u32", gi, vLANE, 4, 1))
    e(valu("v_and_b32", t[4], 3, vLANE))
    e(valu("v_lshl_add_u32", gi, gi, 2, t[4]))
    e(valu("v_and_b32", t[4], 1, gi))
    e(valu("v_lshrrev_b32", ng, 1, gi))
    e(valu("v_lshl_add_u32", ng, t[4], 2, ng))
    e(valu("v_lshl_add_u32", t[4], hf, 2, r4))
    e(valu("v_lshlrev_b32", t[4], 7, t[4]))
    e(valu("v_lshl_add_u32", t[4], ng, 3, t[4]))
    e(valu("v_lshrrev_b32", t[5], 1, r4))
    e(valu("v_lshl_add_u32", t[2], t[5], 6, t[4]))
    e(valu("v_xor_b32", t[5], 1, t[5]))
    e(valu("v_lshl_add_u32", t[3], t[5], 6, t[4]))
    for r, sb in (("x", sXB), ("t", sTOPB), ("w", sWRB)):
        e(valu("v_add_u32", vT[(r, 0)], sb, t[2]))
        e(valu("v_add_u32", vT[(r, 1)], sb, t[3]))
    e([salu("s_lshl_b32", sPP, sRB, 2), salu("s_add_u32", sPP, sPP, sCQ)])
    e([salu("s_mul_i32", sT1, sPP, 144), salu("s_mul_i32", sT2, sW, 36), salu("s_add_u32", sT1, sT1, sT2),
       salu("s_lshl_b32", sT1, sT1, 11), valu("v_add_u32", vA, sT1, vL16)])
    e(salu("s_mov_b32", sT4, sT1))
    for ph in range(3):
        nl = (PHEND[ph] - PHSTART[ph]) * 16
        per = -(-nl // 7)
        e(valu("v_min_u32", t[4], per - 1, vLANE))
        e([salu("s_mul_i32", sT2, sJC, per), valu("v_add_u32", t[4], sT2, t[4])])
        e(valu("v_min_u32", t[4], nl - 1, t[4]))
        e(valu("v_lshlrev_b32", t[4], 7, t[4]))
        e([salu("s_add_u32", sT2, sT4, PHSTART[ph] * 2048), valu("v_add_u32", vPA[ph], sT2, t[4])])
    e([salu("s_lshl_b32", sT1, sW, 12), valu("v_add_u32", vRW, sT1, vL16)])
    e([salu("s_lshl_b32", sT1, sW, 14), valu("v_add_u32", vRR, sT1, vL16)])
    e(valu("v_and_b32", t[4], 31, vLANE))
    e([salu("s_lshl_b32", sT1, sPP, 2), salu("s_add_u32", sT1, sT1, sW), salu("s_lshl_b32", sT1, sT1, 11),
       salu("s_add_u32", sT1, sT1, G_OFF + 128), valu("v_lshl_add_u32", vGAD, t[4], 2, sT1)])
    e([salu("s_lshl_b32", sT1, sPP, 6), salu("s_lshr_b32", sT2, sW, 1), salu("s_lshl_b32", sT2, sT2, 5),
       salu("s_add_u32", sT1, sT1, sT2), valu("v_add_u32", t[4], sT1, t[4])])
    e(valu("v_mul_u32_u24", t[4], 896, t[4]))
    e(valu("v_lshl_add_u32", t[4], hf, 5, t[4]))
    e([salu("s_lshl_b32", sT1, sJC, 7), salu("s_and_b32", sT2, sW, 1), salu("s_lshl_b32", sT2, sT2, 6),
       salu("s_add_u32", sT1, sT1, sT2), valu("v_add_u32", vO, sT1, t[4])])
    e(salu("s_mov_b32", sSPIN, 0))
    return its


def gen_early(E, typ):
    head = typ != "glu"
    Opt.n1 = 3 if head else 4
    n1, n2 = Opt.n1, (0 if typ == "h0" else 2)
    setup_early(E, typ)
    if head:
        E.emit(srd_items(SRD_QKV, P_WQKV, 448 * 2688))
    b = SRD_GU[1]
    gu = [scmp("s_cmp_lt_u32", sW, 2), salu("s_cselect_b32", S(b), S(P_WG), S(P_WU)),
          salu("s_cselect_b32", S(b + 1), S(P_WG + 1), S(P_WU + 1)), salu("s_mov_b32", S(b + 2), 448 * 3584),
          salu("s_mov_b32", S(b + 3), 0x20000)]
    if not head:
        E.emit(gu)
    for it in load_group(0, typ, nox=True):
        E.emit(it)
    if head:
        E.emit(srd_items(SRD_GW, P_GW, 896))
        E.emit(dma_item(None, GW_BASE, vL16, SRD_GW, 0, "L0"))
        E.emit(gu)
    stamp(E, 3, 1)
    E.emit(srd_items(SRD_WO, P_WO, 448 * 896))
    for kb in range(1, 7):
        E.emit(salu("s_add_u32", sKX[kb], sKX[kb - 1], 128))
        E.emit(scmp("s_cmp_eq_u32", sKX[kb], 896))
        E.emit(salu("s_cselect_b32", sKX[kb], 0, sKX[kb]))
    E.emit(srd_items(SRD_WS, P_WS, WS_BYTES))
    E.emit(salu("s_lshl_b32", sT0, sRB, 7))
    E.emit(salu("s_add_u32", sT0, sT0, GEN_OFF))
    E.emit(valu("v_mov_b32", vGA, sT0))
    E.emit(buf_load(vTAG, vGA, SRD_WS, 0, 0, " sc1", tag="L0"))
    g1 = load_group(1, typ)
    for it in g1[:Opt.l1pre]:
        E.emit(it)
    stamp(E, 4, 1)
    for it in setup_late(typ):
        E.emit(it)
    stamp(E, 1)
    stamp(E, 6, 1)
    E.wait_tags("L0")
    E.emit(barrier())
    stamp(E, 2)
    stamp(E, 7, 1)
    for it in reads1(0, typ):
        E.emit(it)


def gen_p1(E, typ):
    head = typ != "glu"
    Opt.n1 = 3 if head else 4
    n1, n2 = Opt.n1, (0 if typ == "h0" else 2)
    fill = deque(setup_fill(typ))
    nfill0 = len(fill)
    pend = deque(load_group(1, typ)[Opt.l1pre:] + load_group(2, typ))
    HWK, HWV, HXF = V(192, 4), V(196, 4), A(248, 4)
    for s in range(28):
        kb, e = divmod(s, 4)
        slot = kb % 3
        buf = s & 1
        ms = []
        for n in range(n1):
            for t in range(2):
                c = 0 if s == 0 else acc1(n, t)
                if head and n == 2:
                    ms.append(mfma(acc1(n, t), xfrag(s, t), wf1(buf, n), c))
                else:
                    ms.append(mfma(acc1(n, t), wf1(buf, n), xfrag(s, t), c))
        must = []
        pre = None
        hold = 0
        if head and e == 2:
            ms.append(mfma(V(96, 16), HWK, HXF, 0 if kb == 0 else V(96, 16)))
            ms.append(mfma(V(112, 16), HXF, HWV, 0 if kb == 0 else V(112, 16)))
        nxt = reads1(s + 1, typ) if s < 27 else (reads2(0, 0) if n2 else [])
        if e == 3:
            tagn = f"L{kb + 1}" if kb < 6 else "W2a"
            hold = 2

            def pre_fn(tagn=tagn):
                E._wait(None, 0)
                E.wait_tags(tagn)
                E.emit(barrier())
            pre = [pre_fn]
            if kb + 3 <= 6:
                pend.extend(load_group(kb + 3, typ))
            elif kb == 4 and n2:
                pend.extend(load_group2([0, 1, 2, 3], "W2a", typ))
            elif kb == 5 and n2:
                pend.extend(load_group2([4, 5, 6], "W2b", typ))
        must += nxt
        if head and e == 0:
            must.append(ds_read(128, HXF, vHXR, slot * 4096))
            for n, f in ((1, HWK), (2, HWV)):
                o = slot * WR_SLOT_H + n * 64
                must.append(ds_read(64, V(f[1], 2), vWH, o, tr=True))
                must.append(ds_read(64, V(f[1] + 2, 2), vWH, o + 768, tr=True))
        if s == 19:
            assert len(fill) <= (24 if typ == "h0" else 0), len(fill)
        if s == Opt.pfw and s:
            assert len(fill) <= nfill0 - 20
        if Opt.pfw > 0 and s >= Opt.pfw and (s - Opt.pfw) % Opt.pfstep == 0 and (s - Opt.pfw) // Opt.pfstep < 5:
            k = (s - Opt.pfw) // Opt.pfstep
            if k < 4:
                must.append(buf_load(vPFD, vPW[0], SRD_WD, 0, 0, Opt.ldpf) if k == 0 else
                            [salu("s_mov_b32", sSO2, k * 3200), buf_load(vPFD, vPW[0], SRD_WD, sSO2, 0, Opt.ldpf)])
            else:
                must.append(buf_load(vPFD, vPW[1], SRD_WO, 0, 0, Opt.ldpf))
        if Opt.mall and s == Opt.mall:
            assert len(fill) <= nfill0 - 4
            must.append([salu("s_lshl_b32", sSO2, sWG, 2), salu("s_add_u32", sSO2, sSO2, sW), salu("s_mul_i32", sSO2, sSO2, 13 * 128),
                         valu("v_min_u32", vPFD, 12, vLANE), valu("v_lshlrev_b32", vPFD, 7, vPFD),
                         buf_load(vPFD, vPFD, SRD_WD, sSO2, 0)])
            must.append([salu("s_lshl_b32", sSO2, sWG, 2), salu("s_add_u32", sSO2, sSO2, sW), salu("s_lshl_b32", sSO2, sSO2, 9),
                         valu("v_min_u32", vPAe, 3, vLANE), valu("v_lshlrev_b32", vPAe, 7, vPAe),
                         buf_load(vPAe, vPAe, SRD_WO, sSO2, 0)])
        steps_left = 4 if e == 3 else 3 - e
        ndma = math.ceil(len(pend) / steps_left)
        dm = [pend.popleft() for _ in range(ndma)]
        weave(E, ms, must, fill, hold=hold, pre=pre, dmas=dm, must_per_gap=Opt.rpg)
    assert not pend and not fill
    stamp(E, 3)
    st = {"q": 0, "done": None, "vfree": 0, "wr": not head}
    if head:
        its, tail = head_epi(typ, lambda: st.__setitem__("wr", True))
        fill.extend(its)
        fill.extend(p2_setup())
        fill.extend(tail())
        fill.append(lambda: st.__setitem__("vfree", NV))
    else:
        fill.extend(p2_setup())
        for n in (2, 3, 0, 1):
            for t in range(2):
                fill.extend(glu_epi(acc1(n, t), (n * 2 + t) * 1024, "e1"))
                if n >= 2:
                    fill.append(lambda: st.__setitem__("vfree", st["vfree"] + 2))
    fill.append(lambda: st.__setitem__("done", st["q"]))
    if n2 == 0:
        k = nb = 0
        while fill:
            put(E, fill.popleft())
            k += 1
            if k % Opt.h0sp == 0 and nb < 13 - Opt.h0b:
                E.emit(b_dma(nb, typ))
                nb += 1
        stamp(E, 4)
        for p in range(nb, min(13, nb + Opt.h0b)):
            E.emit(b_dma(p, typ))
        nb = min(13, nb + Opt.h0b)
        its = flag_set(0, ("e1",))
        its[1] = set_exec(3)
        E.emit(its)
        for p in range(nb, 13):
            E.emit(b_dma(p, typ))
        for it in b_reads(0, typ):
            E.emit(it)
        for p in range(NR):
            if p + 1 < NR:
                for it in b_reads(p + 1, typ):
                    E.emit(it)
            E.emit(b_dma(p + 13, typ, need=(f"R{p}",)))
            if p == NR - 8:
                E.emit(poll())
            if p == NR - 4 and not Opt.late0:
                check(E, typ, 0)
        stamp(E, 5)
        stamp(E, 1, 2)
        return 30
    nb = 0
    flagged = False
    iss = {}
    park = 0
    pend2 = None
    x1 = 28
    for q in range(56):
        st["q"] = q
        n, s = divmod(q, 28)
        ms = [mfma(acc2(n, t), wf2(s & 1, 0), xfrag(s, t), 0 if s == 0 else acc2(n, t)) for t in range(2)]
        must = reads2(*divmod(q + 1, 28)) if q < 55 else []
        hold, pre = 0, None
        dm = []
        if q == 15 or q == 28 + 15:
            hold = 1

            def pre_fn(q=q):
                E._wait(None, 0)
                if q == 15:
                    E.wait_tags("W2b")
                E.emit(barrier())
            pre = [pre_fn]
        if q == 28:
            for t in range(2):
                fill.extend(glu_epi(acc2(0, t), (sP2O, t * 1024), "e2"))
        done = st["done"]
        if done is not None and not flagged and q >= done + Opt.f1d:
            dm.append(flag_set(0, ("e1",)))
            flagged = True
        if q >= Opt.b0 and q % Opt.bsp == 0:
            if pend2 is not None:
                if pend2 + 11 < 28:
                    dm.extend(b_dma(pend2 + 11, typ, need=(f"R{pend2}",)))
                    iss[pend2 + 11] = q
                    nb = pend2 + 12
                pend2 = None
            elif nb < (11 if st["wr"] else 5):
                dm.extend(b_dma(nb, typ))
                iss[nb] = q
                nb += 1
            elif q > 28 + 15 and x1 < 32:
                dm.extend(b_dma(x1, typ))
                x1 += 1
            p = park
            ok = (p < st["vfree"]) if p < NV else (n == 1 and p - NV < s)
            if p < NR and ok and p in iss and q >= iss[p] + Opt.plat and (p + 11 >= 28 or nb >= p + 11):
                must += b_reads(p, typ)
                pend2 = p
                park += 1
        if q == Opt.epoll and not Opt.late0:
            dm.append(poll())
        bud = (Opt.budget2h if head else Opt.budget2) if done is None else Opt.budget
        weave(E, ms, must, fill, hold=hold, pre=pre, budget=bud, dmas=dm)
    st["park"], st["x1"], st["pend2"] = park, x1, pend2
    stamp(E, 4)
    while fill:
        put(E, fill.popleft())
    assert flagged
    if not Opt.late0:
        check(E, typ, 0)
    epi = [glu_epi(acc2(1, t), (sP2O, (2 + t) * 1024), "e2") for t in range(2)]
    for k in range(max(len(x) for x in epi)):
        if k == Opt.poll0 and Opt.late0:
            E.emit(poll())
        for ep in epi:
            if k < len(ep):
                E.emit(ep[k])
    stamp(E, 5)
    stamp(E, 1, 2)
    return dict(park=st.get("park", 0), nb=nb, x1=st.get("x1", 28), pend2=st.get("pend2"))


def diag_store(E, nst):
    if Opt.dbgclk:
        lab = f"L_dbg{len(E.out)}"
        E.raw(f"""    s_memtime s[90:91]
    s_memrealtime s[92:93]
    s_waitcnt lgkmcnt(0)
    s_cmp_lt_u32 s2, 8
    s_cbranch_scc0 {lab}
    s_cmp_eq_u32 s60, 0
    s_cbranch_scc0 {lab}
    s_mov_b32 s28, s22
    s_mov_b32 s29, s23
    s_mov_b32 s30, 256
    s_mov_b32 s31, 0x20000
    s_sub_u32 s90, s90, s86
    s_sub_u32 s92, s92, s88
    s_lshl_b32 s64, s2, 3
    v_mov_b32 v1, s64
    v_mov_b32 v2, s90
    v_mov_b32 v3, s92
    s_mov_b64 exec, 1
    s_nop 4
    buffer_store_dwordx2 v[2:3], v1, s[28:31], 0 offen
{lab}:""")
        return
    if not Opt.diag:
        return
    if Opt.sset == 3:
        E.raw("    s_waitcnt vmcnt(0)\n    s_memrealtime s[90:91]\n    s_memtime s[92:93]")
    E.emit(I("s_waitcnt lgkmcnt(0)", kind="wait"))
    E.lg = []
    E.emit(salu("s_lshl_b32", sT0, sWG, 2))
    E.emit(salu("s_add_u32", sT0, sT0, sW))
    E.emit(salu("s_lshl_b32", sT0, sT0, 6))
    E.emit(salu("s_add_u32", sT0, sT0, DIAG_OFF))
    E.emit(valu("v_mov_b32", V(1), sT0))
    for i in range(nst):
        E.emit(valu("v_mov_b32", V(2), S(sDIAG + 2 * i)))
        E.emit(buf_store(V(2), V(1), SRD_WS, 0, 4 * i))
        E.nop(2)


def check(E, lab, ph):
    mask = PHMASK[ph]
    E.emit(valu("v_cmp_eq_u64", "vcc", vTAG, vFD))
    E.emit(I(f"s_and_b32 {rs(sT5)}, vcc_lo, 0x{mask:x}", regset("vcc"), regset(sT5), "salu"))
    E.emit(scmp("s_cmp_eq_u32", sT5, mask))
    E.emit(branch("s_cbranch_scc1", f"L_fl_ok_{lab}_{ph}"))
    E.label(f"L_fl_loop_{lab}_{ph}")
    E.raw("    s_sleep 2")
    E.raw(f"    buffer_load_dwordx2 {rs(vFD)}, {rs(vFP)}, {rs(SRD_WS)}, 0 offen sc1")
    E.raw("    s_waitcnt vmcnt(0)")
    E.raw(f"    v_cmp_eq_u64 vcc, {rs(vTAG)}, {rs(vFD)}")
    E.raw(f"    s_add_u32 {rs(sSPIN)}, {rs(sSPIN)}, 1")
    E.raw(f"    s_cmp_gt_u32 {rs(sSPIN)}, {Opt.spin}")
    E.raw(f"    s_cbranch_scc1 L_fl_ok_{lab}_{ph}")
    E.raw(f"    s_and_b32 {rs(sT5)}, vcc_lo, 0x{mask:x}")
    E.raw(f"    s_cmp_eq_u32 {rs(sT5)}, 0x{mask:x}")
    E.raw(f"    s_cbranch_scc0 L_fl_loop_{lab}_{ph}")
    E.label(f"L_fl_ok_{lab}_{ph}")

    if Opt.pfa:
        E.emit(buf_load(vPFD, vPA[ph], SRD_WS, 0, 0, " sc1"))


def gen_p2(E, typ, bst):
    head = typ != "glu"
    ACCH, ACCO = 0, 64
    t = [V(208 + i) for i in range(4)]
    fl = Opt.ld2
    D = Opt.D
    RA = (256 - 8 * (NR - NV)) // 8
    lab = typ

    def publish_last():
        return flag_set(1, ("e2",))

    if not head:
        E.emit(scmp("s_cmp_eq_u32", sJ, 3))
        E.emit(branch("s_cbranch_scc0", "L_p2_go"))
        sv = (list(E.vm), list(E.lg), list(E.hist))
        E.emit(publish_last())
        diag_store(E, 8)
        E.emit(I("s_endpgm", kind="branch"))
        E.label("L_p2_go")
        E.vm, E.lg, E.hist = sv

    def areg(i):
        return A(8 * (NR - NV) + (i % RA) * 8, 8)

    def a_loads(i):
        f, r, _ = areg(i)
        so = (i * 2048) & ~4095
        io = (i * 2048) & 4095
        its = []
        if so:
            its.append(salu("s_mov_b32", sSO2, so))
        sof = sSO2 if so else 0
        its.append(buf_load((f, r, 4), vA, SRD_WS, sof, io, fl))
        its.append(buf_load((f, r + 4, 4), vA, SRD_WS, sof, io + 1024, fl))
        return its

    published = [typ == "h0"]
    nxt = {"a": 0}

    def phase(ph):
        check(E, lab, ph)
        stamp(E, 3 + ph, 2)
        if ph == 1:
            E.emit(buf_load(vG0, vGAD, SRD_WS, 0, 0, " sc1"))
            E.emit(buf_load(vG1, vGAD, SRD_WS, 0, 256, " sc1"))

    chk = [0, PHSTART[1] - Opt.lead1, PHSTART[2] - Opt.lead2]

    def issue_a(upto):
        while nxt["a"] < min(upto, 36):
            i = nxt["a"]
            if i in chk[1:]:
                phase(chk.index(i))
            E.emit(a_loads(i))
            nxt["a"] += 1
            if i + Opt.pollahead in chk[1:]:
                E.emit(poll())
            if not published[0] and i >= Opt.pubat:
                E.emit(publish_last())
                published[0] = True

    stamp(E, 2, 2)
    if Opt.late0:
        check(E, lab, 0)
    stamp(E, 3, 2)
    issue_a(Opt.afirst)
    if typ == "h0":
        E.emit(barrier())
        for p in range(30, 36):
            E.emit(b_dma(p, typ))
    else:
        park, nb, x1 = bst["park"], bst["nb"], bst["x1"]
        if bst["pend2"] is not None and bst["pend2"] + 11 < 28:
            E.emit(b_dma(bst["pend2"] + 11, typ, need=(f"R{bst['pend2']}",)))
            nb = bst["pend2"] + 12
        while nb < 11:
            E.emit(b_dma(nb, typ))
            nb += 1
        for p in range(park, NR):
            for it in b_reads(p, typ):
                E.emit(it)
            if p + 11 < 28:
                E.emit(b_dma(p + 11, typ, need=(f"R{p}",)))
        E.emit(barrier())
        for p in range(x1, 36):
            E.emit(b_dma(p, typ))
    assert D < RA
    issue_a(D)
    stamp(E, 6)
    seen = set()
    gsc = deque([valu("v_sub_f32", t[0], 1.0, vG0), valu("v_sub_f32", t[1], 1.0, vG1)])
    for tt in range(2):
        for r in range(32):
            gsc.append(valu("v_mul_f32", V(ACCO + tt * 32 + r), V(ACCO + tt * 32 + r), vG0 if tt == 0 else vG1))
    for i in range(36):
        f, r, _ = areg(i)
        bf, o = breg(i)
        if i in (20, 30):
            stamp(E, {20: 6, 30: 7}[i], 2)
        base = ACCO if chunk(i)[0] == "o" else ACCH
        k = 0
        for tt in range(2):
            for c in range(2):
                d = V(base + (tt * 2 + c) * 16, 16)
                first = (base, tt, c) not in seen
                seen.add((base, tt, c))
                E.emit(mfma(d, (bf, o + 4 * c, 4), (f, r + 4 * tt, 4), 0 if first else d))
                if k == 0 and NR <= i + 1 < 36:
                    for it in b_reads(i + 1, typ):
                        E.emit(it)
                if k >= 2 and i >= 25:
                    for _ in range(4):
                        if gsc:
                            E.emit(gsc.popleft())
                if k == 1:
                    issue_a(i + D + 1)
                k += 1
    assert published[0]
    stamp(E, 7)
    while gsc:
        E.emit(gsc.popleft())
    E.emit(barrier())
    sv = (list(E.vm), list(E.lg), list(E.hist))
    for w in range(4):
        E.vm, E.lg, E.hist = list(sv[0]), list(sv[1]), list(sv[2])
        if w:
            E.label(f"L_red_{lab}_{w}")
        if w < 3:
            E.emit(scmp("s_cmp_eq_u32", sW, w))
            E.emit(branch("s_cbranch_scc0", f"L_red_{lab}_{w + 1}"))
        for q in [(w + 1) % 4, (w + 2) % 4, (w + 3) % 4, w]:
            for r in range(16):
                E.emit(valu("v_fmac_f32", V(ACCO + q * 16 + r), V(ACCH + q * 16 + r), t[q >> 1]))
            if q != w:
                for k in range(4):
                    E.emit(ds_write(128, vRW, V(ACCO + q * 16 + 4 * k, 4), q * 16384 + k * 1024, tag="red"))
        E.emit(barrier(need=("red",)))
        srcs = [x for x in range(4) if x != w]
        for n_, src in enumerate(srcs):
            for k in range(4):
                E.emit(ds_read(128, V(ACCH + n_ * 16 + 4 * k, 4), vRR, src * 4096 + k * 1024))
        own = ACCO + w * 16
        for n_ in range(3):
            for r in range(16):
                E.emit(valu("v_add_f32", V(own + r), V(own + r), V(ACCH + n_ * 16 + r)))
        for it in pack_inplace(own, own, 8):
            E.emit(it)
        E.emit(buf_store(V(own, 4), vO, SRD_OUT, 0, 0, Opt.sto))
        E.emit(buf_store(V(own + 4, 4), vO, SRD_OUT, 0, 16, Opt.sto))
        if w == 0 and not head:
            E.emit(salu("s_or_b32", sT1, sCQ, sJ))
            E.emit(scmp("s_cmp_eq_u32", sT1, 0))
            E.emit(branch("s_cbranch_scc0", f"L_fin_{lab}"))
            E.emit([set_exec(1), buf_store(vTAG, vGA, SRD_WS, 0, 0, " sc1"), set_exec(-1)])
        if w < 3:
            E.emit(branch("s_branch", f"L_fin_{lab}"))
    E.label(f"L_fin_{lab}")
    if Opt.diag and Opt.sset == 0:
        E.emit(I(f"s_memtime s[{sDIAG + 2}:{sDIAG + 3}]", (), (), "smem"))


KD = """.section .rodata,"a"
.p2align 6
.amdhsa_kernel {name}
  .amdhsa_next_free_vgpr 512
  .amdhsa_next_free_sgpr 102
  .amdhsa_accum_offset 256
  .amdhsa_group_segment_fixed_size 0
  .amdhsa_kernarg_size 88
  .amdhsa_user_sgpr_count 2
  .amdhsa_user_sgpr_kernarg_segment_ptr 1
  .amdhsa_system_sgpr_workgroup_id_x 1
.end_amdhsa_kernel
"""


def header(launches):
    h = open(f"cdna_kernels/{NAME}.s.ref").read().split("\n")
    out = []
    for l in h:
        if l.startswith("; @launch") or l.startswith("; Override") or l.startswith("; grid=ceil"):
            continue
        if not l.startswith(";"):
            break
        out.append(l)
    out += launches
    out.append('.amdgcn_target "amdgcn-amd-amdhsa--gfx950"')
    out.append(".text")
    return "\n".join(out) + "\n"


def gen():
    kn = NAME + "_kernel"
    txt = header([f"; @launch grid=(256,1,1) block=(256,1,1) lds={LDS_BYTES}"])
    E = Emitter()
    common_prologue(E)
    E.emit(scmp("s_cmp_lt_u32", sJ, 4))
    E.emit(branch("s_cbranch_scc1", "L_early_glu"))
    st = (list(E.vm), list(E.lg), list(E.hist))
    gen_early(E, "h0")
    E.emit(I(f"s_bitcmp1_b32 {rs(sT3)}, {rs(sHD)}", regset(sT3, sHD), (), "salu"))
    E.emit(branch("s_cbranch_scc1", "L_h2"))
    E.emit(branch("s_branch", "L_h0"))
    st_h = (list(E.vm), list(E.lg), list(E.hist))
    E.label("L_early_glu")
    E.vm, E.lg, E.hist = list(st[0]), list(st[1]), list(st[2])
    gen_early(E, "glu")
    st_g = (list(E.vm), list(E.lg), list(E.hist))
    for typ in ("glu", "h2", "h0"):
        if typ != "glu":
            E.label(f"L_{typ}")
        sv = st_g if typ == "glu" else st_h
        E.vm, E.lg, E.hist = list(sv[0]), list(sv[1]), list(sv[2])
        npre = gen_p1(E, typ)
        gen_p2(E, typ, npre)
        diag_store(E, 8)
        if typ != "h0":
            E.emit(I("s_endpgm", kind="branch"))
    E.label("L_end")
    E.emit(I("s_endpgm", kind="branch"))
    E.label("L_codeend")
    txt += f".globl {kn}\n.p2align 8\n.type {kn},@function\n{kn}:\n" + E.text()
    txt += ".fill 64, 4, 0xBF800000\n"
    txt += KD.format(name=kn)
    sys.stderr.write(f"nops: {E.nops}\n")
    return txt


if __name__ == "__main__":
    ap = argparse.ArgumentParser()
    ap.add_argument("--diag", action="store_true")
    ap.add_argument("--sset", type=int, default=0)
    ap.add_argument("--budget", type=int, default=5)
    ap.add_argument("--norot", action="store_true")
    ap.add_argument("--rpg", type=int, default=2)
    ap.add_argument("--ld1", default="")
    ap.add_argument("--st1", default="sc1")
    ap.add_argument("--ld2", default="sc1")
    ap.add_argument("--ldb", default="")
    ap.add_argument("--npre", type=int, default=99)
    ap.add_argument("--D", type=int, default=8)
    ap.add_argument("--epoll", type=int, default=50)
    ap.add_argument("--late0", type=int, default=1)
    ap.add_argument("--lead1", type=int, default=0)
    ap.add_argument("--lead2", type=int, default=0)
    ap.add_argument("--bfirst", type=int, default=4)
    ap.add_argument("--pollahead", type=int, default=4)
    ap.add_argument("--pubat", type=int, default=6)
    ap.add_argument("--poll0", type=int, default=8)
    ap.add_argument("--pfw", type=int, default=0)
    ap.add_argument("--pfstep", type=int, default=3)
    ap.add_argument("--c1", type=int, default=0)
    ap.add_argument("--c2", type=int, default=16)
    ap.add_argument("--astep", type=int, default=2)
    ap.add_argument("--h0b", type=int, default=3)
    ap.add_argument("--kpf", type=int, default=0)
    ap.add_argument("--bsp", type=int, default=1)
    ap.add_argument("--b0", type=int, default=4)
    ap.add_argument("--rotm", type=int, default=7)
    ap.add_argument("--mall", type=int, default=2)
    ap.add_argument("--rots", type=int, default=1)
    ap.add_argument("--h0sp", type=int, default=40)
    ap.add_argument("--l1pre", type=int, default=7)
    ap.add_argument("--plat", type=int, default=8)
    ap.add_argument("--afirst", type=int, default=4)
    ap.add_argument("--sto", default="")
    ap.add_argument("--dbgclk", action="store_true")
    ap.add_argument("--ldk", default="")
    ap.add_argument("--bstep", type=int, default=1)
    ap.add_argument("--f1d", type=int, default=16)
    ap.add_argument("--f1dh", type=int, default=12)
    ap.add_argument("--budget2h", type=int, default=16)
    ap.add_argument("--noa", action="store_true")
    ap.add_argument("--fakeh", action="store_true")
    ap.add_argument("--nob", action="store_true")
    ap.add_argument("--pfa", type=int, default=0)
    ap.add_argument("--lead", type=int, default=4)
    ap.add_argument("--budget2", type=int, default=18)
    ap.add_argument("--ldpf", default="")
    ap.add_argument("--f1u", type=int, default=7)
    ap.add_argument("--spin", type=int, default=20000)
    ap.add_argument("-o", default=f"cdna_kernels/{NAME}.s")
    args = ap.parse_args()
    for k, v in vars(args).items():
        setattr(Opt, k, v)
    Opt.rot = not args.norot
    fx = lambda x: (" " + x.replace("+", " ")) if x else ""
    Opt.ld1, Opt.st1, Opt.ld2, Opt.ldb = fx(args.ld1), fx(args.st1), fx(args.ld2), fx(args.ldb)
    Opt.ldpf = fx(args.ldpf)
    Opt.ldk = fx(args.ldk)
    Opt.sto = fx(args.sto)
    for p in range(768):
        assert (p * 43691) >> 19 == p // 12
    open(args.o, "w").write(gen())
```
